```python
import torch

def _softmax(x, axis=-1):
    return torch.softmax(x, dim=axis)
def _gelu(x):
    return torch.nn.functional.gelu(x, approximate="tanh")
def _silu(x):
    return torch.nn.functional.silu(x)
def _sigmoid(x):
    return torch.sigmoid(x)
def _layernorm(x, axis=-1, eps=1e-5):
    m = x.mean(dim=axis, keepdim=True)
    v = x.var(dim=axis, keepdim=True, unbiased=False)
    return (x - m) / torch.sqrt(v + eps)
def _scatter_add(tgt, idx, src, axis=0):
    return tgt.clone().index_add_(axis, idx, src)
def _segment_sum(src, seg, n):
    out = torch.zeros((n,) + src.shape[1:], dtype=src.dtype)
    return out.index_add_(0, seg, src)
def _pad(x, pw):
    flat = tuple(v for pair in reversed(pw) for v in pair)
    return torch.nn.functional.pad(x, flat)

kernel_name = 'sequential_preLN__mha_block__dense_activation_squared_relu__prompt'

def setup_inputs():

    _w = (lambda a: (lambda t: t.to(torch.bfloat16) if t.is_floating_point() else t)(torch.as_tensor(a)))
    def _A_setup():
        B, S, D, H = 1, 2048, 448, 16
        return {
            "x": _w((lambda *s: torch.randn(*s, dtype=torch.bfloat16) * 0.05)(B, S, D)),
            "wqkv": _w((lambda *s: torch.randn(*s, dtype=torch.bfloat16) * 0.05)(D, 3 * D)),
            "wo": _w((lambda *s: torch.randn(*s, dtype=torch.bfloat16) * 0.05)(D, D)),
        }
    _A_in = _A_setup()

    def _B_setup():
        B, S, D, F = 1, 2048, 448, 1792
        return {
            "x": _w((lambda *s: torch.randn(*s, dtype=torch.bfloat16) * 0.05)(B, S, D)),
            "w1": _w((lambda *s: torch.randn(*s, dtype=torch.bfloat16) * 0.05)(D, F)),
            "b1": _w((lambda *s: torch.randn(*s, dtype=torch.bfloat16) * 0.2)(F)),
            "w2": _w((lambda *s: torch.randn(*s, dtype=torch.bfloat16) * 0.05)(F, D)),
            "b2": _w((lambda *s: torch.randn(*s, dtype=torch.bfloat16) * 0.8)(D)),
        }
    _B_in = _B_setup()

    return {
        "A_x": _A_in["x"],
        "A_wqkv": _A_in["wqkv"],
        "A_wo": _A_in["wo"],
        "B_x": _B_in["x"],
        "B_w1": _B_in["w1"],
        "B_b1": _B_in["b1"],
        "B_w2": _B_in["w2"],
        "B_b2": _B_in["b2"],
    }

def reference(A_x, A_wqkv, A_wo, B_x, B_w1, B_b1, B_w2, B_b2):
    def _A_ref(x, wqkv, wo):
        B, S, D = x.shape
        H = 16
        Dh = D // H
        qkv = (lambda x, *d: x.permute(*d))((x @ wqkv).reshape(B, S, 3, H, Dh), 2, 0, 3, 1, 4)
        q, k, v = qkv[0], qkv[1], qkv[2]
        scores = torch.einsum("bhqd,bhkd->bhqk", q, k) * (Dh ** -0.5)
        p = _softmax(scores, axis=-1)
        o = torch.einsum("bhqk,bhkd->bhqd", p, v)
        return (lambda x, *d: x.permute(*d))(o, 0, 2, 1, 3).reshape(B, S, D) @ wo

    def _B_ref(x, w1, b1, w2, b2):
        h = torch.einsum("bsd,df->bsf", x, w1) + b1
        zero = torch.zeros_like(h)
        r = torch.where(h > zero, h, zero)
        h = r * r
        out = torch.einsum("bsf,fd->bsd", h, w2) + b2
        return out

    x = A_x
    h = x + _A_ref(_layernorm(x, axis=-1), A_wqkv, A_wo)
    h2 = h + _B_ref(_layernorm(h, axis=-1), B_w1, B_b1, B_w2, B_b2)
    return h2
```

```python
import re

def R(kind, lo, n=1):
    return f"{kind}{lo}" if n == 1 else f"{kind}[{lo}:{lo+n-1}]"
def v(lo, n=1): return R("v", lo, n)
def s(lo, n=1): return R("s", lo, n)

_reg = re.compile(r"^(-?)(\|?)(abs\()?([vsa])(?:(\d+)|\[(\d+):(\d+)\])\)?\|?$")
def regs_of(tok):
    tok = tok.strip()
    if tok in ("vcc", "exec"): return {tok}
    if tok in ("vcc_lo", "vcc_hi"): return {"vcc"}
    if tok in ("exec_lo", "exec_hi"): return {"exec"}
    if tok == "m0": return {"m0"}
    m = _reg.match(tok)
    if not m: return set()
    k = m.group(4)
    if m.group(5) is not None: return {(k, int(m.group(5)))}
    return {(k, i) for i in range(int(m.group(6)), int(m.group(7)) + 1)}

TRANS = ("v_exp_", "v_log_", "v_rcp_", "v_rsq_", "v_sqrt_", "v_sin_", "v_cos_")

class Ins:
    __slots__ = ("text", "op", "cls", "rd", "wr", "A", "B", "C", "passes", "target", "label", "states", "data", "sel")
    def __init__(self, text):
        self.text = text
        self.label = None; self.target = None
        self.rd = set(); self.wr = set(); self.A = self.B = self.C = set(); self.data = set(); self.sel = set()
        self.passes = 0; self.states = 1
        t = text.split(";")[0].strip()
        if not t: self.op = ""; self.cls = "none"; self.states = 0; return
        if t.endswith(":"): self.op = ""; self.cls = "label"; self.label = t[:-1]; self.states = 0; return
        if t.startswith("."): self.op = t; self.cls = "dir"; self.states = 0; return
        parts = t.split(None, 1)
        op = self.op = parts[0]
        rest = parts[1] if len(parts) > 1 else ""
        ops = [x.strip() for x in rest.split(",")] if rest else []
        mods = ""
        if ops:
            last = ops[-1].split()
            ops[-1] = last[0]; mods = " ".join(last[1:])
        rs = [regs_of(x) for x in ops]
        U = lambda l: set().union(*l) if l else set()
        if op.startswith("v_mfma") or op.startswith("v_smfmac"):
            self.cls = "mfma"
            self.passes = 8 if "32x32" in op else 4
            self.wr = rs[0]; self.A = rs[1]; self.B = rs[2]
            if op.startswith("v_smfmac"):
                self.C = rs[0]; self.B = rs[2] | rs[3]
            else: self.C = rs[3]
            self.rd = self.A | self.B | self.C
        elif op.startswith("v_"):
            self.cls = "valu"
            if op.startswith("v_permlane") and "swap" in op:
                self.wr = rs[0] | rs[1]; self.rd = rs[0] | rs[1]
            elif op.startswith(("v_add_co", "v_sub_co", "v_addc_co", "v_subb_co", "v_subrev_co")):
                self.wr = rs[0] | rs[1]; self.rd = U(rs[2:])
            elif op == "v_nop": pass
            else:
                self.wr = rs[0]; self.rd = U(rs[1:])
                if op.startswith(("v_fmac", "v_dot2c", "v_writelane")) or "UNUSED_PRESERVE" in mods: self.rd = self.rd | rs[0]
                if op.startswith("v_cmpx"): self.wr = self.wr | {"exec"}
                if op.startswith(("v_readlane", "v_writelane")): self.sel = rs[2]
        elif op.startswith("ds_"):
            self.cls = "ds"
            if op.startswith(("ds_read", "ds_bpermute", "ds_permute", "ds_swizzle")): self.wr = rs[0]; self.rd = U(rs[1:])
            else: self.rd = U(rs)
        elif op.startswith(("buffer_", "global_")):
            self.cls = "vmem"
            if op in ("buffer_wbl2", "buffer_inv"): pass
            elif "load" in op:
                if re.search(r"\blds\b", mods) or "load_lds" in op: self.rd = U(rs) | {"m0"}
                else: self.wr = rs[0]; self.rd = U(rs[1:])
            else:
                self.rd = U(rs)
                if op.endswith(("x3", "x4")): self.data = rs[0] if op.startswith("buffer_") else rs[1]
        elif op.startswith("s_"):
            self.cls = "salu"
            if op == "s_nop": self.states = int(ops[0], 0) + 1
            elif op.startswith(("s_branch", "s_cbranch")): self.cls = "branch"; self.target = ops[0]
            elif op == "s_endpgm": self.cls = "end"
            elif op.startswith(("s_cmp", "s_bitcmp", "s_waitcnt", "s_barrier", "s_setprio", "s_sleep", "s_setreg")): self.rd = U(rs)
            elif op.startswith(("s_load", "s_memtime", "s_memrealtime")): self.cls = "smem"; self.wr = rs[0]; self.rd = U(rs[1:])
            else:
                self.wr = rs[0]; self.rd = U(rs[1:])
                if "saveexec" in op: self.wr = self.wr | {"exec"}
        else:
            raise ValueError("unknown instr " + text)
    @property
    def trans(self): return self.op.startswith(TRANS)
    @property
    def dot(self): return self.op.startswith("v_dot")

def isv(x): return isinstance(x, tuple) and x[0] in "va"
def iss(x): return x == "vcc" or (isinstance(x, tuple) and x[0] == "s")

def need(p, c):
    n = 0
    if p.cls == "valu":
        wv = {x for x in p.wr if isv(x)}; wsg = {x for x in p.wr if iss(x)}
        if c.cls == "mfma" and wv & c.rd: n = max(n, 3 if p.dot else 2)
        if c.cls == "valu":
            if p.trans and not c.trans and wv & c.rd: n = max(n, 1)
            if p.trans and c.trans and wv & c.rd: n = max(n, 1)
            if c.op.startswith(("v_readlane", "v_readfirstlane")) and wv & c.rd: n = max(n, 1)
            if c.op.startswith("v_permlane") and wv & c.rd: n = max(n, 2)
            if "dpp" in c.op and wv & c.rd: n = max(n, 2)
            if wsg & c.rd: n = max(n, 2)
            if wsg & c.sel: n = max(n, 4)
            if "sdwa" in p.op and wv & (c.rd | c.wr): n = max(n, 1)
            if p.dot and wv & (c.rd | c.wr):
                same = c.op == p.op and (wv & c.wr) and not (wv & (c.rd - c.wr))
                if not same: n = max(n, 3)
            if "exec" in p.wr: n = max(n, 5)
        if c.cls in ("vmem", "ds") and p.dot and wv & c.rd: n = max(n, 3)
        if c.cls in ("vmem", "ds") and p.trans and wv & c.rd: n = max(n, 1)
        if c.cls == "vmem" and wsg & c.rd: n = max(n, 5)
        if c.cls == "mfma" and "exec" in p.wr: n = max(n, 4)
        if c.cls in ("salu", "smem") and wsg & c.rd: n = max(n, 1)
    elif p.cls == "mfma":
        big = p.passes == 8
        if c.cls == "mfma":
            if p.wr & (c.A | c.B): n = max(n, 12 if big else 8)
            if p.wr & c.C:
                exact = c.C == p.wr and c.passes == p.passes
                if not exact: n = max(n, 10 if big else 6)
            elif p.wr & c.wr and not (c.wr == p.wr and c.passes == p.passes): n = max(n, 10 if big else 6)
        elif c.cls in ("valu", "vmem", "ds"):
            if p.wr & (c.rd | c.wr): n = max(n, 12 if big else 8)
            if c.cls == "valu" and p.C & c.wr: n = max(n, 7 if big else 3)
    elif p.cls == "vmem":
        if p.data and c.cls in ("valu", "mfma") and p.data & c.wr: n = max(n, 2)
        elif p.data and p.data & c.wr: n = max(n, 1)
    elif p.cls == "salu":
        if "m0" in p.wr and c.cls == "vmem" and "m0" in c.rd: n = max(n, 1)
    return n

def pad_all(lines, verbose=False):
    ins = [Ins(l) for l in lines]
    i = 0; count = 0
    def index():
        labels = {x.label: k for k, x in enumerate(ins) if x.cls == "label"}
        srcs = {}
        for k, x in enumerate(ins):
            if x.cls == "branch": srcs.setdefault(labels[x.target], []).append(k)
        return srcs
    srcs = index()
    while i < len(ins):
        c = ins[i]
        if c.states == 0 or c.op == "s_nop": i += 1; continue
        worst = 0; why = None
        stack = [(i - 1, 0)]; seen = {}
        while stack:
            k, d = stack.pop()
            if k < 0 or d >= 12: continue
            if seen.get(k, 99) <= d: continue
            seen[k] = d
            p = ins[k]
            if p.cls == "label":
                for b in srcs.get(k, []): stack.append((b - 1, d + 1))
                stack.append((k - 1, d)); continue
            if p.cls == "end" or p.op in ("s_branch", "s_setpc_b64"): continue
            r = need(p, c) if p.states else 0
            if r - d > worst: worst = r - d; why = p
            stack.append((k - 1, d + p.states))
        if worst > 0:
            if verbose: print(f"pad {worst}: [{why.text.strip()}] -> [{c.text.strip()}]")
            ins.insert(i, Ins(f"s_nop {worst-1}")); count += 1
            srcs = index()
            i += 2
        else: i += 1
    return [x.text for x in ins], count

class Asm:
    def __init__(self):
        self.lines = []
        self.vmq = []
        self.lgq = []
        self.uid = 0
        self.ool = []
    def __call__(self, text, tag=None):
        for t in text.split("\n"):
            t = t.strip()
            if not t: continue
            self.lines.append(t)
            op = t.split()[0]
            if op.startswith(("buffer_", "global_")): self.vmq.append(tag)
            elif op.startswith("ds_"): self.lgq.append(tag)
            elif op == "s_waitcnt":
                m = re.search(r"vmcnt\((\d+)\)", t)
                if m: n = int(m.group(1)); self.vmq = self.vmq[len(self.vmq)-n:] if n < len(self.vmq) and n else ([] if n == 0 else self.vmq)
                m = re.search(r"lgkmcnt\((\d+)\)", t)
                if m: n = int(m.group(1)); self.lgq = self.lgq[len(self.lgq)-n:] if n < len(self.lgq) and n else ([] if n == 0 else self.lgq)
    def _cnt(self, q, tags):
        idx = [i for i, t in enumerate(q) if t in tags]
        if not idx: return None
        return len(q) - 1 - max(idx)
    def wait(self, vm=None, lg=None):
        parts = []
        if vm is not None:
            assert isinstance(vm, list)
            n = self._cnt(self.vmq, vm)
            if n is not None: parts.append(f"vmcnt({min(n,63)})")
        if lg is not None:
            assert isinstance(lg, list)
            n = self._cnt(self.lgq, lg)
            if n is not None: parts.append(f"lgkmcnt({min(n,15)})")
        if parts: self("s_waitcnt " + " ".join(parts))
    def label(self, base="L"):
        self.uid += 1
        return f"{base}_{self.uid}"
    def reset_q(self, vm=None, lg=None):
        self.vmq = list(vm or []); self.lgq = list(lg or [])
```

```python
import sys, struct, math
from asmlib import Asm, v, s, pad_all

NAME = "sequential_preLN__mha_block__dense_activation_squared_relu__prompt"
KN = NAME + "_kernel"

class Cfg:
    stamps = False
    force_global = False
    force_fallback = False
    permute = 0
    n1 = 96
    c0j, c0i = 1, 4
    prio = 1
    wb = 1
cfg = Cfg()
for arg in sys.argv[2:]:
    k, val = arg.split("=")
    setattr(cfg, k, int(val))

def f32(x): return "0x%08x" % struct.unpack("<I", struct.pack("<f", x))[0]

EPOCH = 0
FW, FA, FC, FD = 0x1000, 0x2000, 0x4000, 0x6000
GOFF = 0x10000
FP0, FB = 0x8000, 0xA000
DBG = 0x40000
WP = 0x100000
WOT = 0x250000
W1T = 0x2C0000
W2T = 0x448000
ST = 0x5D0000
HF = 0x650000
OF = 0x810000
KV = 0xA10000
HH = 0xE10000
WS_SIZE = 0x1510000
OOB = 0x40000000

K = 1024
L_XR = 0
L_P0 = 16 * K
L_QX = 32 * K
L_MODE = 151 * K
L_W = 64 * K
L_AUG = 148 * K
L_RED = 112 * K
L_O = 128 * K
L_AUG1 = 112 * K
L_R2 = 116 * K
L_PART = 120 * K
PROW = 272
LDS_SIZE = 160 * K

sB, sW, sJ, sI, sH, sRB = 2, 3, 4, 5, 6, 7
SX, SWS, SA, SB_ = 8, 12, 16, 20
sG, sL, sMODE, sSPIN = 24, 25, 26, 27
sT = 28
pX, pWQKV, pWO, pW1, pB1, pW2, pB2, pOUT = 36, 38, 40, 44, 46, 48, 50, 52
sCH = 56
sUP = 64
sPADV = 66
sW4 = 68
sKVB = 69
sPF = 70
sM0 = 71
sT3, sFT, sT4, sSL, sT5, sC7 = 72, 73, 74, 75, 76, 77
sP0D, sP0DS, sP0M, sP0ST = 78, 79, 80, 81
sCM = 82
sTS = 84
SC = 88
sONE = 92

a = Asm()
ool = []

def srd(d, p, nbytes):
    a(f"s_mov_b32 {s(d)}, {s(p)}\ns_mov_b32 {s(d+1)}, {s(p+1)}\ns_mov_b32 {s(d+2)}, {nbytes}\ns_mov_b32 {s(d+3)}, 0x20000")

def mfma(d, A, B, C):
    c = "0" if C is None else v(C, 16)
    return f"v_mfma_f32_32x32x16_bf16 {v(d,16)}, {v(A,4)}, {v(B,4)}, {c}"
def smf(d, A, B, idx): return f"v_smfmac_f32_32x32x32_bf16 {v(d,16)}, {v(A,4)}, {v(B,8)}, {v(idx)}"
def cvt(d, x, y): return f"v_cvt_pk_bf16_f32 {v(d)}, {v(x)}, {v(y)}"

vSTAMP = 15
def stamp(n):
    if not cfg.stamps: return
    a(f"s_memtime {s(sTS,2)}\ns_waitcnt lgkmcnt(0)\nv_writelane_b32 {v(vSTAMP)}, {s(sTS)}, {n}")
def stamp_flush(vt):
    if not cfg.stamps: return
    a(f"""v_mbcnt_lo_u32_b32 {v(vt)}, -1, 0
    v_mbcnt_hi_u32_b32 {v(vt)}, -1, {v(vt)}
    v_lshlrev_b32 {v(vt)}, 2, {v(vt)}
    s_lshl_b32 {s(sT)}, {s(sB)}, 3
    s_add_u32 {s(sT)}, {s(sT)}, {s(sW)}
    s_lshl_b32 {s(sT)}, {s(sT)}, 8
    s_add_u32 {s(sT)}, {s(sT)}, {DBG}
    buffer_store_dword {v(vSTAMP)}, {v(vt)}, {s(SWS,4)}, {s(sT)} offen""")

vL16 = 1
vF0 = 2
vTMP = 3

def publish(soff, vt):
    l1, l2 = a.label("Lpubg"), a.label("Lpubd")
    a(f"""v_mov_b32 {v(vt)}, {s(sL)}
    s_cmp_lg_u32 {s(sMODE)}, 0
    s_waitcnt vmcnt(0)
    buffer_store_dword {v(vt)}, {v(vF0)}, {s(SWS,4)}, {s(soff)} offen
    s_cbranch_scc1 {l1}
    {l2}:""")
    ool.append(f"""{l1}:
    buffer_wbl2 sc1
    s_add_u32 {s(soff)}, {s(soff)}, {GOFF}
    s_waitcnt vmcnt(0)
    v_mov_b32 {v(vt)}, {s(sG)}
    buffer_store_dword {v(vt)}, {v(vF0)}, {s(SWS,4)}, {s(soff)} offen sc1
    s_branch {l2}""")

def spin_tail(loop, done):
    return f"""s_sub_u32 {s(sSPIN)}, {s(sSPIN)}, 1
    s_cbranch_scc0 {loop}
    s_mov_b32 {s(sSPIN)}, 0
    s_branch {done}"""

def poll(soff, vaddr, vt):
    lp, lg, ld, lr, lgd = a.label("Lpoll"), a.label("Lpollg"), a.label("Lpolld"), a.label("Lpollr"), a.label("Lpollgd")
    a(f"""s_cmp_lg_u32 {s(sMODE)}, 0
    s_cbranch_scc1 {lg}
    {lp}:
    buffer_load_dword {v(vt)}, {v(vaddr)}, {s(SWS,4)}, {s(soff)} offen sc1
    s_waitcnt vmcnt(0)
    v_cmp_ne_u32 vcc, {s(sL)}, {v(vt)}
    s_cbranch_vccnz {lr}
    {ld}:""")
    ool.append(f"""{lr}:
    {spin_tail(lp, ld)}
    {lg}:
    s_add_u32 {s(sT+7)}, {s(soff)}, {GOFF}
    buffer_load_dword {v(vt)}, {v(vaddr)}, {s(SWS,4)}, {s(soff)} offen sc1
    buffer_load_dword {v(vt+1)}, {v(vaddr)}, {s(SWS,4)}, {s(sT+7)} offen sc1
    s_waitcnt vmcnt(0)
    v_cmp_ne_u32 vcc, {s(sL)}, {v(vt)}
    v_cmp_ne_u32 {s(sCM,2)}, {s(sG)}, {v(vt+1)}
    s_nop 1
    s_and_b64 vcc, vcc, {s(sCM,2)}
    s_cbranch_scc0 {lgd}
    s_sub_u32 {s(sSPIN)}, {s(sSPIN)}, 1
    s_cbranch_scc0 {lg}
    s_mov_b32 {s(sSPIN)}, 0
    {lgd}:
    buffer_inv sc1
    s_waitcnt vmcnt(0)
    s_branch {ld}""")

def poll_g(soff, vaddr, vt):
    lp, ld, lr = a.label("Lpoll"), a.label("Lpolld"), a.label("Lpollr")
    a(f"""{lp}:
    buffer_load_dword {v(vt)}, {v(vaddr)}, {s(SWS,4)}, {s(soff)} offen sc1
    s_waitcnt vmcnt(0)
    v_cmp_ne_u32 vcc, {s(sG)}, {v(vt)}
    s_cbranch_vccnz {lr}
    {ld}:""")
    ool.append(f"{lr}:\n{spin_tail(lp, ld)}")

def interleave(main, fill, start, per):
    fill = list(fill)
    for n, g in enumerate(main):
        g()
        if n >= start:
            for _ in range(per):
                if fill: fill.pop(0)()
    for f in fill: f()

def I(text, tag=None): return lambda: a(text, tag)

def prologue():
    a(f"""s_cmp_ge_u32 {s(sB)}, 256
    s_cbranch_scc1 Lend
    s_load_dwordx16 {s(36,16)}, s[0:1], 0
    s_load_dwordx2 {s(pOUT,2)}, s[0:1], 64
    s_load_dwordx2 {s(SWS,2)}, s[0:1], 80
    v_lshrrev_b32 v3, 6, v0
    v_and_b32 v0, 63, v0
    v_readfirstlane_b32 {s(sW)}, v3""")
    if cfg.permute:
        a(f"""s_lshr_b32 {s(sT)}, {s(sB)}, {cfg.permute}
        s_lshl_b32 {s(sB)}, {s(sB)}, {8-cfg.permute}
        s_or_b32 {s(sB)}, {s(sB)}, {s(sT)}
        s_and_b32 {s(sB)}, {s(sB)}, 255""")
    a(f"""s_and_b32 {s(sJ)}, {s(sB)}, 7
    s_lshr_b32 {s(sI)}, {s(sB)}, 3
    s_and_b32 {s(sT)}, {s(sI)}, 1
    s_lshl1_add_u32 {s(sH)}, {s(sJ)}, {s(sT)}
    s_lshr_b32 {s(sRB)}, {s(sI)}, 1
    s_and_b32 {s(sW4)}, {s(sW)}, 3
    s_mul_i32 {s(sT)}, {s(sT)}, {cfg.c0i}
    s_mul_i32 {s(sT+1)}, {s(sJ)}, {cfg.c0j}
    s_add_u32 {s(sT)}, {s(sT)}, {s(sT+1)}
    s_mul_i32 {s(sT+1)}, {s(sT)}, 37
    s_lshr_b32 {s(sT+1)}, {s(sT+1)}, 8
    s_mul_i32 {s(sT+1)}, {s(sT+1)}, 7
    s_sub_u32 {s(sCH)}, {s(sT)}, {s(sT+1)}""")
    for q in range(1, 7):
        a(f"""s_add_u32 {s(sCH+q)}, {s(sCH+q-1)}, 1
        s_cmp_eq_u32 {s(sCH+q)}, 7
        s_cselect_b32 {s(sCH+q)}, 0, {s(sCH+q)}""")
    a(f"""v_lshlrev_b32 {v(vL16)}, 4, v0
    v_cmp_eq_u32 vcc, 0, v0
    v_mov_b32 v3, {OOB}
    s_mov_b32 {s(SWS+2)}, {WS_SIZE}
    s_mov_b32 {s(SWS+3)}, 0x20000
    v_cndmask_b32 {v(vF0)}, v3, 0, vcc
    s_mov_b32 {s(sUP)}, 0
    s_mov_b32 {s(sUP+1)}, -1
    s_mov_b32 {s(sPADV)}, 0x88008800
    s_mov_b32 {s(sPADV+1)}, 0x88008800
    s_mov_b32 {s(sSPIN)}, 0x20000
    s_mov_b32 {s(sONE)}, 0x3f803f80
    s_getreg_b32 {s(sL)}, hwreg(HW_REG_XCC_ID, 0, 4)""")
    if cfg.stamps: a(f"v_mov_b32 {v(vSTAMP)}, 0")
    a(f"""s_lshr_b32 {s(sT)}, {s(sI)}, 2
    s_lshl3_add_u32 {s(sT3)}, {s(sJ)}, {s(sT)}
    s_and_b32 {s(sT)}, {s(sI)}, 3
    s_lshl2_add_u32 {s(sFT)}, {s(sT)}, {s(sW4)}
    s_cmp_ge_u32 {s(sI)}, 14
    s_cselect_b32 {s(sT)}, 1, 0
    s_mul_i32 {s(sT+1)}, {s(sT)}, 14
    s_sub_u32 {s(sSL)}, {s(sI)}, {s(sT+1)}
    s_lshl1_add_u32 {s(sT)}, {s(sJ)}, {s(sT)}
    s_lshl2_add_u32 {s(sT4)}, {s(sT)}, {s(sW4)}
    s_mul_i32 {s(sT)}, {s(sI)}, 37
    s_lshr_b32 {s(sT)}, {s(sT)}, 8
    s_mul_i32 {s(sT+1)}, {s(sT)}, 7
    s_sub_u32 {s(sC7)}, {s(sI)}, {s(sT+1)}
    s_lshl2_add_u32 {s(sT)}, {s(sJ)}, {s(sT)}
    s_lshl_b32 {s(sT5)}, {s(sT)}, 1
    s_lshl_b32 {s(sKVB)}, {s(sH)}, 18
    s_add_u32 {s(sKVB)}, {s(sKVB)}, {KV}
    s_cmp_ge_u32 {s(sW)}, 4
    s_cbranch_scc1 LB_start""")

def nonce(vt):
    a(f"""v_readfirstlane_b32 {s(sG)}, {v(vt)}
    s_add_u32 {s(sL)}, {s(sL)}, 1
    s_lshl_b32 {s(sL)}, {s(sL)}, 27
    s_mul_i32 {s(sG)}, {s(sG)}, 0x9E3779B1
    s_add_u32 {s(sG)}, {s(sG)}, 0x7F4A7C15
    s_xor_b32 {s(sL)}, {s(sL)}, {s(sG)}""")

vO, vS0, vS1, vK0, vK1, vV0, vV1, vQ = 16, 32, 48, 64, 68, 72, 76, 80
vPF = 128

def p1_A():
    XF = 128
    aK, aV, aQ, WB, MH, ML, RR, PK = 16, 32, 48, 64, 96, 100, 104, 120
    NB = 8
    vXA, vXR = 240, 244
    s1, s2, rstd, vEP, vWA, vKS, vONE, t0 = 248, 249, 250, 251, 252, 253, 254, 3
    a("s_waitcnt lgkmcnt(0)")
    srd(SX, pX, 2048 * 896)
    stamp(0)
    a(f"""v_lshrrev_b32 v3, 3, v0
    v_and_b32 v4, 7, v0
    v_lshrrev_b32 v5, 1, v3
    v_xor_b32 v4, v4, v5
    v_mul_u32_u24 v3, 896, v3
    v_lshl_add_u32 {v(vXA)}, v4, 4, v3
    v_xor_b32 {v(vXA+1)}, 64, {v(vXA)}
    v_add_u32 {v(vXA+1)}, {7168-1024}, {v(vXA+1)}
    v_add_u32 {v(vXA+2)}, {14336-2048}, {v(vXA)}
    v_add_u32 {v(vXA+3)}, {14336-2048}, {v(vXA+1)}
    s_lshl2_add_u32 {s(sT)}, {s(sRB)}, {s(sW)}
    s_mul_i32 {s(sT)}, {s(sT)}, {32*896}
    s_lshl_b32 {s(sM0)}, {s(sW)}, 14""")
    def xdma(q):
        a(f"""s_lshl_b32 {s(sT+1)}, {s(sCH+q)}, 7
        s_add_u32 m0, {s(sM0)}, {(q%4)*4096}
        s_add_u32 {s(sT+1)}, {s(sT+1)}, {s(sT)}""")
        for g in range(4):
            a(f"buffer_load_dwordx4 {v(vXA+g)}, {s(SX,4)}, {s(sT+1)} offen offset:{1024*g} lds", ("x", q))
    for q in range(4): xdma(q)
    a(f"buffer_load_dword {v(vEP)}, {v(vF0)}, {s(SWS,4)}, 0 offen sc1", "ep")
    a(f"""v_and_b32 v3, 31, v0
    v_lshrrev_b32 v4, 5, v0
    v_bfe_u32 v5, v3, 1, 3
    v_xor_b32 v5, v5, v4
    v_lshlrev_b32 v6, 7, v3
    v_lshl_add_u32 v6, v5, 4, v6
    v_add_u32 {v(vXR)}, {s(sM0)}, v6
    v_xor_b32 {v(vXR+1)}, 32, {v(vXR)}
    v_xor_b32 {v(vXR+2)}, 64, {v(vXR)}
    v_xor_b32 {v(vXR+3)}, 0x60, {v(vXR)}
    v_mov_b32 {v(s1)}, 0
    v_mov_b32 {v(s2)}, 0
    v_add_u32 {v(vWA)}, {L_W}, {v(vL16)}
    v_mov_b32 {v(vONE)}, {s(sONE)}
    v_bfe_u32 v5, v3, 2, 1
    v_bfe_u32 v6, v3, 3, 1
    v_and_b32 v7, 0x33, v0
    v_lshl_or_b32 v7, v5, 3, v7
    v_lshl_or_b32 v7, v6, 2, v7
    v_lshlrev_b32 {v(vKS)}, 4, v7""")
    for q in range(7):
        a.wait(vm=[("x", q)])
        for t in range(4):
            a(f"ds_read_b128 {v(XF+16*q+4*t,4)}, {v(vXR+t)} offset:{(q%4)*4096}", ("xr", q))
        if q > 0:
            for r in range(16):
                a(f"v_dot2c_f32_bf16 {v(s1)}, {s(sONE)}, {v(XF+16*(q-1)+r)}\nv_dot2c_f32_bf16 {v(s2)}, {v(XF+16*(q-1)+r)}, {v(XF+16*(q-1)+r)}")
        a.wait(lg=[("xr", q)])
        if q + 4 < 7: xdma(q + 4)
        if q == 4: nonce(vEP)
    for r in range(16):
        a(f"v_dot2c_f32_bf16 {v(s1)}, {s(sONE)}, {v(XF+96+r)}\nv_dot2c_f32_bf16 {v(s2)}, {v(XF+96+r)}, {v(XF+96+r)}")
    stamp(1)
    a(f"""v_mov_b32 v3, {v(s1)}
    v_mov_b32 v4, {v(s2)}
    v_permlane32_swap_b32 v3, {v(s1)}
    v_permlane32_swap_b32 v4, {v(s2)}
    v_add_f32 v3, v3, {v(s1)}
    v_add_f32 v4, v4, {v(s2)}
    v_mul_f32 v3, {f32(-1.0/448)}, v3
    v_mul_f32 v4, {f32(1.0/448)}, v4
    v_fma_f32 v4, -v3, v3, v4
    v_max_f32 v4, 0, v4
    v_add_f32 v4, {f32(1e-5)}, v4
    v_rsq_f32 {v(rstd)}, v4
    v_and_b32 v5, 31, v0
    v_lshl_add_u32 v5, v5, 2, {s(sM0)}
    v_lshrrev_b32 v6, 5, v0
    v_lshl_add_u32 v6, v6, 4, {s(sM0)}
    ds_write_b32 v5, {v(rstd)}
    {cvt(MH, 3, 3)}
    v_and_b32 v4, 0xffff0000, {v(MH)}
    v_sub_f32 v4, v3, v4
    {cvt(ML, 4, 4)}
    s_waitcnt lgkmcnt(0)""")
    for g in range(4): a(f"ds_read_b128 {v(RR+4*g,4)}, v6 offset:{32*g}")
    for t in range(1, 4): a(f"v_mov_b32 {v(MH+t)}, {v(MH)}\nv_mov_b32 {v(ML+t)}, {v(ML)}")
    a(f"""s_lshl2_add_u32 {s(sT)}, {s(sRB)}, {s(sW)}
    s_lshl_b32 {s(sT+2)}, {s(sT)}, 12
    s_add_u32 {s(sT+2)}, {s(sT+2)}, {s(sKVB)}
    s_lshl_b32 {s(sT+3)}, {s(sH)}, 6
    s_add_u32 {s(sT+3)}, {s(sT+3)}, {s(sT)}
    s_lshl_b32 {s(sT+3)}, {s(sT+3)}, 2
    s_add_u32 {s(sT+3)}, {s(sT+3)}, {FA}
    s_lshl_b32 {s(sT+4)}, {s(sW)}, 12
    v_add_u32 v4, {s(sT+4)}, {v(vKS)}
    v_add_u32 v5, {s(sT+4)}, {v(vL16)}
    s_lshl_b32 {s(sT+4)}, {s(sW)}, 11
    s_add_u32 {s(sT+4)}, {s(sT+4)}, {L_QX}
    v_add_u32 v6, {s(sT+4)}, {v(vL16)}
    v_add_u32 v7, {56*K}, {v(vWA)}
    v_mov_b32 v8, {L_MODE}
    s_waitcnt lgkmcnt(0)""")
    acc = [aK, aV, aQ]
    items = [(m, q) for m in range(3) for q in range(30)]
    reads = [(m, q) for m in range(3) for q in range(29)]
    buf = {r: WB + 4 * (n % NB) for n, r in enumerate(reads)}
    nread = [0]
    def issue_read():
        if nread[0] >= len(reads): return
        m, q = reads[nread[0]]; nread[0] += 1
        if (m, q) == (0, 0):
            stamp(2)
            a("s_barrier")
            stamp(3)
            a("ds_read_b32 v9, v8", "mode")
        if q == 28: a("s_barrier")
        off = (m * 28 + q) * K if q < 28 else (L_AUG - L_W) + m * K
        if off >= 56 * K: a(f"ds_read_b128 {v(buf[(m,q)],4)}, v7 offset:{off-56*K}", ("w", m, q))
        else: a(f"ds_read_b128 {v(buf[(m,q)],4)}, {v(vWA)} offset:{off}", ("w", m, q))
    for _ in range(NB - 1): issue_read()
    a.wait(lg=["mode"])
    a(f"v_readfirstlane_b32 {s(sMODE)}, v9")
    def item(m, q):
        def f():
            w = buf[(m, min(q, 28))]
            x = XF + 4 * q if q < 28 else (MH if q == 28 else ML)
            a.wait(lg=[("w", m, min(q, 28))])
            a(mfma(acc[m], x, w, acc[m] if q else None) if m == 1 else mfma(acc[m], w, x, acc[m] if q else None))
            if q != 28: issue_read()
        return f
    epK = [I(f"v_mul_f32 {v(aK+r)}, {v(aK+r)}, {v(rstd)}") for r in range(16)]
    epK += [I(f"v_cndmask_b32 {v(aK+12+t)}, {v(aK+12+t)}, {'1.0' if t < 3 else '0'}, {s(sUP,2)}") for t in range(4)]
    epK += [I(cvt(PK + t, aK + 2 * t, aK + 2 * t + 1)) for t in range(8)]
    epK += [I(f"buffer_store_dwordx4 {v(PK+4*u,4)}, {v(vKS)}, {s(SWS,4)}, {s(sT+2)} offen offset:{u*K}") for u in range(2)]
    epK += [I(f"ds_write_b128 v4, {v(PK+4*u,4)} offset:{u*K}", "kw") for u in range(2)]
    epV = [I(f"v_mul_f32 {v(aV+r)}, {v(aV+r)}, {v(RR+r)}") for r in range(16)]
    epV += [I(cvt(RR + t, aV + 2 * t, aV + 2 * t + 1)) for t in range(8)]
    epV += [I(f"v_cndmask_b32 {v(RR+t)}, {v(RR+t)}, {v(vONE)}, {s(sPADV,2)}") for t in range(8)]
    epV += [I(f"buffer_store_dwordx4 {v(RR+4*u,4)}, {v(vL16)}, {s(SWS,4)}, {s(sT+2)} offen offset:{(2+u)*K}") for u in range(2)]
    epV += [I(f"ds_write_b128 v5, {v(RR+4*u,4)} offset:{(2+u)*K}", "vw") for u in range(2)]
    interleave([item(0, q) for q in range(30)], [], 0, 0)
    interleave([item(1, q) for q in range(30)], epK, 3, 4)
    interleave([item(2, q) for q in range(25)], epV, 3, 4)
    publish(sT + 3, 9)
    interleave([item(2, q) for q in range(25, 30)], [I(f"v_mul_f32 {v(rstd)}, {f32(28**-0.5*math.log2(math.e))}, {v(rstd)}")], 0, 1)
    stamp(4)
    for r in range(16): a(f"v_mul_f32 {v(aQ+r)}, {v(aQ+r)}, {v(rstd)}")
    for t in range(4): a(f"v_cndmask_b32 {v(aQ+12+t)}, {v(aQ+12+t)}, 0, {s(sUP,2)}")
    a(f"v_mul_f32 v9, {v(aQ)}, {v(aK)}\nv_mul_f32 v10, {v(aQ+1)}, {v(aK+1)}")
    for r in range(2, 16): a(f"v_fmac_f32 {v(9+r%2)}, {v(aQ+r)}, {v(aK+r)}")
    a("v_add_f32 v9, v9, v10")
    for t in range(3): a(cvt(vQ + t, aQ + 2 * t, aQ + 2 * t + 1))
    a("v_mov_b32 v10, v9")
    for t in range(3, 6): a(cvt(vQ + t, aQ + 2 * t, aQ + 2 * t + 1))
    a(f"""v_permlane32_swap_b32 v9, v10
    {cvt(vQ+7, aQ+14, aQ+15)}
    ds_write_b128 v6, {v(vQ,4)}
    v_add_f32 v9, v9, v10
    v_cndmask_b32 {v(aQ+12)}, {v(aQ+12)}, -v9, {s(sUP,2)}
    {cvt(vQ+6, aQ+12, aQ+13)}
    ds_write_b128 v6, {v(vQ+4,4)} offset:{K}""")
    a(f"""s_lshl_b32 {s(sPF)}, {s(sFT)}, 15
    s_add_u32 {s(sPF)}, {s(sPF)}, {WOT}
    s_cmp_lt_u32 {s(sFT)}, 14
    s_cselect_b32 {s(sPF)}, {s(sPF)}, {OOB}""")
    att_setup(0)
    a("s_waitcnt lgkmcnt(0)\ns_barrier")
    a("s_branch Latt")

SLOT = [0, 3, 4, 5, 6, 7, 8, 9, 1, 2, 0, 3, 4, 5, 6, 8]
PRE = 2

def p1_B():
    vRA, vT0, vT1, vST, vEP, vWA, vAU = 16, 17, 18, 19, 20, 21, 22
    FR = 32
    a("LB_start:")
    a.reset_q()
    a("s_waitcnt lgkmcnt(0)")
    srd(SA, pWQKV, 448 * 2688)
    stamp(0)
    a(f"""v_lshrrev_b32 v3, 4, v0
    v_and_b32 v4, 15, v0
    v_mul_u32_u24 v5, 2688, v3
    v_lshl_add_u32 {v(vRA)}, v4, 4, v5
    s_add_u32 {s(sT)}, {s(sW4)}, 1
    s_cmp_eq_u32 {s(sT)}, 3
    s_cselect_b32 {s(sT)}, 0, {s(sT)}
    s_mul_i32 {s(sT)}, {s(sT)}, 896
    s_mul_i32 {s(sT+1)}, {s(sJ)}, 112
    s_and_b32 {s(sT+2)}, {s(sT+1)}, 127
    s_sub_u32 {s(sT+1)}, {s(sT+1)}, {s(sT+2)}
    s_add_u32 {s(sT)}, {s(sT)}, {s(sT+1)}
    s_mul_i32 {s(sT+1)}, {s(sI)}, {16*2688}
    s_add_u32 {s(sT)}, {s(sT)}, {s(sT+1)}
    s_mul_i32 {s(sT+3)}, {s(sW4)}, {28*K}
    s_add_u32 {s(sT+3)}, {s(sT+3)}, {L_W}
    s_mov_b32 m0, {s(sT+3)}
    s_cmp_lt_u32 {s(sI)}, 28
    s_cselect_b32 {s(sT+4)}, {s(sW4)}, 3
    buffer_load_dword {v(vEP)}, {v(vF0)}, {s(SWS,4)}, 0 offen sc1
    s_cmp_eq_u32 {s(sT+4)}, 3
    s_cbranch_scc1 LB_norep""")
    for n in range(4):
        a(f"buffer_load_dwordx4 {v(vRA)}, {s(SA,4)}, {s(sT)} offen offset:{n*K} lds")
        if n < 3: a(f"s_add_u32 {s(sT)}, {s(sT)}, {4*2688-K}")
    a(f"""v_lshrrev_b32 v3, 5, v0
    v_bfe_u32 v4, v0, 2, 2
    v_lshl_add_u32 v4, v3, 3, v4
    v_lshlrev_b32 v4, 8, v4
    v_bfe_u32 v5, v0, 4, 1
    v_lshl_add_u32 v4, v5, 5, v4
    v_and_b32 v5, 3, v0
    v_lshl_add_u32 v4, v5, 3, v4
    s_add_u32 {s(sT+2)}, {s(sT+2)}, {s(sT+3)}
    v_add_u32 {v(vT0)}, {s(sT+2)}, v4
    v_and_b32 v5, 31, v0
    v_cmp_lt_u32 vcc, 10, v5
    v_addc_co_u32 v6, vcc, 0, v5, vcc
    v_cmp_lt_u32 vcc, 13, v5
    v_addc_co_u32 v6, vcc, 0, v6, vcc
    v_cmp_lt_u32 vcc, 24, v5
    v_addc_co_u32 v6, vcc, 0, v6, vcc
    v_and_b32 v7, 1, v5
    v_lshlrev_b32 v7, 2, v7
    v_bfe_u32 v8, v5, 1, 1
    v_lshl_add_u32 v7, v8, 4, v7
    v_add_u32 v7, 11, v7
    v_cmp_lt_u32 vcc, 27, v5
    v_cndmask_b32 v6, v6, v7, vcc
    s_cmp_eq_u32 {s(sW4)}, 1
    s_cselect_b64 vcc, -1, 0
    v_cndmask_b32 v6, v5, v6, vcc
    v_lshl_add_u32 v6, v3, 5, v6
    v_lshlrev_b32 {v(vST)}, 4, v6
    s_mul_i32 {s(sT)}, {s(sJ)}, 6
    s_add_u32 {s(sT)}, {s(sT)}, {s(sW4)}
    s_mul_i32 {s(sT)}, {s(sT)}, 28
    s_add_u32 {s(sT)}, {s(sT)}, {s(sI)}
    s_lshl_b32 {s(sT)}, {s(sT)}, 10
    s_add_u32 {s(sT)}, {s(sT)}, {WP}
    s_add_u32 {s(sT+1)}, {s(sT)}, {84*K}
    s_waitcnt vmcnt(0)""")
    for e in range(2):
        for z in range(2):
            a(f"ds_read_b64_tr_b16 {v(FR+4*e+2*z,2)}, {v(vT0)} offset:{56*e+1024*z}")
    a(f"""s_waitcnt lgkmcnt(2)
    buffer_store_dwordx4 {v(FR,4)}, {v(vST)}, {s(SWS,4)}, {s(sT)} offen
    s_waitcnt lgkmcnt(0)
    buffer_store_dwordx4 {v(FR+4,4)}, {v(vST)}, {s(SWS,4)}, {s(sT+1)} offen
    s_branch LB_rep
    LB_norep:""")
    a(f"""s_getpc_b64 {s(SC,2)}
    Lpc:
    s_sub_u32 {s(SC)}, {s(SC)}, Lpc-{KN}
    s_subb_u32 {s(SC+1)}, {s(SC+1)}, 0
    s_mov_b32 {s(SC+2)}, Lcode_end-{KN}
    s_mov_b32 {s(SC+3)}, 0x20000
    s_lshl_b32 {s(sT)}, {s(sI)}, 10
    buffer_load_dwordx4 {v(FR,4)}, {v(vL16)}, {s(SC,4)}, {s(sT)} offen
    s_waitcnt vmcnt(1)
    LB_rep:""")
    nonce(vEP)
    stamp(1)
    a(f"""s_lshl_b32 {s(sT)}, {s(sJ)}, 9
    s_add_u32 {s(sT)}, {s(sT)}, {FW}
    s_lshl2_add_u32 {s(sT+1)}, {s(sI)}, {s(sW4)}
    s_lshl2_add_u32 {s(sT+1)}, {s(sT+1)}, {s(sT)}
    v_mov_b32 v3, {s(sL)}
    v_lshlrev_b32 v4, 3, v0
    s_mov_b32 {s(sMODE)}, 0
    s_mov_b32 {s(sT+2)}, {0 if cfg.force_global else cfg.n1}
    s_waitcnt vmcnt(0)
    buffer_store_dword v3, {v(vF0)}, {s(SWS,4)}, {s(sT+1)} offen""")
    if cfg.force_global: a("s_branch LB_wglob")
    a(f"""LB_wpoll:
    buffer_load_dwordx2 v[6:7], v4, {s(SWS,4)}, {s(sT)} offen sc1
    s_waitcnt vmcnt(0)
    v_cmp_ne_u32 vcc, {s(sL)}, v6
    v_cmp_ne_u32 {s(sCM,2)}, {s(sL)}, v7
    s_nop 1
    s_or_b64 vcc, vcc, {s(sCM,2)}
    s_cbranch_scc1 LB_wretry
    LB_wdone:""")
    ool.append(f"""LB_wretry:
    s_sub_u32 {s(sT+2)}, {s(sT+2)}, 1
    s_cbranch_scc0 LB_wpoll
    LB_wglob:
    s_mov_b32 {s(sMODE)}, 1
    buffer_wbl2 sc1
    s_add_u32 {s(sT+1)}, {s(sT+1)}, {GOFF}
    s_add_u32 {s(sT+2)}, {s(sT)}, {GOFF}
    v_mov_b32 v3, {s(sG)}
    s_waitcnt vmcnt(0)
    buffer_store_dword v3, {v(vF0)}, {s(SWS,4)}, {s(sT+1)} offen sc1
    LB_wgl:
    buffer_load_dwordx2 v[6:7], v4, {s(SWS,4)}, {s(sT)} offen sc1
    buffer_load_dwordx2 v[8:9], v4, {s(SWS,4)}, {s(sT+2)} offen sc1
    s_waitcnt vmcnt(0)
    v_cmp_ne_u32 vcc, {s(sL)}, v6
    v_cmp_ne_u32 {s(sCM,2)}, {s(sG)}, v8
    s_nop 1
    s_and_b64 {s(sT+4,2)}, vcc, {s(sCM,2)}
    v_cmp_ne_u32 vcc, {s(sL)}, v7
    v_cmp_ne_u32 {s(sCM,2)}, {s(sG)}, v9
    s_nop 1
    s_and_b64 vcc, vcc, {s(sCM,2)}
    s_or_b64 vcc, vcc, {s(sT+4,2)}
    s_cbranch_scc0 LB_wgd
    s_sub_u32 {s(sSPIN)}, {s(sSPIN)}, 1
    s_cbranch_scc0 LB_wgl
    s_mov_b32 {s(sSPIN)}, 0
    LB_wgd:
    buffer_inv sc1
    s_waitcnt vmcnt(0)
    s_branch LB_wdone""")
    a.reset_q()
    stamp(2)
    a(f"""s_mul_i32 {s(sT)}, {s(sH)}, 84
    s_add_u32 {s(sT)}, {s(sT)}, {s(sW4)}
    s_lshl_b32 {s(sT)}, {s(sT)}, 10
    s_add_u32 {s(sT)}, {s(sT)}, {WP}
    s_lshl_b32 {s(sM0)}, {s(sW4)}, 10""")
    for q in range(7): a(f"s_lshl_b32 {s(sCH+q)}, {s(sCH+q)}, 12\ns_add_u32 {s(sCH+q)}, {s(sCH+q)}, {s(sT)}")
    for m in range(3):
        for q in range(7):
            a(f"s_add_u32 m0, {s(sM0)}, {L_W+(m*28+4*q)*K}")
            if m: a(f"s_add_u32 {s(sCH+q)}, {s(sCH+q)}, {28*K}")
            else: a("s_nop 0")
            a(f"buffer_load_dwordx4 {v(vL16)}, {s(SWS,4)}, {s(sCH+q)} offen sc1 lds", ("w", m))
    a(f"""v_mov_b32 v3, {s(sMODE)}
    v_mov_b32 v4, {L_MODE}
    ds_write_b32 v4, v3
    s_add_u32 {s(sT)}, {s(sM0)}, {L_W}
    v_add_u32 {v(vWA)}, {s(sT)}, {v(vL16)}
    s_lshl_b32 {s(sT)}, {s(sW4)}, 2
    s_add_u32 {s(sT)}, {s(sT)}, {L_AUG}
    v_add_u32 {v(vAU)}, {s(sT)}, {v(vL16)}
    s_cmp_lt_u32 {s(sB)}, 32
    s_cbranch_scc1 LB_p0o
    s_cmp_lt_u32 {s(sB)}, 144
    s_cbranch_scc1 LB_p01""")
    srd(SB_, pW2, 1792 * 896)
    a(f"""s_sub_u32 {s(sT)}, {s(sB)}, 144
    s_mul_i32 {s(sT+1)}, {s(sT)}, {16*896}
    s_lshl_b32 {s(sP0D)}, {s(sT)}, 10
    s_add_u32 {s(sP0D)}, {s(sP0D)}, {W2T}
    s_mov_b32 {s(sP0DS)}, {112*K}
    s_mov_b32 {s(sP0ST)}, 896
    s_mov_b32 {s(sP0M)}, -1
    s_mov_b32 {s(sT+2)}, 1024
    s_branch LB_p0j
    LB_p01:""")
    srd(SB_, pW1, 448 * 3584)
    a(f"""s_sub_u32 {s(sT)}, {s(sB)}, 32
    s_and_b32 {s(sT+3)}, {s(sT)}, 3
    s_lshr_b32 {s(sT)}, {s(sT)}, 2
    s_mul_i32 {s(sT+1)}, {s(sT)}, {16*3584}
    s_mul_i32 {s(sT+4)}, {s(sT+3)}, 896
    s_add_u32 {s(sT+1)}, {s(sT+1)}, {s(sT+4)}
    s_mul_i32 {s(sT+3)}, {s(sT+3)}, {14*28}
    s_add_u32 {s(sT)}, {s(sT)}, {s(sT+3)}
    s_lshl_b32 {s(sP0D)}, {s(sT)}, 10
    s_add_u32 {s(sP0D)}, {s(sP0D)}, {W1T}
    s_mov_b32 {s(sP0DS)}, {28*K}
    s_mov_b32 {s(sP0ST)}, 3584
    s_mov_b32 {s(sP0M)}, -1
    s_mov_b32 {s(sT+2)}, 1024
    s_branch LB_p0j
    LB_p0o:""")
    srd(SB_, pWO, 448 * 896)
    a(f"""s_mul_i32 {s(sT+1)}, {s(sB)}, {14*896}
    s_lshl_b32 {s(sP0D)}, {s(sB)}, 10
    s_add_u32 {s(sP0D)}, {s(sP0D)}, {WOT}
    s_mov_b32 {s(sP0DS)}, {32*K}
    s_mov_b32 {s(sP0ST)}, 896
    s_mov_b32 {s(sP0M)}, 0xffff
    s_mov_b32 {s(sT+2)}, 768
    LB_p0j:
    s_lshl_b32 {s(sT+3)}, {s(sW4)}, 8
    s_add_u32 {s(sT+1)}, {s(sT+1)}, {s(sT+3)}
    s_lshl_b32 {s(sT+3)}, {s(sP0DS)}, 2
    s_mul_i32 {s(sT+3)}, {s(sT+3)}, {s(sW4)}
    s_add_u32 {s(sP0D)}, {s(sP0D)}, {s(sT+3)}
    v_lshrrev_b32 v3, 4, v0
    v_and_b32 v4, 15, v0
    v_mul_u32_u24 v5, {s(sP0ST)}, v3
    v_lshl_add_u32 {v(vRA)}, v4, 4, v5
    s_lshl_b32 {s(sP0ST)}, {s(sP0ST)}, 2
    s_sub_u32 {s(sP0ST)}, {s(sP0ST)}, {K}
    s_lshl_b32 {s(sT+3)}, {s(sW4)}, 12
    s_add_u32 {s(sT+3)}, {s(sT+3)}, {L_P0}
    v_lshrrev_b32 v3, 5, v0
    v_bfe_u32 v4, v0, 2, 2
    v_lshlrev_b32 v4, 8, v4
    v_bfe_u32 v5, v0, 4, 1
    v_lshl_add_u32 v4, v5, 5, v4
    v_and_b32 v5, 3, v0
    v_lshl_add_u32 v4, v5, 3, v4
    v_add_u32 v4, {s(sT+3)}, v4
    v_lshl_add_u32 {v(vT0)}, v3, 10, v4
    v_mad_u32_u24 {v(vT1)}, v3, {s(sT+2)}, v4
    s_mov_b32 m0, {s(sT+3)}""")
    def colsum(m):
        for q in range(7):
            off = (m * 28 + 4 * q) * K
            if off >= 56 * K and q == 0: a(f"v_add_u32 {v(vWA)}, {56*K}, {v(vWA)}")
            a(f"ds_read_b128 {v(FR+4*q,4)}, {v(vWA)} offset:{off % (56*K)}", ("c", q))
        for q in range(7):
            a.wait(lg=[("c", q)])
            for t in range(4):
                r = FR + 4 * q + t
                if q == 0 and t == 0: a(f"v_and_b32 v3, 0xffff0000, {v(r)}\nv_lshlrev_b32 v4, 16, {v(r)}")
                else: a(f"v_and_b32 v5, 0xffff0000, {v(r)}\nv_lshlrev_b32 v6, 16, {v(r)}\nv_add_f32 v3, v3, v5\nv_add_f32 v4, v4, v6")
        a(f"""v_add_f32 v3, v3, v4
        {cvt(4, 3, 3)}
        v_and_b32 v4, 0xffff0000, v4
        v_sub_f32 v4, v3, v4
        {cvt(4, 3, 4)}
        ds_write_b32 {v(vAU)}, v4 offset:{m*K}""")
    a.wait(vm=[("w", 0)])
    a("s_waitcnt lgkmcnt(0)")
    stamp(3)
    a("s_barrier")
    for n in range(4):
        a(f"buffer_load_dwordx4 {v(vRA)}, {s(SB_,4)}, {s(sT+1)} offen offset:{n*K} lds", "p0")
        if n < 3: a(f"s_add_u32 {s(sT+1)}, {s(sT+1)}, {s(sP0ST)}")
    colsum(0)
    a.wait(vm=[("w", 1)])
    a("s_waitcnt lgkmcnt(0)\ns_barrier")
    colsum(1)
    a.wait(vm=[("w", 2)])
    a("s_waitcnt lgkmcnt(0)\ns_barrier")
    colsum(2)
    a.wait(vm=["p0"])
    for t in range(4):
        a(f"ds_read_b64_tr_b16 {v(FR+4*t,2)}, {v(vT0)} offset:{64*t}", ("t", t))
        a(f"ds_read_b64_tr_b16 {v(FR+4*t+2,2)}, {v(vT1)} offset:{64*t+2048}", ("t", t))
    for t in range(4):
        a.wait(lg=[("t", t)])
        a(f"v_and_b32 {v(FR+4*t+3)}, {s(sP0M)}, {v(FR+4*t+3)}")
        if t == 2: a(f"s_cmp_eq_u32 {s(sW4)}, 3\ns_cselect_b32 {s(sP0D)}, {OOB}, {s(sP0D)}")
        a(f"buffer_store_dwordx4 {v(FR+4*t,4)}, {v(vL16)}, {s(SWS,4)}, {s(sP0D)} offen sc1")
        if t < 3: a(f"s_add_u32 {s(sP0D)}, {s(sP0D)}, {s(sP0DS)}")
    a("s_barrier")
    stamp(4)
    a(f"""s_lshl_b32 {s(sT)}, {s(sH)}, 8
    s_add_u32 {s(sT)}, {s(sT)}, {FA}
    v_lshlrev_b32 v4, 2, v0""")
    poll(sT, 4, 6)
    a.reset_q()
    stamp(5)
    a(f"s_lshl_b32 {s(sT+1)}, {s(sW4)}, 12")
    for be in range(1, PRE + 1):
        a(f"""s_add_u32 {s(sT)}, {s(sRB)}, {be}
        s_and_b32 {s(sT)}, {s(sT)}, 15
        s_lshl_b32 {s(sT)}, {s(sT)}, 14
        s_add_u32 {s(sT)}, {s(sT)}, {s(sKVB)}
        s_add_u32 m0, {s(sT+1)}, {SLOT[be]*16*K}
        s_add_u32 {s(sT)}, {s(sT)}, {s(sT+1)}""")
        for n in range(4):
            a(f"buffer_load_dwordx4 {v(vL16)}, {s(SWS,4)}, {s(sT)} offen offset:{n*K} sc1 lds")
    a(f"""s_and_b32 {s(sT)}, {s(sW4)}, 1
    s_lshl1_add_u32 {s(sT)}, {s(sC7)}, {s(sT)}
    s_lshr_b32 {s(sT+1)}, {s(sW4)}, 1
    s_lshl1_add_u32 {s(sT)}, {s(sT)}, {s(sT+1)}
    s_mul_i32 {s(sPF)}, {s(sT)}, {56*K}
    s_add_u32 {s(sPF)}, {s(sPF)}, {W2T}
    s_cmp_lt_u32 {s(sI)}, 28
    s_cselect_b32 {s(sPF)}, {s(sPF)}, {OOB}
    s_lshl_b32 {s(sT+4)}, {s(sW4)}, 11
    s_add_u32 {s(sT+4)}, {s(sT+4)}, {L_QX}
    v_add_u32 v9, {s(sT+4)}, {v(vL16)}""")
    att_setup(1)
    a("s_barrier")
    a(f"""ds_read_b128 {v(vQ,4)}, v9
    ds_read_b128 {v(vQ+4,4)}, v9 offset:{K}""")

vA0, vIDX, vFL = 4, 7, 8
def att_setup(g):
    a(f"""v_add_u32 {v(vA0)}, {g*8*K}, {v(vL16)}
    v_add_u32 {v(vA0+1)}, {g*8*K+64*K}, {v(vL16)}
    v_add_u32 {v(vA0+2)}, {g*8*K+128*K}, {v(vL16)}
    v_mov_b32 {v(vIDX)}, 0xdddddddd
    s_lshl_b32 {s(sM0)}, {s(sW)}, 11
    s_add_u32 {s(sKVB)}, {s(sKVB)}, {s(sM0)}
    s_lshl_b32 {s(sP0D)}, {s(sB)}, 2
    s_add_u32 {s(sP0D)}, {s(sP0D)}, {FP0}
    s_cmp_eq_u32 {s(sW)}, 4
    s_cselect_b32 {s(sP0D)}, {s(sP0D)}, {OOB}
    v_mov_b32 v12, {s(sG)}""")
    for r in range(16): a(f"v_mov_b32 {v(vO+r)}, 0")

BARS = {1: 2, 4: 4, 8: 8, 16: 12, 24: 15}
def attention():
    a("Latt:")
    a.reset_q(vm=[("kv", b) for b in range(1, PRE + 1)], lg=["q"])
    stamp(6)
    a.reset_q(vm=[("kv", b) for b in range(1, PRE + 1)], lg=["q"])
    def rd(dst, n, part, tag):
        addr = SLOT[n // 2] * 16 * K + (n % 2) * 4 * K + part * K
        a(f"ds_read_b128 {v(dst,4)}, {v(vA0 + addr // (64*K))} offset:{addr % (64*K)}", tag)
    vm = {n: [] for n in range(32)}
    sched = {}
    st = 0
    for be in range(PRE + 1, 9): sched[be] = (st, st); st += 1
    for be in range(9, 16): sched[be] = (st, st + 1); st += 2
    for be, (s0, s1) in sched.items():
        prev = [p for p in range(be) if SLOT[p] == SLOT[be]]
        if prev: assert any(b <= s0 and b > 2 * prev[-1] + 1 for b in BARS), (be, s0)
        elif SLOT[be] in (1, 2): assert s0 >= 1
        need = min(b for b, u in BARS.items() if u >= be)
        assert s1 < need and need <= max(2 * be - 2, 1), (be, need)
        def first(be=be):
            a(f"""s_add_u32 {s(sT)}, {s(sRB)}, {be}
            s_and_b32 {s(sT)}, {s(sT)}, 15
            s_lshl_b32 {s(sT)}, {s(sT)}, 14
            s_add_u32 m0, {s(sM0)}, {SLOT[be]*16*K}
            s_add_u32 {s(sT)}, {s(sT)}, {s(sKVB)}""")
            a(f"buffer_load_dwordx4 {v(vL16)}, {s(SWS,4)}, {s(sT)} offen sc1 lds", ("kv", be))
        def second(be=be):
            a(f"buffer_load_dwordx4 {v(vL16)}, {s(SWS,4)}, {s(sT)} offen offset:{K} sc1 lds", ("kv", be))
        vm[s0].append(first); vm[s1].append(second)
    FL, CK = 5, 7
    vm[0].append(I(f"buffer_store_dword v12, {v(vF0)}, {s(SWS,4)}, {s(sP0D)} offen sc1"))
    def flagload():
        a(f"s_mov_b32 {s(sT+1)}, {FP0}")
        a(f"buffer_load_dwordx4 {v(vFL,4)}, {v(vL16)}, {s(SWS,4)}, {s(sT+1)} offen sc1", "fl")
    vm[FL].append(flagload)
    def flagcheck():
        a.wait(vm=["fl"])
        a(f"""Lp0c:
        v_xor_b32 {v(vFL)}, {v(vFL)}, {v(vFL+1)}
        v_xor_b32 {v(vFL+1)}, {v(vFL+1)}, {v(vFL+2)}
        v_xor_b32 {v(vFL+2)}, {v(vFL+2)}, {v(vFL+3)}
        v_xor_b32 {v(vFL+3)}, {s(sG)}, {v(vFL+3)}
        v_or3_b32 {v(vFL)}, {v(vFL)}, {v(vFL+1)}, {v(vFL+2)}
        v_or_b32 {v(vFL)}, {v(vFL)}, {v(vFL+3)}
        v_cmp_ne_u32 vcc, 0, {v(vFL)}
        s_cbranch_vccnz Lp0r
        Lp0d:""")
        ool.append(f"""Lp0r:
        buffer_load_dwordx4 {v(vFL,4)}, {v(vL16)}, {s(SWS,4)}, {s(sT+1)} offen sc1
        s_waitcnt vmcnt(0)
        {spin_tail('Lp0c', 'Lp0d')}""")
    pf = list(range(32))
    for n in range(CK, 31):
        cnt = 1 if n < 20 else 2
        for _ in range(cnt):
            if pf:
                p = pf.pop(0)
                def ld(p=p):
                    a(f"buffer_load_dwordx4 {v(vPF+4*p,4)}, {v(vL16)}, {s(SWS,4)}, {s(sPF)} offen offset:{(p%4)*K} sc1", "pf")
                    if p % 4 == 3: a(f"s_add_u32 {s(sPF)}, {s(sPF)}, {4*K}")
                vm[n].append(ld)
    assert not pf
    S = [vS0, vS1]
    rd(vK0, 0, 0, ("k0", 0)); rd(vK1, 0, 1, ("k1", 0)); rd(vV0, 0, 2, ("v0", 0))
    a.wait(lg=["q", ("k0", 0)])
    a(mfma(S[0], vK0, vQ, None)); rd(vK0, 1, 0, ("k0", 1))
    a.wait(lg=[("k1", 0)])
    a(mfma(S[0], vK1, vQ + 4, S[0])); rd(vK1, 1, 1, ("k1", 1))
    for n in range(32):
        cur, nxt = S[n % 2], S[(n + 1) % 2]
        e = lambda lo, hi: [a(f"v_exp_f32 {v(cur+r)}, {v(cur+r)}") for r in range(lo, hi)]
        ops = list(vm[n])
        if n in BARS:
            a.wait(vm=[("kv", b) for b in range(1, BARS[n] + 1)])
            a("s_barrier")
            if n == 1: rd(vK0, 2, 0, ("k0", 2)); rd(vK1, 2, 1, ("k1", 2))
        if n == CK: flagcheck()
        if cfg.prio: a(f"s_setprio {1 - n % 2}") if cfg.prio == 1 else a(f"s_setprio {3 - n % 4}")
        e(0, 2)
        if n > 0:
            a.wait(lg=[("v1", n - 1)])
            a(smf(vO, vV1, nxt + 8, vIDX))
        rd(vV1, n, 3, ("v1", n))
        if n < 31: a.wait(lg=[("k0", n + 1), ("k1", n + 1)])
        e(2, 5)
        if n < 31:
            a(mfma(nxt, vK0, vQ, None))
            if 0 < n < 30: rd(vK0, n + 2, 0, ("k0", n + 2))
        if ops: ops.pop(0)()
        e(5, 8)
        if n < 31:
            a(mfma(nxt, vK1, vQ + 4, nxt))
            if 0 < n < 30: rd(vK1, n + 2, 1, ("k1", n + 2))
        a.wait(lg=[("v0", n), ("v1", n)])
        e(8, 12)
        a(smf(vO, vV0, cur, vIDX))
        if n < 31: rd(vV0, n + 1, 2, ("v0", n + 1))
        for o in ops: o()
        e(12, 16)
    a(smf(vO, vV1, S[1] + 8, vIDX))
    if cfg.prio: a("s_setprio 0")
    a(f"""s_lshl_b32 {s(sT)}, {s(sW4)}, 12
    s_add_u32 {s(sT)}, {s(sT)}, {L_RED}
    v_add_u32 v3, {s(sT)}, {v(vL16)}
    s_cmp_ge_u32 {s(sW)}, 4
    s_cbranch_scc1 LB_post""")

def post_A():
    stamp(7)
    XR = 88
    a(f"""v_and_b32 v4, 31, v0
    v_mul_u32_u24 v4, 896, v4
    v_lshrrev_b32 v5, 5, v0
    v_lshl_add_u32 v4, v5, 3, v4
    s_mul_i32 {s(sT+1)}, {s(sT3)}, {32*896}
    s_lshl_b32 {s(sT+2)}, {s(sFT)}, 6
    s_add_u32 {s(sT+1)}, {s(sT+1)}, {s(sT+2)}
    s_lshl2_add_u32 {s(sT+2)}, {s(sRB)}, {s(sW)}
    s_lshl_b32 {s(sT+3)}, {s(sT+2)}, 4
    s_add_u32 {s(sT+3)}, {s(sT+3)}, {s(sH)}
    s_lshl_b32 {s(sT+3)}, {s(sT+3)}, 11
    s_add_u32 {s(sT+3)}, {s(sT+3)}, {OF}
    s_lshl_b32 {s(sT+2)}, {s(sT+2)}, 5
    s_add_u32 {s(sT+2)}, {s(sT+2)}, {s(sH)}
    s_lshl_b32 {s(sT+2)}, {s(sT+2)}, 2
    s_add_u32 {s(sT+2)}, {s(sT+2)}, {FB}
    s_mov_b32 {s(sT+4)}, {f32(2.0**40)}
    s_mov_b32 {s(sT+5)}, {f32(2.0**-40)}
    s_barrier""")
    for g in range(4): a(f"ds_read_b128 {v(vS0+4*g,4)}, v3 offset:{g*K}", ("r", g))
    for g in (1, 0, 2, 3):
        a.wait(lg=[("r", g)])
        for t in (3, 0, 1, 2): a(f"v_add_f32 {v(vO+4*g+t)}, {v(vO+4*g+t)}, {v(vS0+4*g+t)}")
        if g == 1:
            a(f"""v_cmp_ngt_f32 vcc, {s(sT+4)}, {v(vO+7)}
            v_cmp_nlt_f32 {s(sCM,2)}, {s(sT+5)}, {v(vO+7)}""")
    a(f"s_or_b64 vcc, vcc, {s(sCM,2)}")
    a("s_branch Lfb" if cfg.force_fallback else "s_cbranch_scc1 Lfb")
    a(f"Lfbd:\nv_rcp_f32 v5, {v(vO+7)}\nv_mov_b32 v6, {s(sG)}")
    for u in range(2):
        for r in range(8): a(f"v_mul_f32 {v(vO+8*u+r)}, {v(vO+8*u+r)}, v5")
        for t in range(4): a(cvt(vS0 + 4 * u + t, vO + 8 * u + 2 * t, vO + 8 * u + 2 * t + 1))
        a(f"buffer_store_dwordx4 {v(vS0+4*u,4)}, {v(vL16)}, {s(SWS,4)}, {s(sT+3)} offen offset:{u*K} sc1")
    a(f"""s_waitcnt vmcnt(0)
    buffer_store_dword v6, {v(vF0)}, {s(SWS,4)}, {s(sT+2)} offen sc1""")
    stamp(8)
    for g in range(4): a(f"buffer_load_dwordx2 {v(XR+2*g,2)}, v4, {s(SX,4)}, {s(sT+1)} offen offset:{16*g}")
    fallback()
    a(f"""s_lshl_b32 {s(sT)}, {s(sT3)}, 7
    s_add_u32 {s(sT)}, {s(sT)}, {FB}
    v_and_b32 v4, 15, v0
    v_lshlrev_b32 v4, 2, v4
    s_lshl_b32 {s(sT+1)}, {s(sT3)}, 15
    s_add_u32 {s(sT+1)}, {s(sT+1)}, {OF}
    s_lshl_b32 {s(sT+2)}, {s(sW)}, 12
    s_add_u32 {s(sT+1)}, {s(sT+1)}, {s(sT+2)}
    s_add_u32 {s(sT+3)}, {s(sT+1)}, {16*K}
    s_add_u32 m0, {s(sT+2)}, {L_O}
    v_add_u32 v3, {L_O}, {v(vL16)}""")
    poll_g(sT, 4, 5)
    a.reset_q()
    stamp(9)
    for n in range(4): a(f"buffer_load_dwordx4 {v(vL16)}, {s(SWS,4)}, {s(sT+1)} offen offset:{n*K} sc1 lds")
    a(f"s_add_u32 m0, {s(sT+2)}, {L_O+16*K}\ns_nop 0")
    for n in range(4): a(f"buffer_load_dwordx4 {v(vL16)}, {s(SWS,4)}, {s(sT+3)} offen offset:{n*K} sc1 lds")
    for t in range(8):
        a(f"v_lshlrev_b32 {v(vO+2*t)}, 16, {v(XR+t)}\nv_and_b32 {v(vO+2*t+1)}, 0xffff0000, {v(XR+t)}")
    a(f"""s_or_b32 {s(sT)}, {s(sB)}, {s(sW)}
    s_cmp_eq_u32 {s(sT)}, 0
    s_cselect_b32 {s(sT)}, 0, {OOB}
    s_mul_i32 {s(sT+1)}, {s(sT3)}, 28
    s_lshl1_add_u32 {s(sT+1)}, {s(sFT)}, {s(sT+1)}
    s_lshl_b32 {s(sT+1)}, {s(sT+1)}, 10
    s_add_u32 {s(sT+1)}, {s(sT+1)}, {HF}
    s_lshl_b32 {s(sT+2)}, {s(sT3)}, 4
    s_add_u32 {s(sT+2)}, {s(sT+2)}, {s(sFT)}
    s_lshl_b32 {s(sT+2)}, {s(sT+2)}, 9
    s_add_u32 {s(sT+2)}, {s(sT+2)}, {ST}
    s_lshl_b32 {s(sT+3)}, {s(sT3)}, 5
    s_add_u32 {s(sT+3)}, {s(sT+3)}, {s(sFT)}
    s_lshl_b32 {s(sT+3)}, {s(sT+3)}, 2
    s_add_u32 {s(sT+3)}, {s(sT+3)}, {FC}
    v_lshlrev_b32 v7, 3, v0
    s_waitcnt vmcnt(0)
    s_barrier""")
    stamp(10)
    a(f"""buffer_store_dword v6, {v(vF0)}, {s(SWS,4)}, {s(sT)} offen sc1
    s_cmp_ge_u32 {s(sFT)}, 14
    s_cbranch_scc1 LA_p3d""")
    NB = 12; OB = 32
    def ord_(n): a(f"ds_read_b128 {v(OB+4*(n%NB),4)}, v3 offset:{n*K}", ("o", n))
    for n in range(NB - 1): ord_(n)
    for n in range(32):
        a.wait(lg=[("o", n)])
        a(mfma(vO, vPF + 4 * n, OB + 4 * (n % NB), vO))
        if n + NB - 1 < 32: ord_(n + NB - 1)
    for u in range(2):
        for t in range(4): a(cvt(OB + 4 * u + t, vO + 8 * u + 2 * t, vO + 8 * u + 2 * t + 1))
        a(f"buffer_store_dwordx4 {v(OB+4*u,4)}, {v(vL16)}, {s(SWS,4)}, {s(sT+1)} offen offset:{u*K}")
    a(f"v_add_f32 v8, {v(vO)}, {v(vO+1)}\nv_mul_f32 v9, {v(vO)}, {v(vO)}\nv_fmac_f32 v9, {v(vO+1)}, {v(vO+1)}")
    for r in range(2, 16): a(f"v_add_f32 v8, v8, {v(vO+r)}\nv_fmac_f32 v9, {v(vO+r)}, {v(vO+r)}")
    a(f"buffer_store_dwordx2 v[8:9], v7, {s(SWS,4)}, {s(sT+2)} offen")
    publish(sT + 3, 5)
    a("LA_p3d:")
    stamp(11)
    a(f"s_cmp_ge_u32 {s(sI)}, 28\ns_cbranch_scc1 LA_idle")
    HB, AC, WB, SS, AUG = 128, 16, 80, 96, 240
    a(f"""s_lshl_b32 {s(sT)}, {s(sT4)}, 7
    s_add_u32 {s(sT)}, {s(sT)}, {FC}
    v_min_u32 v4, 13, v0
    v_lshlrev_b32 v4, 2, v4
    s_mul_i32 {s(sT+1)}, {s(sT4)}, {28*K}
    s_add_u32 {s(sT+1)}, {s(sT+1)}, {HF}
    s_lshl_b32 {s(sT+2)}, {s(sT4)}, 13
    s_add_u32 {s(sT+2)}, {s(sT+2)}, {ST}
    s_mul_i32 {s(sT+3)}, {s(sT4)}, 14
    s_add_u32 {s(sT+3)}, {s(sT+3)}, {s(sSL)}
    s_lshl_b32 {s(sT+3)}, {s(sT+3)}, 13
    s_add_u32 {s(sT+3)}, {s(sT+3)}, {HH}
    s_lshl_b32 {s(sT+4)}, {s(sT4)}, 5
    s_add_u32 {s(sT+4)}, {s(sT+4)}, {s(sSL)}
    s_lshl_b32 {s(sT+4)}, {s(sT+4)}, 2
    s_add_u32 {s(sT+4)}, {s(sT+4)}, {FD}
    v_add_u32 v3, {56*K}, {v(vL16)}
    s_barrier""")
    wbufs = [80, 84, 88, 92, 124, 244, 248, 252]
    NB = len(wbufs)
    seq = [(t, q) for q in range(28) for t in range(3)] + [(t, 28) for t in range(3)] + [(3, q) for q in range(29)]
    nr = [0]
    def wread():
        if nr[0] >= len(seq): return
        t, q = seq[nr[0]]; b = wbufs[nr[0] % NB]; nr[0] += 1
        off = (t * 28 + q) * K if q < 28 else L_AUG1 + t * K
        if off >= 56 * K: a(f"ds_read_b128 {v(b,4)}, v3 offset:{off-56*K}", ("w", t, q))
        else: a(f"ds_read_b128 {v(b,4)}, {v(vL16)} offset:{off}", ("w", t, q))
    for _ in range(NB - 1): wread()
    poll(sT, 4, 5)
    a.reset_q(lg=a.lgq)
    stamp(12)
    for q in range(28):
        a(f"buffer_load_dwordx4 {v(HB+4*q,4)}, {v(vL16)}, {s(SWS,4)}, {s(sT+1)} offen offset:{(q%4)*K} sc1", ("h", q))
        if q % 4 == 3: a(f"s_add_u32 {s(sT+1)}, {s(sT+1)}, {4*K}")
    for t in range(14):
        a(f"buffer_load_dwordx2 {v(SS+2*t,2)}, v7, {s(SWS,4)}, {s(sT+2)} offen offset:{(t%8)*512} sc1", "st")
        if t == 7: a(f"s_add_u32 {s(sT+2)}, {s(sT+2)}, {4*K}")
    def it(n):
        t, q = seq[n]
        def f():
            a.wait(vm=[("h", q)] if q < 28 else None, lg=[("w", t, q)])
            a(mfma(AC + 16 * t, wbufs[n % NB], HB + 4 * q if q < 28 else AUG, AC + 16 * t if q else None))
            wread()
        return f
    stats = [lambda: a.wait(vm=["st"]), I("s_barrier")]
    for t in range(1, 14):
        stats += [I(f"v_add_f32 {v(SS)}, {v(SS)}, {v(SS+2*t)}"), I(f"v_add_f32 {v(SS+1)}, {v(SS+1)}, {v(SS+2*t+1)}")]
    stats += [I(x) for x in f"""v_mov_b32 v8, {v(SS)}
    v_mov_b32 v9, {v(SS+1)}
    v_mov_b32 {v(AUG+2)}, 0
    v_mov_b32 {v(AUG+3)}, 0
    v_permlane32_swap_b32 v8, {v(SS)}
    v_permlane32_swap_b32 v9, {v(SS+1)}
    v_add_f32 v8, v8, {v(SS)}
    v_add_f32 v9, v9, {v(SS+1)}
    v_mul_f32 v8, {f32(-1.0/448)}, v8
    v_mul_f32 v9, {f32(1.0/448)}, v9
    v_fma_f32 v9, -v8, v8, v9
    v_max_f32 v9, 0, v9
    v_add_f32 v9, {f32(1e-5)}, v9
    v_sqrt_f32 v10, v9
    v_rcp_f32 v9, v9
    {cvt(AUG, 8, 8)}
    v_and_b32 v11, 0xffff0000, {v(AUG)}
    v_sub_f32 v8, v8, v11
    {cvt(11, 10, 10)}
    v_and_b32 v11, 0xffff0000, v11
    v_sub_f32 v11, v10, v11
    v_cndmask_b32 v10, v10, v11, {s(sUP,2)}
    {cvt(AUG+1, 8, 10)}
    v_and_b32 v10, 31, v0
    s_lshl_b32 {s(sT)}, {s(sW)}, 7
    s_add_u32 {s(sT)}, {s(sT)}, {L_R2}
    v_lshl_add_u32 v10, v10, 2, {s(sT)}
    ds_write_b32 v10, v9""".split("\n")]
    interleave([it(n) for n in range(84)], stats, 66, 4)
    def ep(t):
        o = []
        for u in range(2):
            for r in range(8 * u, 8 * u + 8):
                o += [I(f"v_max_f32 {v(AC+16*t+r)}, 0, {v(AC+16*t+r)}"), I(f"v_mul_f32 {v(AC+16*t+r)}, {v(AC+16*t+r)}, {v(AC+16*t+r)}")]
            d = SS + 8 * (t % 2) + 4 * u
            o += [I(cvt(d + k, AC + 16 * t + 8 * u + 2 * k, AC + 16 * t + 8 * u + 2 * k + 1)) for k in range(4)]
            o += [I(f"buffer_store_dwordx4 {v(d,4)}, {v(vL16)}, {s(SWS,4)}, {s(sT+3)} offen offset:{(2*(t%2)+u)*K}")]
        if t == 1: o += [I(f"s_add_u32 {s(sT+3)}, {s(sT+3)}, {4*K}")]
        return o
    interleave([it(n) for n in range(84, len(seq))], ep(0) + ep(1) + ep(2), 4, 5)
    stamp(13)
    a(f"""v_lshrrev_b32 v8, 3, v0
    s_lshl_b32 {s(sT)}, {s(sW)}, 3
    v_add_u32 v8, {s(sT)}, v8
    v_and_b32 v9, 7, v0
    v_lshrrev_b32 v10, 1, v9
    v_lshlrev_b32 v10, 10, v10
    v_lshl_add_u32 v10, v8, 4, v10
    v_and_b32 v11, 1, v9
    v_lshl_add_u32 v10, v11, 3, v10""")
    for f in ep(3): f()
    publish(sT + 4, 5)
    a("s_waitcnt lgkmcnt(0)\ns_barrier")
    stamp(14)
    RES, B2 = 16, 24
    srd(SA, pB2, 896)
    srd(SB_, pOUT, 2048 * 896)
    a(f"""s_mul_i32 {s(sT)}, {s(sT5)}, 7
    s_add_u32 {s(sT)}, {s(sT)}, {s(sC7)}
    s_lshl_b32 {s(sT)}, {s(sT)}, 12
    s_add_u32 {s(sT)}, {s(sT)}, {HF}
    s_add_u32 {s(sT+1)}, {s(sT)}, {28*K}
    s_lshl_b32 {s(sT+2)}, {s(sC7)}, 7
    v_lshlrev_b32 v11, 4, v9
    buffer_load_dwordx2 {v(RES,2)}, v10, {s(SWS,4)}, {s(sT)} offen sc1
    buffer_load_dwordx2 {v(RES+2,2)}, v10, {s(SWS,4)}, {s(sT)} offen offset:512 sc1
    buffer_load_dwordx2 {v(RES+4,2)}, v10, {s(SWS,4)}, {s(sT+1)} offen sc1
    buffer_load_dwordx2 {v(RES+6,2)}, v10, {s(SWS,4)}, {s(sT+1)} offen offset:512 sc1
    buffer_load_dwordx4 {v(B2,4)}, v11, {s(SA,4)}, {s(sT+2)} offen
    s_lshl_b32 {s(sT)}, {s(sT5)}, 7
    s_add_u32 {s(sT)}, {s(sT)}, {FD}
    v_and_b32 v4, 31, v0
    v_min_u32 v4, 13, v4
    v_and_b32 v5, 32, v0
    v_add_lshl_u32 v4, v4, v5, 2
    s_mul_i32 {s(sT+1)}, {s(sT5)}, {112*K}
    s_lshr_b32 {s(sT+3)}, {s(sW)}, 1
    s_mul_i32 {s(sT+3)}, {s(sT+3)}, {56*K}
    s_add_u32 {s(sT+1)}, {s(sT+1)}, {s(sT+3)}
    s_and_b32 {s(sT+3)}, {s(sW)}, 1
    s_lshl_b32 {s(sT+3)}, {s(sT+3)}, 12
    s_add_u32 {s(sT+1)}, {s(sT+1)}, {s(sT+3)}
    s_add_u32 {s(sT+1)}, {s(sT+1)}, {HH}
    s_lshl_b32 {s(sM0)}, {s(sW)}, 12""")
    poll(sT, 4, 5)
    a.reset_q()
    stamp(16)
    def hdma(c):
        a(f"s_add_u32 m0, {s(sM0)}, {(c%7)*16*K}")
        if c: a(f"s_add_u32 {s(sT+1)}, {s(sT+1)}, {8*K if c != 7 else (112-48)*K}")
        else: a("s_nop 0")
        for n in range(4): a(f"buffer_load_dwordx4 {v(vL16)}, {s(SWS,4)}, {s(sT+1)} offen offset:{n*K} sc1 lds", ("hh", c))
    for c in range(7): hdma(c)
    BF = 32
    a(f"""v_mul_u32_u24 v3, {PROW}, v8
    v_lshl_add_u32 v3, v9, 5, v3
    v_add_u32 v3, {L_PART}, v3
    s_and_b32 {s(sT)}, {s(sT5)}, 3
    s_lshl_b32 {s(sT)}, {s(sT)}, 7
    s_add_u32 {s(sT)}, {s(sT)}, {L_R2}
    v_lshl_add_u32 v4, v8, 2, {s(sT)}
    ds_read_b32 v12, v4
    ds_read_b32 v13, v4 offset:128
    v_mul_u32_u24 v5, 896, v8
    v_add_u32 v5, v5, v11
    s_mul_i32 {s(sT)}, {s(sT5)}, {32*896}
    s_add_u32 {s(sT+2)}, {s(sT+2)}, {s(sT)}""")
    for tt in range(2):
        for t in range(4):
            a(f"""v_lshlrev_b32 v6, 16, {v(B2+t)}
            v_and_b32 v7, 0xffff0000, {v(B2+t)}
            v_lshlrev_b32 {v(BF+8*tt+2*t)}, 16, {v(RES+4*tt+t)}
            v_and_b32 {v(BF+8*tt+2*t+1)}, 0xffff0000, {v(RES+4*tt+t)}
            v_add_f32 {v(BF+8*tt+2*t)}, {v(BF+8*tt+2*t)}, v6
            v_add_f32 {v(BF+8*tt+2*t+1)}, {v(BF+8*tt+2*t+1)}, v7""")
    def final(tt):
        P = 48
        for kh in range(2):
            for z in range(2):
                a(f"ds_read_b128 {v(P+8*kh+4*z,4)}, v3 offset:{(2*tt+kh)*32*PROW+16*z}")
        a("s_waitcnt lgkmcnt(0)")
        for r in range(8): a(f"v_add_f32 {v(P+r)}, {v(P+r)}, {v(P+8+r)}")
        for r in range(8): a(f"v_fma_f32 {v(P+r)}, {v(P+r)}, {v(12+tt)}, {v(BF+8*tt+r)}")
        for t in range(4): a(cvt(P + 16 + 4 * tt + t, P + 2 * t, P + 2 * t + 1))
        a(f"buffer_store_dwordx4 {v(P+16+4*tt,4)}, v5, {s(SB_,4)}, {s(sT+2)} offen")
        if tt == 0: a(f"s_add_u32 {s(sT+2)}, {s(sT+2)}, {32*896}")
    for c in range(14):
        a.wait(vm=[("hh", c)])
        a("s_barrier")
        if c >= 2 and c + 5 < 14: hdma(c + 5)
        if c == 9: final(0)
    stamp(17)
    a("s_barrier")
    final(1)
    stamp(18)
    stamp_flush(3)
    a("s_endpgm")
    a("LA_idle:")
    if cfg.wb:
        a(f"""s_cmp_lg_u32 {s(sI)}, 28
        s_cbranch_scc1 LA_idle2
        s_cmp_lg_u32 {s(sW)}, 0
        s_cbranch_scc1 LA_idle2
        buffer_wbl2 sc1
        s_lshl_b32 {s(sT)}, {s(sJ)}, 10
        s_add_u32 {s(sT)}, {s(sT)}, {FD}
        v_and_b32 v4, 7, v0
        v_lshrrev_b32 v5, 3, v0
        v_lshlrev_b32 v5, 5, v5
        v_add_lshl_u32 v4, v4, v5, 2""")
        poll(sT, 4, 5)
        a(f"s_add_u32 {s(sT)}, {s(sT)}, 24")
        poll(sT, 4, 5)
        a("buffer_wbl2 sc1\nLA_idle2:")
    stamp_flush(3)
    a("s_endpgm")

def fallback():
    mx = 8
    def tile_loads(kv):
        o = [f"buffer_load_dwordx4 {v(vK0+4*t,4)}, {v(vL16)}, {s(SWS,4)}, {s(sT+6)} offen offset:{t*K} sc1" for t in range(kv)]
        return "\n".join(o)
    t = f"""Lfb:
    s_lshl_b32 {s(sT+6)}, {s(sH)}, 18
    s_add_u32 {s(sT+6)}, {s(sT+6)}, {KV}
    s_mov_b32 {s(sT+7)}, 64
    v_cndmask_b32 {v(vQ+6)}, {v(vQ+6)}, 0, {s(sUP,2)}
    v_mov_b32 {v(mx)}, 0xff800000
    Lfb1:
    {tile_loads(2)}
    s_waitcnt vmcnt(0)
    {mfma(vS0, vK0, vQ, None)}
    {mfma(vS0, vK1, vQ+4, vS0)}
    s_add_u32 {s(sT+6)}, {s(sT+6)}, {4*K}
    s_sub_u32 {s(sT+7)}, {s(sT+7)}, 1
    s_cmp_lg_u32 {s(sT+7)}, 0
    """
    for r in range(0, 16, 2): t += f"v_max3_f32 {v(mx)}, {v(mx)}, {v(vS0+r)}, {v(vS0+r+1)}\n"
    t += f"""s_cbranch_scc1 Lfb1
    v_mov_b32 v9, {v(mx)}
    v_permlane32_swap_b32 v9, {v(mx)}
    v_max_f32 {v(mx)}, v9, {v(mx)}
    v_sub_f32 {v(mx)}, 0, {v(mx)}
    v_and_b32 v9, 0xffff0000, {v(mx)}
    v_sub_f32 {v(mx)}, {v(mx)}, v9
    v_and_b32 v10, 0xffff0000, {v(mx)}
    v_sub_f32 {v(mx)}, {v(mx)}, v10
    v_mov_b32 v11, 0
    {cvt(9, 9, 10)}
    {cvt(10, mx, 11)}
    v_cndmask_b32 {v(vQ+6)}, {v(vQ+6)}, v9, {s(sUP,2)}
    v_cndmask_b32 {v(vQ+7)}, {v(vQ+7)}, v10, {s(sUP,2)}
    s_sub_u32 {s(sT+6)}, {s(sT+6)}, {256*K}
    s_mov_b32 {s(sT+7)}, 64
    """
    for r in range(16): t += f"v_mov_b32 {v(vO+r)}, 0\n"
    t += f"""Lfb2:
    {tile_loads(4)}
    s_waitcnt vmcnt(0)
    {mfma(vS0, vK0, vQ, None)}
    {mfma(vS0, vK1, vQ+4, vS0)}
    s_add_u32 {s(sT+6)}, {s(sT+6)}, {4*K}
    s_sub_u32 {s(sT+7)}, {s(sT+7)}, 1
    s_cmp_lg_u32 {s(sT+7)}, 0
    """
    for r in range(16): t += f"v_exp_f32 {v(vS0+r)}, {v(vS0+r)}\n"
    t += f"""{smf(vO, vV0, vS0, vIDX)}
    {smf(vO, vV1, vS0+8, vIDX)}
    s_nop 7
    s_cbranch_scc1 Lfb2
    s_nop 7
    s_branch Lfbd"""
    ool.append(t)

def post_B():
    a("LB_post:")
    a.reset_q(vm=["pf"])
    stamp(7)
    for g in range(4): a(f"ds_write_b128 v3, {v(vO+4*g,4)} offset:{g*K}")
    a(f"""s_lshl2_add_u32 {s(sT)}, {s(sSL)}, {s(sW4)}
    s_mul_i32 {s(sT+1)}, {s(sT)}, {28*K}
    s_add_u32 {s(sT+1)}, {s(sT+1)}, {W1T}
    s_mul_i32 {s(sM0)}, {s(sW4)}, {28*K}
    s_lshl_b32 {s(sT+2)}, {s(sT)}, 6
    s_cmp_ge_u32 {s(sI)}, 28
    s_waitcnt lgkmcnt(0)
    s_barrier
    s_cbranch_scc1 LB_idle""")
    srd(SA, pB1, 3584)
    for c in range(7):
        a(f"s_add_u32 m0, {s(sM0)}, {c*4*K}")
        if c: a(f"s_add_u32 {s(sT+1)}, {s(sT+1)}, {4*K}")
        else: a("s_nop 0")
        for n in range(4): a(f"buffer_load_dwordx4 {v(vL16)}, {s(SWS,4)}, {s(sT+1)} offen offset:{n*K} sc1 lds", ("w1", c))
    a(f"""v_and_b32 v4, 31, v0
    v_lshlrev_b32 v4, 1, v4""")
    a(f"buffer_load_ushort v5, v4, {s(SA,4)}, {s(sT+2)} offen", "b1")
    a(f"""v_add_u32 v3, {s(sM0)}, {v(vL16)}
    v_mov_b32 v6, 0
    v_mov_b32 v7, 0""")
    for c in range(7):
        a.wait(vm=[("w1", c)])
        for n in range(4): a(f"ds_read_b128 {v(32+16*(c%2)+4*n,4)}, v3 offset:{(4*c+n)*K}", ("c", c))
        if c:
            for r in range(16): a(f"v_dot2c_f32_bf16 {v(6+r%2)}, {s(sONE)}, {v(32+16*((c-1)%2)+r)}")
        a.wait(lg=[("c", c)])
    for r in range(16): a(f"v_dot2c_f32_bf16 {v(6+r%2)}, {s(sONE)}, {v(32+r)}")
    a.wait(vm=["b1"])
    a(f"""v_lshlrev_b32 v5, 16, v5
    v_mov_b32 v10, 0
    v_add_f32 v6, v6, v7
    {cvt(7, 6, 6)}
    v_and_b32 v7, 0xffff0000, v7
    v_sub_f32 v7, v6, v7
    {cvt(8, 6, 7)}
    {cvt(9, 6, 5)}
    v_mov_b32 v11, 0
    s_lshl_b32 {s(sT)}, {s(sW4)}, 10
    s_add_u32 {s(sT)}, {s(sT)}, {L_AUG1}
    v_add_u32 v4, {s(sT)}, {v(vL16)}""")
    stamp(8)
    a(f"""s_barrier
    ds_write_b128 v4, v[8:11]
    s_waitcnt lgkmcnt(0)
    s_barrier
    s_barrier""")
    stamp(9)
    for p in range(24):
        a(f"buffer_load_dwordx4 {v(32+4*p,4)}, {v(vL16)}, {s(SWS,4)}, {s(sPF)} offen offset:{(p%4)*K} sc1", "pf")
        if p % 4 == 3: a(f"s_add_u32 {s(sPF)}, {s(sPF)}, {4*K}")
    AC, HBUF, NB = 16, [4, 8, 12] if not cfg.stamps else [4, 8], 3 if not cfg.stamps else 2
    a(f"""s_lshr_b32 {s(sT)}, {s(sW4)}, 1
    s_lshl_b32 {s(sT+1)}, {s(sT)}, 13
    v_and_b32 v4, 31, v0
    v_mul_u32_u24 v4, {PROW}, v4
    v_lshrrev_b32 v5, 5, v0
    v_lshl_add_u32 v4, v5, 4, v4
    s_mul_i32 {s(sT)}, {s(sT)}, {32*PROW}
    s_and_b32 {s(sT+2)}, {s(sW4)}, 1
    s_lshl_b32 {s(sT+2)}, {s(sT+2)}, 7
    s_add_u32 {s(sT)}, {s(sT)}, {s(sT+2)}
    s_add_u32 {s(sT)}, {s(sT)}, {L_PART}
    v_add_u32 v0, {s(sT)}, v4
    v_add_u32 v2, {s(sT+1)}, {v(vL16)}
    v_add_u32 v3, {64*K}, v2
    s_waitcnt vmcnt(0)""")
    stamp(10)
    a("s_barrier")
    def wreg(q): return vPF + 4 * q if q < 32 else 32 + 4 * (q - 32)
    nr = [0]
    def hread():
        n = nr[0]
        if n >= 112: return
        nr[0] += 1
        q = n % 56
        if q % 8 == 0:
            if n == 64: a.wait(lg=["pw"])
            a("s_barrier")
        off = (q // 8) * 16 * K + (q % 8) * K
        a(f"ds_read_b128 {v(HBUF[n%NB],4)}, {v(2 + off // (64*K))} offset:{off % (64*K)}", ("h", n))
    for _ in range(NB - 1): hread()
    for n in range(112):
        q = n % 56
        hread()
        a.wait(lg=[("h", n)] + (["pw"] if n == 56 else []))
        a(mfma(AC, wreg(q), HBUF[n % NB], AC if q else None))
        if q == 55:
            for g in range(4): a(f"ds_write_b128 v0, {v(AC+4*g,4)} offset:{(n//56)*64*PROW+32*g}", "pw")
    a("s_waitcnt lgkmcnt(0)")
    stamp(11)
    a("s_barrier")
    stamp_flush(3)
    a("s_endpgm")
    a("LB_idle:\ns_barrier")
    stamp_flush(3)
    a("Lend:\ns_endpgm")

prologue()
p1_A()
p1_B()
attention()
post_A()
post_B()
body = a.lines + [l.strip() for blk in ool for l in blk.split("\n") if l.strip()]
body, npad = pad_all(body, verbose="-v" in sys.argv[1])
print("instructions:", len(body), "pads:", npad, file=sys.stderr)

head = open("cdna_kernels/%s.s.ref" % NAME).read().split("; Override launch")[0]
out = head + f"; @launch grid=(256,1,1) block=(512,1,1) lds={LDS_SIZE}\n"
out += f""".amdgcn_target "amdgcn-amd-amdhsa--gfx950"
.text
.globl {KN}
.p2align 8
.type {KN},@function
{KN}:
"""
out += "\n".join(("" if l.endswith(":") else "    ") + l for l in body)
out += f"""
Lcode_end:
    s_endpgm
.section .rodata,"a"
.p2align 6
.amdhsa_kernel {KN}
  .amdhsa_next_free_vgpr 256
  .amdhsa_next_free_sgpr 102
  .amdhsa_accum_offset 256
  .amdhsa_group_segment_fixed_size 0
  .amdhsa_kernarg_size 88
  .amdhsa_user_sgpr_count 2
  .amdhsa_user_sgpr_kernarg_segment_ptr 1
  .amdhsa_system_sgpr_workgroup_id_x 1
.end_amdhsa_kernel
"""
open(sys.argv[1].replace("-v", ""), "w").write(out)
```

```python
import re

def R(kind, lo, n=1):
    return f"{kind}{lo}" if n == 1 else f"{kind}[{lo}:{lo+n-1}]"
def v(lo, n=1): return R("v", lo, n)
def s(lo, n=1): return R("s", lo, n)

_reg = re.compile(r"^(-?)(\|?)(abs\()?([vsa])(?:(\d+)|\[(\d+):(\d+)\])\)?\|?$")
def regs_of(tok):
    tok = tok.strip()
    if tok in ("vcc", "exec"): return {tok}
    if tok in ("vcc_lo", "vcc_hi"): return {"vcc"}
    if tok in ("exec_lo", "exec_hi"): return {"exec"}
    if tok == "m0": return {"m0"}
    m = _reg.match(tok)
    if not m: return set()
    k = m.group(4)
    if m.group(5) is not None: return {(k, int(m.group(5)))}
    return {(k, i) for i in range(int(m.group(6)), int(m.group(7)) + 1)}

TRANS = ("v_exp_", "v_log_", "v_rcp_", "v_rsq_", "v_sqrt_", "v_sin_", "v_cos_")

class Ins:
    __slots__ = ("text", "op", "cls", "rd", "wr", "A", "B", "C", "passes", "target", "label", "states", "data", "sel")
    def __init__(self, text):
        self.text = text
        self.label = None; self.target = None
        self.rd = set(); self.wr = set(); self.A = self.B = self.C = set(); self.data = set(); self.sel = set()
        self.passes = 0; self.states = 1
        t = text.split(";")[0].strip()
        if not t: self.op = ""; self.cls = "none"; self.states = 0; return
        if t.endswith(":"): self.op = ""; self.cls = "label"; self.label = t[:-1]; self.states = 0; return
        if t.startswith("."): self.op = t; self.cls = "dir"; self.states = 0; return
        parts = t.split(None, 1)
        op = self.op = parts[0]
        rest = parts[1] if len(parts) > 1 else ""
        ops = [x.strip() for x in rest.split(",")] if rest else []
        mods = ""
        if ops:
            last = ops[-1].split()
            ops[-1] = last[0]; mods = " ".join(last[1:])
        rs = [regs_of(x) for x in ops]
        U = lambda l: set().union(*l) if l else set()
        if op.startswith("v_mfma") or op.startswith("v_smfmac"):
            self.cls = "mfma"
            self.passes = 8 if "32x32" in op else 4
            self.wr = rs[0]; self.A = rs[1]; self.B = rs[2]
            if op.startswith("v_smfmac"):
                self.C = rs[0]; self.B = rs[2] | rs[3]
            else: self.C = rs[3]
            self.rd = self.A | self.B | self.C
        elif op.startswith("v_"):
            self.cls = "valu"
            if op.startswith("v_permlane") and "swap" in op:
                self.wr = rs[0] | rs[1]; self.rd = rs[0] | rs[1]
            elif op.startswith(("v_add_co", "v_sub_co", "v_addc_co", "v_subb_co", "v_subrev_co")):
                self.wr = rs[0] | rs[1]; self.rd = U(rs[2:])
            elif op == "v_nop": pass
            else:
                self.wr = rs[0]; self.rd = U(rs[1:])
                if op.startswith(("v_fmac", "v_dot2c", "v_writelane")) or "UNUSED_PRESERVE" in mods: self.rd = self.rd | rs[0]
                if op.startswith("v_cmpx"): self.wr = self.wr | {"exec"}
                if op.startswith(("v_readlane", "v_writelane")): self.sel = rs[2]
        elif op.startswith("ds_"):
            self.cls = "ds"
            if op.startswith(("ds_read", "ds_bpermute", "ds_permute", "ds_swizzle")): self.wr = rs[0]; self.rd = U(rs[1:])
            else: self.rd = U(rs)
        elif op.startswith(("buffer_", "global_")):
            self.cls = "vmem"
            if op in ("buffer_wbl2", "buffer_inv"): pass
            elif "load" in op:
                if re.search(r"\blds\b", mods) or "load_lds" in op: self.rd = U(rs) | {"m0"}
                else: self.wr = rs[0]; self.rd = U(rs[1:])
            else:
                self.rd = U(rs)
                if op.endswith(("x3", "x4")): self.data = rs[0] if op.startswith("buffer_") else rs[1]
        elif op.startswith("s_"):
            self.cls = "salu"
            if op == "s_nop": self.states = int(ops[0], 0) + 1
            elif op.startswith(("s_branch", "s_cbranch")): self.cls = "branch"; self.target = ops[0]
            elif op == "s_endpgm": self.cls = "end"
            elif op.startswith(("s_cmp", "s_bitcmp", "s_waitcnt", "s_barrier", "s_setprio", "s_sleep", "s_setreg")): self.rd = U(rs)
            elif op.startswith(("s_load", "s_memtime", "s_memrealtime")): self.cls = "smem"; self.wr = rs[0]; self.rd = U(rs[1:])
            else:
                self.wr = rs[0]; self.rd = U(rs[1:])
                if "saveexec" in op: self.wr = self.wr | {"exec"}
        else:
            raise ValueError("unknown instr " + text)
    @property
    def trans(self): return self.op.startswith(TRANS)
    @property
    def dot(self): return self.op.startswith("v_dot")

def isv(x): return isinstance(x, tuple) and x[0] in "va"
def iss(x): return x == "vcc" or (isinstance(x, tuple) and x[0] == "s")

def need(p, c):
    n = 0
    if p.cls == "valu":
        wv = {x for x in p.wr if isv(x)}; wsg = {x for x in p.wr if iss(x)}
        if c.cls == "mfma" and wv & c.rd: n = max(n, 3 if p.dot else 2)
        if c.cls == "valu":
            if p.trans and not c.trans and wv & c.rd: n = max(n, 1)
            if p.trans and c.trans and wv & c.rd: n = max(n, 1)
            if c.op.startswith(("v_readlane", "v_readfirstlane")) and wv & c.rd: n = max(n, 1)
            if c.op.startswith("v_permlane") and wv & c.rd: n = max(n, 2)
            if "dpp" in c.op and wv & c.rd: n = max(n, 2)
            if wsg & c.rd: n = max(n, 2)
            if wsg & c.sel: n = max(n, 4)
            if "sdwa" in p.op and wv & (c.rd | c.wr): n = max(n, 1)
            if p.dot and wv & (c.rd | c.wr):
                same = c.op == p.op and (wv & c.wr) and not (wv & (c.rd - c.wr))
                if not same: n = max(n, 3)
            if "exec" in p.wr: n = max(n, 5)
        if c.cls in ("vmem", "ds") and p.dot and wv & c.rd: n = max(n, 3)
        if c.cls in ("vmem", "ds") and p.trans and wv & c.rd: n = max(n, 1)
        if c.cls == "vmem" and wsg & c.rd: n = max(n, 5)
        if c.cls == "mfma" and "exec" in p.wr: n = max(n, 4)
        if c.cls in ("salu", "smem") and wsg & c.rd: n = max(n, 1)
    elif p.cls == "mfma":
        big = p.passes == 8
        if c.cls == "mfma":
            if p.wr & (c.A | c.B): n = max(n, 12 if big else 8)
            if p.wr & c.C:
                exact = c.C == p.wr and c.passes == p.passes
                if not exact: n = max(n, 10 if big else 6)
            elif p.wr & c.wr and not (c.wr == p.wr and c.passes == p.passes): n = max(n, 10 if big else 6)
        elif c.cls in ("valu", "vmem", "ds"):
            if p.wr & (c.rd | c.wr): n = max(n, 12 if big else 8)
            if c.cls == "valu" and p.C & c.wr: n = max(n, 7 if big else 3)
    elif p.cls == "vmem":
        if p.data and c.cls in ("valu", "mfma") and p.data & c.wr: n = max(n, 2)
        elif p.data and p.data & c.wr: n = max(n, 1)
    elif p.cls == "salu":
        if "m0" in p.wr and c.cls == "vmem" and "m0" in c.rd: n = max(n, 1)
    return n

def pad_all(lines, verbose=False):
    ins = [Ins(l) for l in lines]
    i = 0; count = 0
    def index():
        labels = {x.label: k for k, x in enumerate(ins) if x.cls == "label"}
        srcs = {}
        for k, x in enumerate(ins):
            if x.cls == "branch": srcs.setdefault(labels[x.target], []).append(k)
        return srcs
    srcs = index()
    while i < len(ins):
        c = ins[i]
        if c.states == 0 or c.op == "s_nop": i += 1; continue
        worst = 0; why = None
        stack = [(i - 1, 0, None)]; seen = {}
        while stack:
            k, d, m = stack.pop()
            if k < 0 or d >= 12: continue
            if seen.get((k, m is None), 99) <= d: continue
            seen[(k, m is None)] = d
            p = ins[k]
            if p.cls == "label":
                for b in srcs.get(k, []): stack.append((b - 1, d + 1, None))
                stack.append((k - 1, d, None)); continue
            if p.cls == "end" or p.op in ("s_branch", "s_setpc_b64"): continue
            if p.cls == "mfma":
                if m is not None: d = max(d, m + p.passes - 1)
                m = d
            r = need(p, c) if p.states else 0
            if r - d > worst: worst = r - d; why = p
            stack.append((k - 1, d + p.states, m))
        if worst > 0:
            if verbose: print(f"pad {worst}: [{why.text.strip()}] -> [{c.text.strip()}]")
            ins.insert(i, Ins(f"s_nop {worst-1}")); count += 1
            srcs = index()
            i += 2
        else: i += 1
    return [x.text for x in ins], count

class Asm:
    def __init__(self):
        self.lines = []
        self.vmq = []
        self.lgq = []
        self.uid = 0
        self.ool = []
    def __call__(self, text, tag=None):
        for t in text.split("\n"):
            t = t.strip()
            if not t: continue
            self.lines.append(t)
            op = t.split()[0]
            if op.startswith(("buffer_", "global_")): self.vmq.append(tag)
            elif op.startswith("ds_"): self.lgq.append(tag)
            elif op == "s_waitcnt":
                m = re.search(r"vmcnt\((\d+)\)", t)
                if m: n = int(m.group(1)); self.vmq = self.vmq[len(self.vmq)-n:] if n < len(self.vmq) and n else ([] if n == 0 else self.vmq)
                m = re.search(r"lgkmcnt\((\d+)\)", t)
                if m: n = int(m.group(1)); self.lgq = self.lgq[len(self.lgq)-n:] if n < len(self.lgq) and n else ([] if n == 0 else self.lgq)
    def _cnt(self, q, tags):
        idx = [i for i, t in enumerate(q) if t in tags]
        if not idx: return None
        return len(q) - 1 - max(idx)
    def wait(self, vm=None, lg=None):
        parts = []
        if vm is not None:
            assert isinstance(vm, list)
            n = self._cnt(self.vmq, vm)
            if n is not None: parts.append(f"vmcnt({min(n,63)})")
        if lg is not None:
            assert isinstance(lg, list)
            n = self._cnt(self.lgq, lg)
            if n is not None: parts.append(f"lgkmcnt({min(n,15)})")
        if parts: self("s_waitcnt " + " ".join(parts))
    def label(self, base="L"):
        self.uid += 1
        return f"{base}_{self.uid}"
    def reset_q(self, vm=None, lg=None):
        self.vmq = list(vm or []); self.lgq = list(lg or [])
```

```python
import sys, struct, math
from asmlib import Asm, v, s, pad_all

NAME = "sequential_preLN__mha_block__dense_activation_squared_relu__prompt"
KN = NAME + "_kernel"

class Cfg:
    stamps = False
    force_global = False
    force_fallback = False
    permute = 0
    n1 = 96
    c0j, c0i = 1, 4
    wb = 0
    xq = 4
    ne = 2
    touch = 1
    w2win = 3
    w2n0, w2n3, w2n1 = 14, 8, 10
    hwin = 9
    xw = 3
    kvtouch = 0
    hhtouch = 0
    p4b = 48
    spoll = 0
    p0ck = 8
    kvs, hs, hhs, wps, outs = 1, 0, 1, 0, 0
    p5d = 2
cfg = Cfg()
for arg in sys.argv[2:]:
    k, val = arg.split("=")
    setattr(cfg, k, int(val))

def SC1(x): return " sc1" if x else ""
def f32(x): return "0x%08x" % struct.unpack("<I", struct.pack("<f", x))[0]

EPOCH = 0
FW, FA, FC, FD = 0x1000, 0x2000, 0x4000, 0x6000
GOFF = 0x10000
FP0, FB = 0x8000, 0xA000
DBG = 0x40000
WP = 0x100000
WOT = 0x250000
W1T = 0x2C0000
W2T = 0x448000
ST = 0x5D0000
HF = 0x650000
OF = 0x810000
KV = 0xA10000
HH = 0xE10000
WS_SIZE = 0x1510000
OOB = 0x40000000

K = 1024
L_XR = 0
L_P0 = 48 * K
L_QX = 32 * K
L_MODE = 151 * K
L_W = 64 * K
L_AUG = 148 * K
L_RS = 152 * K
L_RED = 144 * K
L_O = 112 * K
L_AUG1 = 152 * K
L_R2 = 156 * K
L_PART = 112 * K
PROW = 272
LDS_SIZE = 160 * K

sB, sW, sJ, sI, sH, sRB = 2, 3, 4, 5, 6, 7
SX, SWS, SA, SB_ = 8, 12, 16, 20
sG, sL, sMODE, sSPIN = 24, 25, 26, 27
sT = 28
pX, pWQKV, pWO, pW1, pB1, pW2, pB2, pOUT = 36, 38, 40, 44, 46, 48, 50, 52
sCH = 56
sUP = 64
sPADV = 66
sW4 = 68
sKVB = 69
sPF = 70
sM0 = 71
sT3, sFT, sT4, sSL, sT5, sC7 = 72, 73, 74, 75, 76, 77
sP0D, sP0DS, sP0M, sP0ST = 78, 79, 80, 81
sCM = 82
sTS = 84
SC = 88
sONE = 92

a = Asm()
ool = []

def srd(d, p, nbytes):
    a(f"s_mov_b32 {s(d)}, {s(p)}\ns_mov_b32 {s(d+1)}, {s(p+1)}\ns_mov_b32 {s(d+2)}, {nbytes}\ns_mov_b32 {s(d+3)}, 0x20000")

def mfma(d, A, B, C):
    c = "0" if C is None else v(C, 16)
    return f"v_mfma_f32_32x32x16_bf16 {v(d,16)}, {v(A,4)}, {v(B,4)}, {c}"
def smf(d, A, B, idx): return f"v_smfmac_f32_32x32x32_bf16 {v(d,16)}, {v(A,4)}, {v(B,8)}, {v(idx)}"
def cvt(d, x, y): return f"v_cvt_pk_bf16_f32 {v(d)}, {v(x)}, {v(y)}"

vSTAMP = [15]
sSI = 93
def stamp(n):
    if not cfg.stamps: return
    a.lines += [f"s_mov_b32 {s(sSI+1)}, m0", f"s_mov_b32 m0, {s(sSI)}", f"v_writelane_b32 {v(vSTAMP[0])}, {s(sTS)}, m0", f"s_mov_b32 m0, {s(sSI+1)}",
                f"s_memtime {s(sTS,2)}", f"s_mov_b32 {s(sSI)}, {n}"]
def stamp_flush(vt):
    if not cfg.stamps: return
    a("s_waitcnt lgkmcnt(0)")
    stamp(63)
    a(f"""v_mbcnt_lo_u32_b32 {v(vt)}, -1, 0
    v_mbcnt_hi_u32_b32 {v(vt)}, -1, {v(vt)}
    v_lshlrev_b32 {v(vt)}, 2, {v(vt)}
    s_lshl_b32 {s(sT)}, {s(sB)}, 3
    s_add_u32 {s(sT)}, {s(sT)}, {s(sW)}
    s_lshl_b32 {s(sT)}, {s(sT)}, 8
    s_add_u32 {s(sT)}, {s(sT)}, {DBG}
    buffer_store_dword {v(vSTAMP[0])}, {v(vt)}, {s(SWS,4)}, {s(sT)} offen""")

vL16 = 1
vF0 = 2
vTMP = 3

def publish(soff, vt, older=0, thru=0):
    l1, l2 = a.label("Lpubg"), a.label("Lpubd")
    a(f"""v_mov_b32 {v(vt)}, {s(sL)}
    s_cmp_lg_u32 {s(sMODE)}, 0
    s_waitcnt vmcnt({older})
    buffer_store_dword {v(vt)}, {v(vF0)}, {s(SWS,4)}, {s(soff)} offen
    s_cbranch_scc1 {l1}
    {l2}:""")
    ool.append(f"""{l1}:
    {"" if thru else "buffer_wbl2 sc1"}
    s_add_u32 {s(soff)}, {s(soff)}, {GOFF}
    s_waitcnt vmcnt(0)
    v_mov_b32 {v(vt)}, {s(sG)}
    buffer_store_dword {v(vt)}, {v(vF0)}, {s(SWS,4)}, {s(soff)} offen sc1
    s_branch {l2}""")

def spin_tail(loop, done):
    return f"""s_sub_u32 {s(sSPIN)}, {s(sSPIN)}, 1
    s_cbranch_scc0 {loop}
    s_mov_b32 {s(sSPIN)}, 0
    s_branch {done}"""

def poll(soff, vaddr, vt):
    lp, lg, ld, lr, lgd = a.label("Lpoll"), a.label("Lpollg"), a.label("Lpolld"), a.label("Lpollr"), a.label("Lpollgd")
    a(f"""s_cmp_lg_u32 {s(sMODE)}, 0
    s_cbranch_scc1 {lg}
    {lp}:
    buffer_load_dword {v(vt)}, {v(vaddr)}, {s(SWS,4)}, {s(soff)} offen sc1
    s_waitcnt vmcnt(0)
    v_cmp_ne_u32 vcc, {s(sL)}, {v(vt)}
    s_cbranch_vccnz {lr}
    {ld}:""")
    ool.append(f"""{lr}:
    {spin_tail(lp, ld)}
    {lg}:
    s_add_u32 {s(sT+7)}, {s(soff)}, {GOFF}
    buffer_load_dword {v(vt)}, {v(vaddr)}, {s(SWS,4)}, {s(soff)} offen sc1
    buffer_load_dword {v(vt+1)}, {v(vaddr)}, {s(SWS,4)}, {s(sT+7)} offen sc1
    s_waitcnt vmcnt(0)
    v_cmp_ne_u32 vcc, {s(sL)}, {v(vt)}
    v_cmp_ne_u32 {s(sCM,2)}, {s(sG)}, {v(vt+1)}
    s_nop 1
    s_and_b64 vcc, vcc, {s(sCM,2)}
    s_cbranch_scc0 {lgd}
    s_sub_u32 {s(sSPIN)}, {s(sSPIN)}, 1
    s_cbranch_scc0 {lg}
    s_mov_b32 {s(sSPIN)}, 0
    {lgd}:
    buffer_inv sc1
    s_waitcnt vmcnt(0)
    s_branch {ld}""")

def poll_g(soff, vaddr, vt):
    lp, ld, lr = a.label("Lpoll"), a.label("Lpolld"), a.label("Lpollr")
    a(f"""{lp}:
    buffer_load_dword {v(vt)}, {v(vaddr)}, {s(SWS,4)}, {s(soff)} offen sc1
    s_waitcnt vmcnt(0)
    v_cmp_ne_u32 vcc, {s(sG)}, {v(vt)}
    s_cbranch_vccnz {lr}
    {ld}:""")
    ool.append(f"{lr}:\n{spin_tail(lp, ld)}")

def poll_s(soff):
    lp, ld, lr = a.label("Lpoll"), a.label("Lpolld"), a.label("Lpollr")
    F = 36 + 0
    a(f"""s_add_u32 {s(sCM)}, {s(SWS)}, {s(soff)}
    s_addc_u32 {s(sCM+1)}, {s(SWS+1)}, 0
    s_mov_b32 {s(sT+6)}, {s(sG)}
    s_mov_b32 {s(sT+7)}, {s(sG)}
    {lp}:
    s_load_dwordx8 {s(36,8)}, {s(sCM,2)}, 0 glc
    s_load_dwordx8 {s(56,8)}, {s(sCM,2)}, 32 glc
    s_waitcnt lgkmcnt(0)""")
    for base in (36, 56):
        for t in range(4): a(f"s_cmp_eq_u64 {s(base+2*t,2)}, {s(sT+6,2)}\ns_cbranch_scc0 {lr}")
    a(f"{ld}:")
    ool.append(f"{lr}:\n{spin_tail(lp, ld)}")

def interleave(main, fill, start, per):
    fill = list(fill)
    for n, g in enumerate(main):
        g()
        if n >= start:
            for _ in range(per):
                if fill: fill.pop(0)()
    for f in fill: f()

def I(text, tag=None): return lambda: a(text, tag)

def prologue():
    a(f"""s_cmp_ge_u32 {s(sB)}, 256
    s_cbranch_scc1 Lend
    s_load_dwordx4 {s(36,4)}, s[0:1], 0
    s_load_dwordx2 {s(SWS,2)}, s[0:1], 80
    v_lshrrev_b32 v3, 6, v0
    v_and_b32 v0, 63, v0
    v_readfirstlane_b32 {s(sW)}, v3""")
    if cfg.permute:
        a(f"""s_lshr_b32 {s(sT)}, {s(sB)}, {cfg.permute}
        s_lshl_b32 {s(sB)}, {s(sB)}, {8-cfg.permute}
        s_or_b32 {s(sB)}, {s(sB)}, {s(sT)}
        s_and_b32 {s(sB)}, {s(sB)}, 255""")
    if cfg.stamps: a(f"v_mov_b32 v15, 0\ns_mov_b32 {s(sSI)}, 62\ns_mov_b32 {s(sTS)}, 0")
    a(f"""s_and_b32 {s(sJ)}, {s(sB)}, 7
    s_lshr_b32 {s(sI)}, {s(sB)}, 3
    s_and_b32 {s(sW4)}, {s(sW)}, 3
    v_lshlrev_b32 {v(vL16)}, 4, v0
    v_cmp_eq_u32 vcc, 0, v0
    v_mov_b32 v3, {OOB}
    s_mov_b32 {s(SWS+2)}, {WS_SIZE}
    s_mov_b32 {s(SWS+3)}, 0x20000
    v_cndmask_b32 {v(vF0)}, v3, 0, vcc
    s_cmp_ge_u32 {s(sW)}, 4
    s_cbranch_scc1 LB_start""")

def chunks():
    a(f"""s_and_b32 {s(sT)}, {s(sI)}, 1
    s_lshl1_add_u32 {s(sH)}, {s(sJ)}, {s(sT)}
    s_lshr_b32 {s(sRB)}, {s(sI)}, 1
    s_mul_i32 {s(sT)}, {s(sT)}, {cfg.c0i}
    s_mul_i32 {s(sT+1)}, {s(sJ)}, {cfg.c0j}
    s_add_u32 {s(sT)}, {s(sT)}, {s(sT+1)}
    s_mul_i32 {s(sT+1)}, {s(sT)}, 37
    s_lshr_b32 {s(sT+1)}, {s(sT+1)}, 8
    s_mul_i32 {s(sT+1)}, {s(sT+1)}, 7
    s_sub_u32 {s(sCH)}, {s(sT)}, {s(sT+1)}""")
    for q in range(1, 7):
        a(f"""s_add_u32 {s(sCH+q)}, {s(sCH+q-1)}, 1
        s_cmp_eq_u32 {s(sCH+q)}, 7
        s_cselect_b32 {s(sCH+q)}, 0, {s(sCH+q)}""")

def roles(t):
    a(f"""s_load_dwordx8 {s(40,8)}, s[0:1], 16
    s_load_dwordx4 {s(48,4)}, s[0:1], 48
    s_load_dwordx2 {s(pOUT,2)}, s[0:1], 64
    s_mov_b32 {s(sUP)}, 0
    s_mov_b32 {s(sUP+1)}, -1
    s_mov_b32 {s(sPADV)}, 0x88008800
    s_mov_b32 {s(sPADV+1)}, 0x88008800
    s_mov_b32 {s(sSPIN)}, 0x20000
    s_mov_b32 {s(sONE)}, 0x3f803f80
    s_getreg_b32 {s(sL)}, hwreg(HW_REG_XCC_ID, 0, 4)
    s_lshr_b32 {s(t)}, {s(sI)}, 2
    s_lshl3_add_u32 {s(sT3)}, {s(sJ)}, {s(t)}
    s_and_b32 {s(t)}, {s(sI)}, 3
    s_lshl2_add_u32 {s(sFT)}, {s(t)}, {s(sW4)}
    s_cmp_ge_u32 {s(sI)}, 14
    s_cselect_b32 {s(t)}, 1, 0
    s_mul_i32 {s(t+1)}, {s(t)}, 14
    s_sub_u32 {s(sSL)}, {s(sI)}, {s(t+1)}
    s_lshl1_add_u32 {s(t)}, {s(sJ)}, {s(t)}
    s_lshl2_add_u32 {s(sT4)}, {s(t)}, {s(sW4)}
    s_mul_i32 {s(t)}, {s(sI)}, 37
    s_lshr_b32 {s(t)}, {s(t)}, 8
    s_mul_i32 {s(t+1)}, {s(t)}, 7
    s_sub_u32 {s(sC7)}, {s(sI)}, {s(t+1)}
    s_lshl2_add_u32 {s(t)}, {s(sJ)}, {s(t)}
    s_lshl_b32 {s(sT5)}, {s(t)}, 1
    s_lshl_b32 {s(sKVB)}, {s(sH)}, 18
    s_add_u32 {s(sKVB)}, {s(sKVB)}, {KV}
    s_waitcnt lgkmcnt(0)""")

def nonce(vt):
    a(f"""v_readfirstlane_b32 {s(sG)}, {v(vt)}
    s_add_u32 {s(sL)}, {s(sL)}, 1
    s_lshl_b32 {s(sL)}, {s(sL)}, 27
    s_mul_i32 {s(sG)}, {s(sG)}, 0x9E3779B1
    s_add_u32 {s(sG)}, {s(sG)}, 0x7F4A7C15
    s_xor_b32 {s(sL)}, {s(sL)}, {s(sG)}""")

vO, vS0, vS1, vK0, vK1, vV0, vV1, vQ = 16, 32, 48, 64, 68, 72, 76, 80
vPF = 128

def p1_A():
    XF = 128
    aK, aV, aQ, WB, MH, ML, RR, PK = 16, 32, 48, 64, 96, 100, 104, 120
    NB = 8
    vXA, vXR = 240, 244
    s1, s2, rstd, vEP, vWA, vKS, vONE, vTC = 248, 249, 250, 251, 252, 253, 254, 255
    XQ = cfg.xq
    chunks()
    a(f"""v_lshrrev_b32 v3, 3, v0
    v_and_b32 v4, 7, v0
    v_lshrrev_b32 v5, 1, v3
    v_xor_b32 v4, v4, v5
    v_mul_u32_u24 v3, 896, v3
    v_lshl_add_u32 {v(vXA)}, v4, 4, v3
    v_xor_b32 {v(vXA+1)}, 64, {v(vXA)}
    v_add_u32 {v(vXA+1)}, {7168-1024}, {v(vXA+1)}
    v_add_u32 {v(vXA+2)}, {14336-2048}, {v(vXA)}
    v_add_u32 {v(vXA+3)}, {14336-2048}, {v(vXA+1)}
    s_lshl2_add_u32 {s(sT)}, {s(sRB)}, {s(sW)}
    s_mul_i32 {s(sT)}, {s(sT)}, {32*896}
    s_mul_i32 {s(sM0)}, {s(sW)}, {12*K}
    s_waitcnt lgkmcnt(0)""")
    srd(SX, pX, 2048 * 896)
    stamp(0)
    nx = [0]
    def xop():
        k = nx[0]
        if k >= 28: return
        nx[0] += 1
        q, g = divmod(k, 4)
        if g == 0:
            a(f"""s_lshl_b32 {s(sT+1)}, {s(sCH+q)}, 7
            s_add_u32 m0, {s(sM0)}, {(q%3)*4096}
            s_add_u32 {s(sT+1)}, {s(sT+1)}, {s(sT)}""")
            if q >= 3: a.wait(lg=[("xr", q - 3)])
        a(f"buffer_load_dwordx4 {v(vXA+g)}, {s(SX,4)}, {s(sT+1)} offen offset:{1024*g} lds", ("x", k))
    XW = cfg.xw
    for k in range(XW): xop()
    roles(sT + 2)
    a(f"""v_and_b32 v3, 31, v0
    v_lshrrev_b32 v4, 5, v0
    v_bfe_u32 v5, v3, 1, 3
    v_xor_b32 v5, v5, v4
    v_lshlrev_b32 v6, 7, v3
    v_lshl_add_u32 v6, v5, 4, v6
    v_add_u32 {v(vXR)}, {s(sM0)}, v6
    v_xor_b32 {v(vXR+1)}, 32, {v(vXR)}
    v_xor_b32 {v(vXR+2)}, 64, {v(vXR)}
    v_xor_b32 {v(vXR+3)}, 0x60, {v(vXR)}
    v_mov_b32 {v(s1)}, 0
    v_mov_b32 {v(s2)}, 0
    v_add_u32 {v(vWA)}, {L_W}, {v(vL16)}
    v_mov_b32 {v(vONE)}, {s(sONE)}
    v_bfe_u32 v5, v3, 2, 1
    v_bfe_u32 v6, v3, 3, 1
    v_and_b32 v7, 0x33, v0
    v_lshl_or_b32 v7, v5, 3, v7
    v_lshl_or_b32 v7, v6, 2, v7
    v_lshlrev_b32 {v(vKS)}, 4, v7
    s_lshl_b32 {s(sT+4)}, {s(sW)}, 7
    s_add_u32 {s(sT+4)}, {s(sT+4)}, {L_RS}
    v_lshl_add_u32 v10, v3, 2, {s(sT+4)}
    v_lshl_add_u32 v11, v4, 4, {s(sT+4)}
    v_lshlrev_b32 v12, 7, v3""")
    a(f"""s_lshl2_add_u32 {s(sT+5)}, {s(sRB)}, {s(sW)}
    s_lshl_b32 {s(sT+2)}, {s(sT+5)}, 12
    s_add_u32 {s(sT+2)}, {s(sT+2)}, {s(sKVB)}
    s_lshl_b32 {s(sT+3)}, {s(sH)}, 6
    s_add_u32 {s(sT+3)}, {s(sT+3)}, {s(sT+5)}
    s_lshl_b32 {s(sT+3)}, {s(sT+3)}, 2
    s_add_u32 {s(sT+3)}, {s(sT+3)}, {FA}
    s_lshl_b32 {s(sT+4)}, {s(sW)}, 12
    v_add_u32 v4, {s(sT+4)}, {v(vKS)}
    v_add_u32 v5, {s(sT+4)}, {v(vL16)}
    s_lshl_b32 {s(sT+4)}, {s(sW)}, 11
    s_add_u32 {s(sT+4)}, {s(sT+4)}, {L_QX}
    v_add_u32 v6, {s(sT+4)}, {v(vL16)}
    v_add_u32 v7, {56*K}, {v(vWA)}
    v_mov_b32 v8, {L_MODE}
    s_lshl_b32 {s(sP0D)}, {s(sB)}, 2
    s_add_u32 {s(sP0D)}, {s(sP0D)}, {FP0}
    s_cmp_eq_u32 {s(sW)}, 0
    s_cselect_b32 {s(sP0D)}, {s(sP0D)}, {OOB}""")
    def xread(q):
        a.wait(vm=[("x", 4 * q + 3)])
        stamp(20 + q)
        for t in range(4):
            a(f"ds_read_b128 {v(XF+16*q+4*t,4)}, {v(vXR+t)} offset:{(q%3)*4096}", ("xr", q))
    def xdot(q, lo=0, hi=16):
        a.wait(lg=[("xr", q)])
        for r in range(lo, hi):
            a(f"v_dot2c_f32_bf16 {v(s1)}, {s(sONE)}, {v(XF+16*q+r)}\nv_dot2c_f32_bf16 {v(s2)}, {v(XF+16*q+r)}, {v(XF+16*q+r)}")
    for k in range(4 * XQ + 4):
        q, g = divmod(k, 4)
        a.wait(vm=[("x", k)])
        if g == 3: xread(q)
        if k == 4: a(f"buffer_load_dword {v(vEP)}, {v(vF0)}, {s(SWS,4)}, 0 offen sc1", "ep")
        xop()
        if k == 16: a.wait(vm=["ep"]); nonce(vEP)
        if q: xdot(q - 1, 4 * g, 4 * g + 4)
    while nx[0] < 28: xop()
    if cfg.kvtouch: a(f"buffer_load_dword {v(vTC)}, v12, {s(SWS,4)}, {s(sT+2)} offen sc1")
    xdot(XQ)
    fin = [I(x) for x in f"""v_mov_b32 v3, {v(s1)}
    v_mov_b32 v9, {v(s2)}
    v_mov_b32 v13, {s(sG)}
    v_permlane32_swap_b32 v3, {v(s1)}
    v_permlane32_swap_b32 v9, {v(s2)}
    v_add_f32 v3, v3, {v(s1)}
    v_add_f32 v9, v9, {v(s2)}
    v_mul_f32 v3, {f32(-1.0/448)}, v3
    v_mul_f32 v9, {f32(1.0/448)}, v9
    v_fma_f32 v9, -v3, v3, v9
    v_max_f32 v9, 0, v9
    v_add_f32 v9, {f32(1e-5)}, v9
    v_rsq_f32 {v(rstd)}, v9
    {cvt(MH, 3, 3)}
    ds_write_b32 v10, {v(rstd)}
    v_and_b32 v9, 0xffff0000, {v(MH)}
    v_sub_f32 v9, v3, v9
    {cvt(ML, 9, 9)}""".split("\n")]
    for t in range(1, 4): fin += [I(f"v_mov_b32 {v(MH+t)}, {v(MH)}"), I(f"v_mov_b32 {v(ML+t)}, {v(ML)}")]
    fin += [I(f"ds_read_b128 {v(RR+4*g,4)}, v11 offset:{32*g}", "rr") for g in range(4)]
    acc = [aK, aV, aQ]
    groups = [[0, 1], [2]] if cfg.ne == 2 else [[0], [1], [2]]
    reads = []
    for gr in groups: reads += [(m, q) for q in range(28) for m in gr] + [(m, 28) for m in gr]
    buf = {r: WB + 4 * (n % NB) for n, r in enumerate(reads)}
    nread = [0]
    def issue_read():
        if nread[0] >= len(reads): return
        m, q = reads[nread[0]]; nread[0] += 1
        if (m, q) == (0, 0):
            stamp(2)
            a("s_barrier")
            stamp(3)
            a("ds_read_b32 v14, v8", "mode")
        if q == 28 and any(m == gr[0] for gr in groups):
            a.wait(lg=[("xr", 6)])
            stamp(27 + 2 * m); a("s_barrier"); stamp(28 + 2 * m)
            if m == 2: a(f"buffer_store_dword v13, {v(vF0)}, {s(SWS,4)}, {s(sP0D)} offen sc1")
        off = (m * 28 + q) * K if q < 28 else (L_AUG - L_W) + m * K
        if off >= 56 * K: a(f"ds_read_b128 {v(buf[(m,q)],4)}, v7 offset:{off-56*K}", ("w", m, q))
        else: a(f"ds_read_b128 {v(buf[(m,q)],4)}, {v(vWA)} offset:{off}", ("w", m, q))
    for _ in range(NB - 1): issue_read()
    a("s_setprio 1")
    a.wait(lg=["mode"])
    a(f"v_readfirstlane_b32 {s(sMODE)}, v14")
    def item(m, q):
        def f():
            w = buf[(m, min(q, 28))]
            x = XF + 4 * q if q < 28 else (MH if q == 28 else ML)
            a.wait(lg=[("w", m, min(q, 28))])
            a(mfma(acc[m], x, w, acc[m] if q else None) if m == 1 else mfma(acc[m], w, x, acc[m] if q else None))
            if q != 28: issue_read()
        return f
    epK = [I(f"v_mul_f32 {v(aK+r)}, {v(aK+r)}, {v(rstd)}") for r in range(16)]
    epK += [I(f"v_cndmask_b32 {v(aK+12+t)}, {v(aK+12+t)}, {'1.0' if t < 3 else '0'}, {s(sUP,2)}") for t in range(4)]
    epK += [I(cvt(PK + t, aK + 2 * t, aK + 2 * t + 1)) for t in range(8)]
    epK += [I(f"buffer_store_dwordx4 {v(PK+4*u,4)}, {v(vKS)}, {s(SWS,4)}, {s(sT+2)} offen offset:{u*K}{SC1(cfg.kvs)}") for u in range(2)]
    epKl = [I(f"ds_write_b128 v4, {v(PK+4*u,4)} offset:{u*K}", "kw") for u in range(2)]
    epV = [lambda: a.wait(lg=["rr"])] + [I(f"v_mul_f32 {v(aV+r)}, {v(aV+r)}, {v(RR+r)}") for r in range(16)]
    epV += [I(cvt(RR + t, aV + 2 * t, aV + 2 * t + 1)) for t in range(8)]
    epV += [I(f"v_cndmask_b32 {v(RR+t)}, {v(RR+t)}, {v(vONE)}, {s(sPADV,2)}") for t in range(8)]
    epV += [I(f"buffer_store_dwordx4 {v(RR+4*u,4)}, {v(vL16)}, {s(SWS,4)}, {s(sT+2)} offen offset:{(2+u)*K}{SC1(cfg.kvs)}") for u in range(2)]
    epVl = [I(f"ds_write_b128 v5, {v(RR+4*u,4)} offset:{(2+u)*K}", "vw") for u in range(2)]
    g0 = groups[0]
    for c in range(5):
        if c + 2 > XQ: xread(c + 2)
        for q in range(4 * c, 4 * c + 4):
            for m in g0: item(m, q)()
        if c + 2 > XQ: xdot(c + 2)
    stamp(1)
    interleave([item(m, q) for q in range(20, 28) for m in g0], fin, 0, 4)
    for m in g0: item(m, 28)(); item(m, 29)()
    if cfg.ne == 2:
        interleave([item(2, q) for q in range(20)], epK + epV + epKl + epVl, 0, 4)
    else:
        interleave([item(1, q) for q in range(30)], epK + epKl, 1, 4)
        interleave([item(2, q) for q in range(20)], epV + epVl, 1, 4)
    interleave([item(2, q) for q in range(20, 30)], [I(f"v_mul_f32 {v(rstd)}, {f32(28**-0.5*math.log2(math.e))}, {v(rstd)}")], 0, 1)
    stamp(4)
    publish(sT + 3, 9, older=1, thru=cfg.kvs)
    for r in range(16): a(f"v_mul_f32 {v(aQ+r)}, {v(aQ+r)}, {v(rstd)}")
    for t in range(4): a(f"v_cndmask_b32 {v(aQ+12+t)}, {v(aQ+12+t)}, 0, {s(sUP,2)}")
    a(f"v_mul_f32 v9, {v(aQ)}, {v(aK)}\nv_mul_f32 v10, {v(aQ+1)}, {v(aK+1)}")
    for r in range(2, 16): a(f"v_fmac_f32 {v(9+r%2)}, {v(aQ+r)}, {v(aK+r)}")
    a("v_add_f32 v9, v9, v10")
    for t in range(3): a(cvt(vQ + t, aQ + 2 * t, aQ + 2 * t + 1))
    a("v_mov_b32 v10, v9")
    for t in range(3, 6): a(cvt(vQ + t, aQ + 2 * t, aQ + 2 * t + 1))
    a(f"""v_permlane32_swap_b32 v9, v10
    {cvt(vQ+7, aQ+14, aQ+15)}
    ds_write_b128 v6, {v(vQ,4)}
    v_add_f32 v9, v9, v10
    v_cndmask_b32 {v(aQ+12)}, {v(aQ+12)}, -v9, {s(sUP,2)}
    {cvt(vQ+6, aQ+12, aQ+13)}
    ds_write_b128 v6, {v(vQ+4,4)} offset:{K}""")
    a(f"""s_lshl_b32 {s(sPF)}, {s(sFT)}, 15
    s_add_u32 {s(sPF)}, {s(sPF)}, {WOT}
    s_cmp_lt_u32 {s(sFT)}, 14
    s_cselect_b32 {s(sPF)}, {s(sPF)}, {OOB}""")
    att_setup(0)
    stamp(5)
    a("s_waitcnt lgkmcnt(0)\ns_barrier")

SLOT = [0, 4, 5, 6, 7, 8, 9, 5, 6, 7, 8, 9, 5, 6, 7, 8]
PRE = 2

def p1_B():
    vRA, vT0, vT1, vST, vEP, vWA, vAU = 16, 17, 18, 19, 20, 21, 22
    FR = 32
    a("LB_start:")
    a.reset_q()
    a(f"""s_setprio 3
    v_lshrrev_b32 v3, 4, v0
    v_and_b32 v4, 15, v0
    v_mul_u32_u24 v5, 2688, v3
    v_lshl_add_u32 {v(vRA)}, v4, 4, v5
    s_add_u32 {s(sT)}, {s(sW4)}, 1
    s_cmp_eq_u32 {s(sT)}, 3
    s_cselect_b32 {s(sT)}, 0, {s(sT)}
    s_mul_i32 {s(sT)}, {s(sT)}, 896
    s_mul_i32 {s(sT+1)}, {s(sJ)}, 112
    s_and_b32 {s(sT+2)}, {s(sT+1)}, 127
    s_sub_u32 {s(sT+1)}, {s(sT+1)}, {s(sT+2)}
    s_add_u32 {s(sT)}, {s(sT)}, {s(sT+1)}
    s_mul_i32 {s(sT+1)}, {s(sI)}, {16*2688}
    s_add_u32 {s(sT)}, {s(sT)}, {s(sT+1)}
    s_mul_i32 {s(sT+3)}, {s(sW4)}, {28*K}
    s_add_u32 {s(sT+3)}, {s(sT+3)}, {L_W}
    s_mov_b32 m0, {s(sT+3)}
    s_mov_b32 {s(SA+2)}, {448*2688}
    s_mov_b32 {s(SA+3)}, 0x20000
    s_cmp_lt_u32 {s(sI)}, 28
    s_cselect_b32 {s(sT+4)}, {s(sW4)}, 3
    s_cmp_eq_u32 {s(sT+4)}, 3
    s_waitcnt lgkmcnt(0)
    s_mov_b32 {s(SA)}, {s(pWQKV)}
    s_mov_b32 {s(SA+1)}, {s(pWQKV+1)}""")
    stamp(0)
    a("s_cbranch_scc1 LB_norep")
    for n in range(4):
        a(f"buffer_load_dwordx4 {v(vRA)}, {s(SA,4)}, {s(sT)} offen offset:{n*K} lds")
        if n < 3: a(f"s_add_u32 {s(sT)}, {s(sT)}, {4*2688-K}")
    a(f"""buffer_load_dword {v(vEP)}, {v(vF0)}, {s(SWS,4)}, 0 offen sc1
    s_mul_i32 {s(sT+6)}, {s(sJ)}, 6
    s_add_u32 {s(sT+6)}, {s(sT+6)}, {s(sW4)}
    s_mul_i32 {s(sT+6)}, {s(sT+6)}, 28
    s_add_u32 {s(sT+6)}, {s(sT+6)}, {s(sI)}
    s_lshl_b32 {s(sT+6)}, {s(sT+6)}, 10
    s_add_u32 {s(sT+6)}, {s(sT+6)}, {WP}
    s_add_u32 {s(sT+7)}, {s(sT+6)}, {84*K}""")
    if not cfg.wps:
        a(f"""v_and_b32 v5, 7, v0
        v_bfe_u32 v6, v0, 3, 1
        v_mul_u32_u24 v6, {84*K}, v6
        v_lshl_add_u32 v5, v5, 7, v6
        buffer_load_dword v9, v5, {s(SWS,4)}, {s(sT+6)} offen sc1""")
    chunks()
    roles(sT)
    a(f"""v_lshrrev_b32 v3, 5, v0
    v_bfe_u32 v4, v0, 2, 2
    v_lshl_add_u32 v4, v3, 3, v4
    v_lshlrev_b32 v4, 8, v4
    v_bfe_u32 v5, v0, 4, 1
    v_lshl_add_u32 v4, v5, 5, v4
    v_and_b32 v5, 3, v0
    v_lshl_add_u32 v4, v5, 3, v4
    s_add_u32 {s(sT+2)}, {s(sT+2)}, {s(sT+3)}
    v_add_u32 {v(vT0)}, {s(sT+2)}, v4
    v_and_b32 v5, 31, v0
    v_cmp_lt_u32 vcc, 10, v5
    v_addc_co_u32 v6, vcc, 0, v5, vcc
    v_cmp_lt_u32 vcc, 13, v5
    v_addc_co_u32 v6, vcc, 0, v6, vcc
    v_cmp_lt_u32 vcc, 24, v5
    v_addc_co_u32 v6, vcc, 0, v6, vcc
    v_and_b32 v7, 1, v5
    v_lshlrev_b32 v7, 2, v7
    v_bfe_u32 v8, v5, 1, 1
    v_lshl_add_u32 v7, v8, 4, v7
    v_add_u32 v7, 11, v7
    v_cmp_lt_u32 vcc, 27, v5
    v_cndmask_b32 v6, v6, v7, vcc
    s_cmp_eq_u32 {s(sW4)}, 1
    s_cselect_b64 vcc, -1, 0
    v_cndmask_b32 v6, v5, v6, vcc
    v_lshl_add_u32 v6, v3, 5, v6
    v_lshlrev_b32 {v(vST)}, 4, v6""")
    stamp(20)
    a("s_waitcnt vmcnt(0)")
    stamp(22)
    for e in range(2):
        for z in range(2):
            a(f"ds_read_b64_tr_b16 {v(FR+4*e+2*z,2)}, {v(vT0)} offset:{56*e+1024*z}")
    a(f"""s_waitcnt lgkmcnt(2)
    buffer_store_dwordx4 {v(FR,4)}, {v(vST)}, {s(SWS,4)}, {s(sT+6)} offen{SC1(cfg.wps)}
    s_waitcnt lgkmcnt(0)
    buffer_store_dwordx4 {v(FR+4,4)}, {v(vST)}, {s(SWS,4)}, {s(sT+7)} offen{SC1(cfg.wps)}
    s_branch LB_rep
    LB_norep:""")
    a(f"""buffer_load_dword {v(vEP)}, {v(vF0)}, {s(SWS,4)}, 0 offen sc1
    s_getpc_b64 {s(SC,2)}
    Lpc:
    s_sub_u32 {s(SC)}, {s(SC)}, Lpc-{KN}
    s_subb_u32 {s(SC+1)}, {s(SC+1)}, 0
    s_mov_b32 {s(SC+2)}, Lcode_end-{KN}
    s_mov_b32 {s(SC+3)}, 0x20000
    s_lshl_b32 {s(sT)}, {s(sI)}, 11
    v_and_b32 v5, 15, v0
    v_lshlrev_b32 v5, 7, v5
    v_and_b32 v6, 3, v0
    v_bfe_u32 v7, v0, 2, 1
    v_lshlrev_b32 v6, 7, v6
    v_lshl_add_u32 v6, v7, 12, v6
    s_lshl_b32 {s(sT+1)}, {s(sJ)}, 9
    s_add_u32 {s(sT+1)}, {s(sT+1)}, {FW}
    buffer_load_dword v9, v6, {s(SWS,4)}, {s(sT+1)} offen sc1
    buffer_load_dword v10, v5, {s(SC,4)}, {s(sT)} offen""")
    chunks()
    roles(sT)
    a("s_waitcnt vmcnt(2)\nLB_rep:")
    nonce(vEP)
    stamp(1)
    a(f"""s_lshl_b32 {s(sT)}, {s(sJ)}, 9
    s_add_u32 {s(sT)}, {s(sT)}, {FW}
    s_lshl2_add_u32 {s(sT+1)}, {s(sI)}, {s(sW4)}
    s_lshl2_add_u32 {s(sT+1)}, {s(sT+1)}, {s(sT)}
    v_mov_b32 v3, {s(sL)}
    v_lshlrev_b32 v4, 3, v0
    s_mov_b32 {s(sMODE)}, 0
    s_mov_b32 {s(sT+2)}, {0 if cfg.force_global else cfg.n1}
    s_waitcnt vmcnt(0)
    buffer_store_dword v3, {v(vF0)}, {s(SWS,4)}, {s(sT+1)} offen""")
    if cfg.force_global: a("s_branch LB_wglob")
    a(f"""LB_wpoll:
    buffer_load_dwordx2 v[6:7], v4, {s(SWS,4)}, {s(sT)} offen sc1
    s_waitcnt vmcnt(0)
    v_cmp_ne_u32 vcc, {s(sL)}, v6
    v_cmp_ne_u32 {s(sCM,2)}, {s(sL)}, v7
    s_nop 1
    s_or_b64 vcc, vcc, {s(sCM,2)}
    s_cbranch_scc1 LB_wretry
    LB_wdone:""")
    ool.append(f"""LB_wretry:
    s_sub_u32 {s(sT+2)}, {s(sT+2)}, 1
    s_cbranch_scc0 LB_wpoll
    LB_wglob:
    s_mov_b32 {s(sMODE)}, 1
    buffer_wbl2 sc1
    s_add_u32 {s(sT+1)}, {s(sT+1)}, {GOFF}
    s_add_u32 {s(sT+2)}, {s(sT)}, {GOFF}
    v_mov_b32 v3, {s(sG)}
    s_waitcnt vmcnt(0)
    buffer_store_dword v3, {v(vF0)}, {s(SWS,4)}, {s(sT+1)} offen sc1
    LB_wgl:
    buffer_load_dwordx2 v[6:7], v4, {s(SWS,4)}, {s(sT)} offen sc1
    buffer_load_dwordx2 v[8:9], v4, {s(SWS,4)}, {s(sT+2)} offen sc1
    s_waitcnt vmcnt(0)
    v_cmp_ne_u32 vcc, {s(sL)}, v6
    v_cmp_ne_u32 {s(sCM,2)}, {s(sG)}, v8
    s_nop 1
    s_and_b64 {s(sT+4,2)}, vcc, {s(sCM,2)}
    v_cmp_ne_u32 vcc, {s(sL)}, v7
    v_cmp_ne_u32 {s(sCM,2)}, {s(sG)}, v9
    s_nop 1
    s_and_b64 vcc, vcc, {s(sCM,2)}
    s_or_b64 vcc, vcc, {s(sT+4,2)}
    s_cbranch_scc0 LB_wgd
    s_sub_u32 {s(sSPIN)}, {s(sSPIN)}, 1
    s_cbranch_scc0 LB_wgl
    s_mov_b32 {s(sSPIN)}, 0
    LB_wgd:
    buffer_inv sc1
    s_waitcnt vmcnt(0)
    s_branch LB_wdone""")
    a.reset_q()
    stamp(2)
    a(f"""s_mul_i32 {s(sT)}, {s(sH)}, 84
    s_add_u32 {s(sT)}, {s(sT)}, {s(sW4)}
    s_lshl_b32 {s(sT)}, {s(sT)}, 10
    s_add_u32 {s(sT)}, {s(sT)}, {WP}
    s_lshl_b32 {s(sM0)}, {s(sW4)}, 10""")
    for q in range(7): a(f"s_lshl_b32 {s(sCH+q)}, {s(sCH+q)}, 12\ns_add_u32 {s(sCH+q)}, {s(sCH+q)}, {s(sT)}")
    groups = [[0, 1], [2]] if cfg.ne == 2 else [[0], [1], [2]]
    def wdma(gr):
        for q in range(7):
            for m in gr:
                a(f"s_add_u32 m0, {s(sM0)}, {L_W+(m*28+4*q)*K}")
                if m: a(f"s_add_u32 {s(sCH+q)}, {s(sCH+q)}, {28*K}")
                else: a("s_nop 0")
                a(f"buffer_load_dwordx4 {v(vL16)}, {s(SWS,4)}, {s(sCH+q)} offen sc1 lds", ("w", m))
    wdma(groups[0]); wdma(groups[1])
    stamp(23)
    a(f"""v_mov_b32 v3, {s(sMODE)}
    v_mov_b32 v4, {L_MODE}
    ds_write_b32 v4, v3
    s_add_u32 {s(sT)}, {s(sM0)}, {L_W}
    v_add_u32 {v(vWA)}, {s(sT)}, {v(vL16)}
    s_lshl_b32 {s(sT)}, {s(sW4)}, 2
    s_add_u32 {s(sT)}, {s(sT)}, {L_AUG}
    v_add_u32 {v(vAU)}, {s(sT)}, {v(vL16)}
    s_cmp_lt_u32 {s(sB)}, 32
    s_cbranch_scc1 LB_p0o
    s_cmp_lt_u32 {s(sB)}, 144
    s_cbranch_scc1 LB_p01""")
    srd(SB_, pW2, 1792 * 896)
    a(f"""s_sub_u32 {s(sT)}, {s(sB)}, 144
    s_mul_i32 {s(sT+1)}, {s(sT)}, {16*896}
    s_lshl_b32 {s(sP0D)}, {s(sT)}, 10
    s_add_u32 {s(sP0D)}, {s(sP0D)}, {W2T}
    s_mov_b32 {s(sP0DS)}, {112*K}
    s_mov_b32 {s(sP0ST)}, 896
    s_mov_b32 {s(sP0M)}, -1
    s_mov_b32 {s(sT+2)}, 1024
    s_branch LB_p0j
    LB_p01:""")
    srd(SB_, pW1, 448 * 3584)
    a(f"""s_sub_u32 {s(sT)}, {s(sB)}, 32
    s_and_b32 {s(sT+3)}, {s(sT)}, 3
    s_lshr_b32 {s(sT)}, {s(sT)}, 2
    s_mul_i32 {s(sT+1)}, {s(sT)}, {16*3584}
    s_mul_i32 {s(sT+4)}, {s(sT+3)}, 896
    s_add_u32 {s(sT+1)}, {s(sT+1)}, {s(sT+4)}
    s_mul_i32 {s(sT+3)}, {s(sT+3)}, {14*28}
    s_add_u32 {s(sT)}, {s(sT)}, {s(sT+3)}
    s_lshl_b32 {s(sP0D)}, {s(sT)}, 10
    s_add_u32 {s(sP0D)}, {s(sP0D)}, {W1T}
    s_mov_b32 {s(sP0DS)}, {28*K}
    s_mov_b32 {s(sP0ST)}, 3584
    s_mov_b32 {s(sP0M)}, -1
    s_mov_b32 {s(sT+2)}, 1024
    s_branch LB_p0j
    LB_p0o:""")
    srd(SB_, pWO, 448 * 896)
    a(f"""s_mul_i32 {s(sT+1)}, {s(sB)}, {14*896}
    s_lshl_b32 {s(sP0D)}, {s(sB)}, 10
    s_add_u32 {s(sP0D)}, {s(sP0D)}, {WOT}
    s_mov_b32 {s(sP0DS)}, {32*K}
    s_mov_b32 {s(sP0ST)}, 896
    s_mov_b32 {s(sP0M)}, 0xffff
    s_mov_b32 {s(sT+2)}, 768
    LB_p0j:
    s_lshl_b32 {s(sT+3)}, {s(sW4)}, 8
    s_add_u32 {s(sT+1)}, {s(sT+1)}, {s(sT+3)}
    s_lshl_b32 {s(sT+3)}, {s(sP0DS)}, 2
    s_mul_i32 {s(sT+3)}, {s(sT+3)}, {s(sW4)}
    s_add_u32 {s(sP0D)}, {s(sP0D)}, {s(sT+3)}
    v_lshrrev_b32 v3, 4, v0
    v_and_b32 v4, 15, v0
    v_mul_u32_u24 v5, {s(sP0ST)}, v3
    v_lshl_add_u32 {v(vRA)}, v4, 4, v5
    s_lshl_b32 {s(sP0ST)}, {s(sP0ST)}, 2
    s_sub_u32 {s(sP0ST)}, {s(sP0ST)}, {K}
    s_lshl_b32 {s(sT+3)}, {s(sW4)}, 12
    s_add_u32 {s(sT+3)}, {s(sT+3)}, {L_P0}
    v_lshrrev_b32 v3, 5, v0
    v_bfe_u32 v4, v0, 2, 2
    v_lshlrev_b32 v4, 8, v4
    v_bfe_u32 v5, v0, 4, 1
    v_lshl_add_u32 v4, v5, 5, v4
    v_and_b32 v5, 3, v0
    v_lshl_add_u32 v4, v5, 3, v4
    v_add_u32 v4, {s(sT+3)}, v4
    v_lshl_add_u32 {v(vT0)}, v3, 10, v4
    v_mad_u32_u24 {v(vT1)}, v3, {s(sT+2)}, v4""")
    def colsum(m):
        for q in range(7):
            off = (m * 28 + 4 * q) * K
            if off >= 56 * K and q == 0: a(f"v_add_u32 {v(vWA)}, {56*K}, {v(vWA)}")
            a(f"ds_read_b128 {v(FR+4*q,4)}, {v(vWA)} offset:{off % (56*K)}", ("c", q))
        for q in range(7):
            a.wait(lg=[("c", q)])
            for t in range(4):
                r = FR + 4 * q + t
                if q == 0 and t == 0: a(f"v_and_b32 v3, 0xffff0000, {v(r)}\nv_lshlrev_b32 v4, 16, {v(r)}")
                else: a(f"v_and_b32 v5, 0xffff0000, {v(r)}\nv_lshlrev_b32 v6, 16, {v(r)}\nv_add_f32 v3, v3, v5\nv_add_f32 v4, v4, v6")
        a(f"""v_add_f32 v3, v3, v4
        {cvt(4, 3, 3)}
        v_and_b32 v4, 0xffff0000, v4
        v_sub_f32 v4, v3, v4
        {cvt(4, 3, 4)}
        ds_write_b32 {v(vAU)}, v4 offset:{m*K}""")
    a.wait(vm=[("w", m) for m in groups[0]])
    a("s_waitcnt lgkmcnt(0)")
    stamp(3)
    a("s_barrier")
    if cfg.ne == 1: wdma(groups[2])
    a(f"s_mov_b32 m0, {s(sT+3)}\ns_setprio 0")
    for n in range(4):
        a(f"buffer_load_dwordx4 {v(vRA)}, {s(SB_,4)}, {s(sT+1)} offen offset:{n*K} lds", "p0")
        if n < 3: a(f"s_add_u32 {s(sT+1)}, {s(sT+1)}, {s(sP0ST)}")
    def p0():
        a.wait(vm=["p0"])
        for t in range(4):
            a(f"ds_read_b64_tr_b16 {v(FR+4*t,2)}, {v(vT0)} offset:{64*t}", ("t", t))
            a(f"ds_read_b64_tr_b16 {v(FR+4*t+2,2)}, {v(vT1)} offset:{64*t+2048}", ("t", t))
        for t in range(4):
            a.wait(lg=[("t", t)])
            a(f"v_and_b32 {v(FR+4*t+3)}, {s(sP0M)}, {v(FR+4*t+3)}")
            if t == 2: a(f"s_cmp_eq_u32 {s(sW4)}, 3\ns_cselect_b32 {s(sP0D)}, {OOB}, {s(sP0D)}")
            a(f"buffer_store_dwordx4 {v(FR+4*t,4)}, {v(vL16)}, {s(SWS,4)}, {s(sP0D)} offen sc1")
            if t < 3: a(f"s_add_u32 {s(sP0D)}, {s(sP0D)}, {s(sP0DS)}")
    colsum(0)
    if cfg.ne == 1:
        a.wait(vm=[("w", 1)])
        a("s_waitcnt lgkmcnt(0)\ns_barrier")
    colsum(1)
    stamp(12)
    p0()
    stamp(13)
    a("s_barrier")
    colsum(2)
    a("s_waitcnt vmcnt(0) lgkmcnt(0)")
    stamp(14)
    a("s_barrier")
    stamp(4)
    a(f"""s_lshl_b32 {s(sT)}, {s(sH)}, 8
    s_add_u32 {s(sT)}, {s(sT)}, {FA}
    v_lshlrev_b32 v4, 2, v0""")
    poll(sT, 4, 6)
    a.reset_q()
    stamp(5)
    a(f"s_lshl_b32 {s(sT+1)}, {s(sW4)}, 12")
    for be in range(1, PRE + 1):
        a(f"""s_add_u32 {s(sT)}, {s(sRB)}, {be}
        s_and_b32 {s(sT)}, {s(sT)}, 15
        s_lshl_b32 {s(sT)}, {s(sT)}, 14
        s_add_u32 {s(sT)}, {s(sT)}, {s(sKVB)}
        s_add_u32 m0, {s(sT+1)}, {SLOT[be]*16*K}
        s_add_u32 {s(sT)}, {s(sT)}, {s(sT+1)}""")
        for n in range(4):
            a(f"buffer_load_dwordx4 {v(vL16)}, {s(SWS,4)}, {s(sT)} offen offset:{n*K} sc1 lds", ("kv", be))
    a(f"""s_lshl2_add_u32 {s(sT)}, {s(sSL)}, {s(sW4)}
    s_mul_i32 {s(sPF)}, {s(sT)}, {28*K}
    s_add_u32 {s(sPF)}, {s(sPF)}, {W1T}
    s_cmp_lt_u32 {s(sI)}, 28
    s_cselect_b32 {s(sPF)}, {s(sPF)}, {OOB}
    s_cmp_eq_u32 {s(sW)}, 7
    s_cselect_b32 {s(sP0D)}, {FP0}, {OOB}
    s_cselect_b32 {s(sP0M)}, {s(sG)}, 0
    s_lshl_b32 {s(sP0DS)}, {s(sW4)}, 12
    s_lshl_b32 {s(sT+4)}, {s(sW4)}, 11
    s_add_u32 {s(sT+4)}, {s(sT+4)}, {L_QX}
    v_add_u32 v9, {s(sT+4)}, {v(vL16)}""")
    att_setup(1)
    a("s_barrier")
    a(f"""ds_read_b128 {v(vQ,4)}, v9
    ds_read_b128 {v(vQ+4,4)}, v9 offset:{K}""", "q")

vXR, vB1, sW2 = 88, 88, 95
def wreg(q): return vPF + 4 * q if q < 32 else 32 + 4 * (q - 32)
nw = [0]
def w2load(cnt, win):
    for _ in range(cnt):
        p = nw[0]; nw[0] += 1
        if win and p >= win: a.wait(vm=[("w2", p - win)])
        a(f"buffer_load_dwordx4 {v(wreg(p),4)}, {v(vL16)}, {s(SWS,4)}, {s(sW2)} offen offset:{(p%4)*K} sc1", ("w2", p))
        if p % 4 == 3: a(f"s_add_u32 {s(sW2)}, {s(sW2)}, {4*K}")
vA0, vIDX, vFL = 4, 7, 8
def att_setup(g):
    a(f"""v_add_u32 {v(vA0)}, {g*8*K}, {v(vL16)}
    v_add_u32 {v(vA0+1)}, {g*8*K+64*K}, {v(vL16)}
    v_add_u32 {v(vA0+2)}, {g*8*K+128*K}, {v(vL16)}
    v_mov_b32 {v(vIDX)}, 0xdddddddd
    s_lshl_b32 {s(sM0)}, {s(sW)}, 11
    s_add_u32 {s(sKVB)}, {s(sKVB)}, {s(sM0)}""")
    if g == 0:
        a(f"""v_and_b32 v8, 31, v0
        v_mul_u32_u24 v8, 896, v8
        v_lshrrev_b32 v9, 5, v0
        v_lshl_add_u32 v8, v9, 3, v8
        s_mul_i32 {s(sP0DS)}, {s(sT3)}, {32*896}
        s_lshl_b32 {s(sT+2)}, {s(sFT)}, 6
        s_add_u32 {s(sP0DS)}, {s(sP0DS)}, {s(sT+2)}""")
    else:
        srd(SA, pB1, 3584)
        a(f"""s_lshl2_add_u32 {s(sT)}, {s(sSL)}, {s(sW4)}
        s_lshl_b32 {s(sP0ST)}, {s(sT)}, 6
        s_and_b32 {s(sT)}, {s(sW4)}, 1
        s_lshl1_add_u32 {s(sT)}, {s(sC7)}, {s(sT)}
        s_lshr_b32 {s(sT+3)}, {s(sW4)}, 1
        s_lshl1_add_u32 {s(sT)}, {s(sT)}, {s(sT+3)}
        s_mul_i32 {s(sW2)}, {s(sT)}, {56*K}
        s_add_u32 {s(sW2)}, {s(sW2)}, {W2T}
        s_cmp_lt_u32 {s(sI)}, 28
        s_cselect_b32 {s(sW2)}, {s(sW2)}, {OOB}
        v_and_b32 {v(vB1)}, 31, v0
        v_lshlrev_b32 {v(vB1)}, 1, {v(vB1)}""")
    if g: a("v_and_b32 v13, 15, v0\nv_lshlrev_b32 v13, 7, v13\nv_and_b32 v14, 7, v0\nv_lshlrev_b32 v14, 7, v14")
    for r in range(16): a(f"v_mov_b32 {v(vO+r)}, 0")

BARS = {1: 2, 4: 4, 8: 6, 12: 8, 16: 10, 20: 12, 24: 14, 28: 15}
def attention(role):
    stamp(6)
    def rd(dst, n, part, tag):
        addr = SLOT[n // 2] * 16 * K + (n % 2) * 4 * K + part * K
        a(f"ds_read_b128 {v(dst,4)}, {v(vA0 + addr // (64*K))} offset:{addr % (64*K)}", tag)
    vm = {n: [] for n in range(-1, 32)}
    sched = {3: -1, 4: 0, 5: 1, 6: 2}
    for be in range(7, 16): sched[be] = 4 * ((be - 3) // 2) + (be - 3) % 2
    bl = sorted(BARS)
    for n, n2 in zip(bl, bl[1:] + [32]): assert BARS[n] >= min((n2 + 1) // 2, 15)
    for be, s0 in sched.items():
        prev = [p for p in range(be) if SLOT[p] == SLOT[be]]
        if prev: assert any(b <= s0 and 2 * prev[-1] <= b - 2 for b in BARS), (be, s0)
        assert s0 < min(b for b, u in BARS.items() if u >= be)
        def first(be=be):
            a(f"""s_add_u32 {s(sT)}, {s(sRB)}, {be}
            s_and_b32 {s(sT)}, {s(sT)}, 15
            s_lshl_b32 {s(sT)}, {s(sT)}, 14
            s_add_u32 m0, {s(sM0)}, {SLOT[be]*16*K}
            s_add_u32 {s(sT)}, {s(sT)}, {s(sKVB)}""")
            a(f"buffer_load_dwordx4 {v(vL16)}, {s(SWS,4)}, {s(sT)} offen sc1 lds", ("kv", be))
        def second(be=be):
            a(f"buffer_load_dwordx4 {v(vL16)}, {s(SWS,4)}, {s(sT)} offen offset:{K} sc1 lds", ("kv", be))
        vm[s0] += [first, second]
    def spread(ops, lo, hi):
        lvl = 0
        while sum(max(0, lvl - len(vm[n])) for n in range(lo, hi)) < len(ops): lvl += 1
        room = [n for n in range(lo, hi) for _ in range(max(0, lvl - len(vm[n])))]
        extra = len(room) - len(ops)
        top = [n for n in range(lo, hi) if lvl > len(vm[n])]
        for t in range(extra): room.remove(top[(t * len(top)) // extra])
        for n, o in zip(room, ops): vm[n].append(o)
    CK = cfg.p0ck
    if role == 0:
        ops = []
        for p in range(32):
            def ld(p=p):
                a(f"buffer_load_dwordx4 {v(vPF+4*p,4)}, {v(vL16)}, {s(SWS,4)}, {s(sPF)} offen offset:{(p%4)*K} sc1", "pf")
                if p % 4 == 3: a(f"s_add_u32 {s(sPF)}, {s(sPF)}, {4*K}")
            ops.append(ld)
        vm[3] += [I(f"buffer_load_dwordx2 {v(vXR+2*g,2)}, v8, {s(SX,4)}, {s(sP0DS)} offen offset:{16*g}") for g in range(4)]
        spread(ops, CK, 29)
    else:
        ops = []
        for p in range(28):
            def ld(p=p):
                a(f"s_add_u32 m0, {s(sP0DS)}, {(p//4)*16*K}\ns_nop 0")
                a(f"buffer_load_dwordx4 {v(vL16)}, {s(SWS,4)}, {s(sPF)} offen offset:{(p%4)*K} sc1 lds", ("w1", p // 4))
                if p % 4 == 3: a(f"s_add_u32 {s(sPF)}, {s(sPF)}, {4*K}")
            ops.append(ld)
        spread(ops[20:], 28, 31)
        ops = ops[:20]
        for p in range(cfg.w2n0):
            ops.insert(((p + 1) * 20) // cfg.w2n0 + p, lambda: w2load(1, 0))
        vm[CK - 2].append(I(f"buffer_load_dwordx4 {v(vFL,4)}, {v(vL16)}, {s(SWS,4)}, {s(sP0D)} offen sc1", "fl"))
        vm[3].append(I(f"buffer_load_ushort {v(vB1)}, {v(vB1)}, {s(SA,4)}, {s(sP0ST)} offen"))
        if cfg.touch:
            def t1():
                a(f"""s_mul_i32 {s(sT+1)}, {s(sT3)}, 28
                s_lshl1_add_u32 {s(sT+1)}, {s(sFT)}, {s(sT+1)}
                s_lshl_b32 {s(sT+1)}, {s(sT+1)}, 10
                s_add_u32 {s(sT+1)}, {s(sT+1)}, {HF}""")
                a(f"buffer_load_dword v12, v13, {s(SWS,4)}, {s(sT+1)} offen sc1")
            def t2():
                a(f"""s_lshl_b32 {s(sT+1)}, {s(sI)}, 10
                s_lshl_b32 {s(sT+2)}, {s(sJ)}, 15
                s_add_u32 {s(sT+1)}, {s(sT+1)}, {s(sT+2)}
                s_add_u32 {s(sT+1)}, {s(sT+1)}, {ST}""")
                a(f"buffer_load_dword v12, v14, {s(SWS,4)}, {s(sT+1)} offen sc1")
            def t3():
                a(f"""s_lshl_b32 {s(sT+1)}, {s(sJ)}, 10
                s_and_b32 {s(sT+2)}, {s(sW)}, 1
                s_lshl_b32 {s(sT+2)}, {s(sT+2)}, 13
                s_add_u32 {s(sT+1)}, {s(sT+1)}, {s(sT+2)}
                s_add_u32 {s(sT+1)}, {s(sT+1)}, {FC}""")
                a(f"buffer_load_dword v12, v14, {s(SWS,4)}, {s(sT+1)} offen sc1")
            ops += [t3] if cfg.hs else [t1, t2, t3]
        spread(ops, CK, 28)
    def flagcheck():
        a.wait(vm=["fl"])
        a(f"""Lp0c:
        v_xor_b32 {v(vFL)}, {v(vFL)}, {v(vFL+1)}
        v_xor_b32 {v(vFL+1)}, {v(vFL+1)}, {v(vFL+2)}
        v_xor_b32 {v(vFL+2)}, {v(vFL+2)}, {v(vFL+3)}
        v_xor_b32 {v(vFL+3)}, {s(sP0M)}, {v(vFL+3)}
        v_or3_b32 {v(vFL)}, {v(vFL)}, {v(vFL+1)}, {v(vFL+2)}
        v_or_b32 {v(vFL)}, {v(vFL)}, {v(vFL+3)}
        v_cmp_ne_u32 vcc, 0, {v(vFL)}
        s_cbranch_vccnz Lp0r
        Lp0d:""")
        ool.append(f"""Lp0r:
        buffer_load_dwordx4 {v(vFL,4)}, {v(vL16)}, {s(SWS,4)}, {s(sP0D)} offen sc1
        s_waitcnt vmcnt(0)
        {spin_tail('Lp0c', 'Lp0d')}""")
    def bar(n):
        stamp(40 + bl.index(n))
        if role == 1 and n == CK: flagcheck()
        a.wait(vm=[("kv", b) for b in range(1, BARS[n] + 1)])
        a("s_barrier")
        if n == 1: rd(vK0, 2, 0, ("k0", 2)); rd(vK1, 2, 1, ("k1", 2))
    S = [vS0, vS1]
    rd(vK0, 0, 0, ("k0", 0)); rd(vK1, 0, 1, ("k1", 0))
    for n in range(-1, 32):
        cur, nxt = S[n % 2], S[(n + 1) % 2]
        if n >= 0:
            if n in BARS and role == 1: bar(n)
            a("s_setprio 0")
            for r in range(16):
                if r == 8: a("s_setprio 1")
                a(f"v_exp_f32 {v(cur+r)}, {v(cur+r)}")
        if n in BARS and role == 0: bar(n)
        a("s_setprio 2")
        def q0():
            if n < 31: a.wait(lg=["q", ("k0", n + 1)]); a(mfma(nxt, vK0, vQ, None))
            if n < 30 and n != 0: rd(vK0, n + 2, 0, ("k0", n + 2))
        def q1():
            if n < 31: a.wait(lg=[("k1", n + 1)]); a(mfma(nxt, vK1, vQ + 4, nxt))
            if n < 30 and n != 0: rd(vK1, n + 2, 1, ("k1", n + 2))
        def p0():
            if n >= 0: a.wait(lg=[("v0", n)]); a(smf(vO, vV0, cur, vIDX))
            if n < 31: rd(vV0, n + 1, 2, ("v0", n + 1))
        def p1():
            if n >= 0: a.wait(lg=[("v1", n)]); a(smf(vO, vV1, cur + 8, vIDX))
            if n < 31: rd(vV1, n + 1, 3, ("v1", n + 1))
        seq = [p0, q0, q1, p1] if (n == 1 and role == 0) else [q0, q1, p0, p1]
        ops = list(vm[n])
        for f in seq:
            f()
            if ops: ops.pop(0)()
        assert not ops
    a(f"""s_lshl_b32 {s(sT)}, {s(sW4)}, 12
    s_add_u32 {s(sT)}, {s(sT)}, {L_RED}
    v_add_u32 v3, {s(sT)}, {v(vL16)}""")

def post_A():
    stamp(7)
    XR = 88
    for g in range(4): a(f"ds_write_b128 v3, {v(vO+4*g,4)} offset:{g*K}")
    a(f"""v_mov_b32 v6, {s(sG)}
    s_waitcnt lgkmcnt(0)
    s_barrier""")
    stamp(33)
    a("s_waitcnt vmcnt(0)")
    for t in range(8):
        a(f"v_lshlrev_b32 {v(vO+2*t)}, 16, {v(XR+t)}\nv_and_b32 {v(vO+2*t+1)}, 0xffff0000, {v(XR+t)}")
    a(f"""s_lshl_b32 {s(sT)}, {s(sT3)}, 7
    s_add_u32 {s(sT)}, {s(sT)}, {FB}
    v_and_b32 v4, 15, v0
    v_lshlrev_b32 v4, 2, v4
    s_lshl_b32 {s(sT+1)}, {s(sT3)}, 15
    s_add_u32 {s(sT+1)}, {s(sT+1)}, {OF}
    s_lshl_b32 {s(sT+2)}, {s(sW)}, 12
    s_add_u32 {s(sT+1)}, {s(sT+1)}, {s(sT+2)}
    s_add_u32 {s(sT+3)}, {s(sT+1)}, {16*K}
    s_add_u32 m0, {s(sT+2)}, {L_O}
    v_add_u32 v3, {L_O}, {v(vL16)}""")
    if cfg.spoll: poll_s(sT)
    else: poll_g(sT, 4, 5)
    a.reset_q()
    stamp(9)
    for n in range(4): a(f"buffer_load_dwordx4 {v(vL16)}, {s(SWS,4)}, {s(sT+1)} offen offset:{n*K} sc1 lds")
    a(f"s_add_u32 m0, {s(sT+2)}, {L_O+16*K}\ns_nop 0")
    for n in range(4): a(f"buffer_load_dwordx4 {v(vL16)}, {s(SWS,4)}, {s(sT+3)} offen offset:{n*K} sc1 lds")
    a(f"""s_or_b32 {s(sT)}, {s(sB)}, {s(sW)}
    s_cmp_eq_u32 {s(sT)}, 0
    s_cselect_b32 {s(sT)}, 0, {OOB}
    s_mul_i32 {s(sT+1)}, {s(sT3)}, 28
    s_lshl1_add_u32 {s(sT+1)}, {s(sFT)}, {s(sT+1)}
    s_lshl_b32 {s(sT+1)}, {s(sT+1)}, 10
    s_add_u32 {s(sT+1)}, {s(sT+1)}, {HF}
    s_lshl_b32 {s(sT+2)}, {s(sJ)}, 5
    s_add_u32 {s(sT+2)}, {s(sT+2)}, {s(sI)}
    s_lshl_b32 {s(sT+2)}, {s(sT+2)}, 8
    s_add_u32 {s(sT+2)}, {s(sT+2)}, {s(sW)}
    s_lshl_b32 {s(sT+2)}, {s(sT+2)}, 2
    s_add_u32 {s(sT+2)}, {s(sT+2)}, {ST}
    s_lshl_b32 {s(sT+3)}, {s(sT3)}, 5
    s_add_u32 {s(sT+3)}, {s(sT+3)}, {s(sFT)}
    s_lshl_b32 {s(sT+3)}, {s(sT+3)}, 2
    s_add_u32 {s(sT+3)}, {s(sT+3)}, {FC}
    s_waitcnt vmcnt(0)
    s_barrier""")
    stamp(10)
    a(f"""buffer_store_dword v6, {v(vF0)}, {s(SWS,4)}, {s(sT)} offen sc1
    s_cmp_ge_u32 {s(sFT)}, 14
    s_cbranch_scc1 LA_p3d""")
    NB = 12; OB = 32
    def ord_(n): a(f"ds_read_b128 {v(OB+4*(n%NB),4)}, v3 offset:{n*K}", ("o", n))
    for n in range(NB - 1): ord_(n)
    for n in range(32):
        a.wait(lg=[("o", n)])
        a(mfma(vO, vPF + 4 * n, OB + 4 * (n % NB), vO))
        if n + NB - 1 < 32: ord_(n + NB - 1)
    stamp(35)
    for u in range(2):
        for t in range(4): a(cvt(OB + 4 * u + t, vO + 8 * u + 2 * t, vO + 8 * u + 2 * t + 1))
        a(f"buffer_store_dwordx4 {v(OB+4*u,4)}, {v(vL16)}, {s(SWS,4)}, {s(sT+1)} offen offset:{u*K}{SC1(cfg.hs)}")
    a(f"v_add_f32 v8, {v(vO)}, {v(vO+1)}\nv_mul_f32 v9, {v(vO)}, {v(vO)}\nv_fmac_f32 v9, {v(vO+1)}, {v(vO+1)}")
    for r in range(2, 16): a(f"v_add_f32 v8, v8, {v(vO+r)}\nv_fmac_f32 v9, {v(vO+r)}, {v(vO+r)}")
    a(f"""v_permlane32_swap_b32 v8, v9
    v_add_f32 v8, v8, v9
    buffer_store_dword v8, {v(vL16)}, {s(SWS,4)}, {s(sT+2)} offen{SC1(cfg.hs)}""")
    publish(sT + 3, 5, thru=cfg.hs)
    a("LA_p3d:")
    stamp(11)
    a(f"s_cmp_ge_u32 {s(sI)}, 28\ns_cbranch_scc1 LA_idle")
    HB, AC, SS, AUG = 128, 16, 96, 240
    a(f"""s_lshl_b32 {s(sT)}, {s(sT4)}, 7
    s_add_u32 {s(sT)}, {s(sT)}, {FC}
    v_min_u32 v4, 13, v0
    v_lshlrev_b32 v4, 2, v4
    s_mul_i32 {s(sT+1)}, {s(sT4)}, {28*K}
    s_add_u32 {s(sT+1)}, {s(sT+1)}, {HF}
    s_lshl_b32 {s(sT+2)}, {s(sT4)}, 12
    s_add_u32 {s(sT+2)}, {s(sT+2)}, {ST}
    s_mul_i32 {s(sT+3)}, {s(sT4)}, 14
    s_add_u32 {s(sT+3)}, {s(sT+3)}, {s(sSL)}
    s_lshl_b32 {s(sT+3)}, {s(sT+3)}, 13
    s_add_u32 {s(sT+3)}, {s(sT+3)}, {HH}
    s_lshl_b32 {s(sT+4)}, {s(sT4)}, 5
    s_add_u32 {s(sT+4)}, {s(sT+4)}, {s(sSL)}
    s_lshl_b32 {s(sT+4)}, {s(sT+4)}, 2
    s_add_u32 {s(sT+4)}, {s(sT+4)}, {FD}
    v_add_u32 v3, {64*K}, {v(vL16)}
    v_add_u32 v7, {128*K}, {v(vL16)}""")
    wbufs = [80, 84, 88, 92, 112, 116, 120, 124, 244, 248, 252]
    NB = len(wbufs)
    seq = [(t, q) for q in range(28) for t in range(3)] + [(t, 28) for t in range(3)] + [(3, q) for q in range(29)]
    nr = [0]
    def wread():
        if nr[0] >= len(seq): return
        t, q = seq[nr[0]]; b = wbufs[nr[0] % NB]; nr[0] += 1
        off = (q // 4) * 16 * K + t * 4 * K + (q % 4) * K if q < 28 else L_AUG1 + t * K
        a(f"ds_read_b128 {v(b,4)}, {v([vL16, 3, 7][off // (64*K)])} offset:{off % (64*K)}", ("w", t, q))
    for _ in range(NB - 1): wread()
    poll(sT, 4, 5)
    a.reset_q(lg=a.lgq)
    stamp(12)
    loads = []
    for q in range(28):
        def ld(q=q):
            a(f"buffer_load_dwordx4 {v(HB+4*q,4)}, {v(vL16)}, {s(SWS,4)}, {s(sT+1)} offen offset:{(q%4)*K} sc1", ("h", q))
            if q % 4 == 3: a(f"s_add_u32 {s(sT+1)}, {s(sT+1)}, {4*K}")
        loads.append(ld)
    for t in range(4):
        loads.insert(22 + 2 * t, I(f"buffer_load_dwordx{4 if t < 3 else 2} {v(SS+4*t,4 if t < 3 else 2)}, {v(vL16)}, {s(SWS,4)}, {s(sT+2)} offen offset:{t*K} sc1", "st"))
    for _ in range(cfg.hwin): loads.pop(0)()
    def it(n):
        t, q = seq[n]
        def f():
            if n in (0, 1, 30, 66, 84): stamp(50 + (0, 1, 30, 66, 84).index(n))
            a.wait(vm=[("h", q)] if q < 28 else None, lg=[("w",) + seq[min(n + 1 - n % 2, len(seq) - 1)]])
            a(mfma(AC + 16 * t, wbufs[n % NB], HB + 4 * q if q < 28 else AUG, AC + 16 * t if q else None))
            if loads and n % 2 == 1: loads.pop(0)()
            if n == cfg.p4b: a("s_barrier")
            wread()
        return f
    stats = [lambda: a.wait(vm=["st"])]
    for t in range(2, 14): stats += [I(f"v_add_f32 {v(SS+t%2)}, {v(SS+t%2)}, {v(SS+t)}")]
    stats += [I(x) for x in f"""v_add_f32 v8, {v(SS)}, {v(SS+1)}
    v_mov_b32 {v(AUG+2)}, 0
    v_mov_b32 v9, v8
    v_mov_b32 {v(AUG+3)}, 0
    v_and_b32 v12, 31, v0
    v_permlane32_swap_b32 v8, v9
    v_mul_f32 v8, {f32(-1.0/448)}, v8
    v_mul_f32 v9, {f32(1.0/448)}, v9
    v_fma_f32 v9, -v8, v8, v9
    v_max_f32 v9, 0, v9
    v_add_f32 v9, {f32(1e-5)}, v9
    v_sqrt_f32 v10, v9
    v_rcp_f32 v9, v9
    {cvt(AUG, 8, 8)}
    v_and_b32 v11, 0xffff0000, {v(AUG)}
    v_sub_f32 v8, v8, v11
    {cvt(11, 10, 10)}
    v_and_b32 v11, 0xffff0000, v11
    v_sub_f32 v11, v10, v11
    v_cndmask_b32 v10, v10, v11, {s(sUP,2)}
    {cvt(AUG+1, 8, 10)}
    s_lshl_b32 {s(sT)}, {s(sW)}, 7
    s_add_u32 {s(sT)}, {s(sT)}, {L_R2}
    v_lshl_add_u32 v10, v12, 2, {s(sT)}
    ds_write_b32 v10, v9""".split("\n")]
    interleave([it(n) for n in range(84)], stats, 70, 3)
    assert not loads
    def ep(t):
        o = []
        for u in range(2):
            o += [I(f"v_mul_f32 {v(AC+16*t+r)}, {v(AC+16*t+r)}, |{v(AC+16*t+r)}|") for r in range(8 * u, 8 * u + 8)]
            d = SS + 8 * (t % 2) + 4 * u
            o += [I(cvt(d + k, AC + 16 * t + 8 * u + 2 * k, AC + 16 * t + 8 * u + 2 * k + 1)) for k in range(4)]
            o += [I(f"v_pk_max_i16 {v(d+k)}, {v(d+k)}, 0") for k in range(4)]
            o += [I(f"buffer_store_dwordx4 {v(d,4)}, {v(vL16)}, {s(SWS,4)}, {s(sT+3)} offen offset:{(2*(t%2)+u)*K}{SC1(cfg.hhs)}")]
        if t == 1: o += [I(f"s_add_u32 {s(sT+3)}, {s(sT+3)}, {4*K}")]
        return o
    interleave([it(n) for n in range(84, len(seq))], ep(0) + ep(1) + ep(2), 2, 4)
    stamp(13)
    a(f"""v_lshrrev_b32 v8, 3, v0
    s_lshl_b32 {s(sT)}, {s(sW)}, 3
    v_add_u32 v8, {s(sT)}, v8
    v_and_b32 v9, 7, v0
    v_lshrrev_b32 v10, 1, v9
    v_lshlrev_b32 v10, 10, v10
    v_lshl_add_u32 v10, v8, 4, v10
    v_and_b32 v11, 1, v9
    v_lshl_add_u32 v10, v11, 3, v10""")
    for f in ep(3): f()
    publish(sT + 4, 5, thru=cfg.hhs)
    a("s_waitcnt lgkmcnt(0)\ns_barrier")
    stamp(14)
    RES, B2 = 16, 24
    srd(SA, pB2, 896)
    srd(SB_, pOUT, 2048 * 896)
    a(f"""s_mul_i32 {s(sT)}, {s(sT5)}, 7
    s_add_u32 {s(sT)}, {s(sT)}, {s(sC7)}
    s_lshl_b32 {s(sT)}, {s(sT)}, 12
    s_add_u32 {s(sT)}, {s(sT)}, {HF}
    s_add_u32 {s(sT+1)}, {s(sT)}, {28*K}
    s_lshl_b32 {s(sT+2)}, {s(sC7)}, 7
    v_lshlrev_b32 v11, 4, v9
    buffer_load_dwordx2 {v(RES,2)}, v10, {s(SWS,4)}, {s(sT)} offen sc1
    buffer_load_dwordx2 {v(RES+2,2)}, v10, {s(SWS,4)}, {s(sT)} offen offset:512 sc1
    buffer_load_dwordx2 {v(RES+4,2)}, v10, {s(SWS,4)}, {s(sT+1)} offen sc1
    buffer_load_dwordx2 {v(RES+6,2)}, v10, {s(SWS,4)}, {s(sT+1)} offen offset:512 sc1
    buffer_load_dwordx4 {v(B2,4)}, v11, {s(SA,4)}, {s(sT+2)} offen
    s_lshl_b32 {s(sT)}, {s(sT5)}, 7
    s_add_u32 {s(sT)}, {s(sT)}, {FD}
    v_and_b32 v4, 31, v0
    v_min_u32 v4, 13, v4
    v_and_b32 v5, 32, v0
    v_add_lshl_u32 v4, v4, v5, 2
    s_mul_i32 {s(sT+1)}, {s(sT5)}, {112*K}
    s_lshr_b32 {s(sT+3)}, {s(sW)}, 1
    s_mul_i32 {s(sT+3)}, {s(sT+3)}, {56*K}
    s_add_u32 {s(sT+1)}, {s(sT+1)}, {s(sT+3)}
    s_and_b32 {s(sT+3)}, {s(sW)}, 1
    s_lshl_b32 {s(sT+3)}, {s(sT+3)}, 12
    s_add_u32 {s(sT+1)}, {s(sT+1)}, {s(sT+3)}
    s_add_u32 {s(sT+1)}, {s(sT+1)}, {HH}
    s_lshl_b32 {s(sM0)}, {s(sW)}, 12""")
    poll(sT, 4, 5)
    a.reset_q()
    stamp(16)
    def hdma(c):
        a(f"s_add_u32 m0, {s(sM0)}, {(c%7)*16*K}")
        if c: a(f"s_add_u32 {s(sT+1)}, {s(sT+1)}, {8*K if c != 7 else (112-48)*K}")
        else: a("s_nop 0")
        for n in range(4): a(f"buffer_load_dwordx4 {v(vL16)}, {s(SWS,4)}, {s(sT+1)} offen offset:{n*K} sc1 lds", ("hh", c))
    D = cfg.p5d
    for c in range(D): hdma(c)
    BF = 32
    def consts():
        a(f"""v_mul_u32_u24 v3, {PROW}, v8
        v_lshl_add_u32 v3, v9, 5, v3
        v_add_u32 v3, {L_PART}, v3
        s_and_b32 {s(sT)}, {s(sT5)}, 3
        s_lshl_b32 {s(sT)}, {s(sT)}, 7
        s_add_u32 {s(sT)}, {s(sT)}, {L_R2}
        v_lshl_add_u32 v4, v8, 2, {s(sT)}
        ds_read_b32 v12, v4
        ds_read_b32 v13, v4 offset:128
        v_mul_u32_u24 v5, 896, v8
        v_add_u32 v5, v5, v11
        s_mul_i32 {s(sT)}, {s(sT5)}, {32*896}
        s_add_u32 {s(sT+2)}, {s(sT+2)}, {s(sT)}""")
        for tt in range(2):
            for t in range(4):
                a(f"""v_lshlrev_b32 v6, 16, {v(B2+t)}
                v_and_b32 v7, 0xffff0000, {v(B2+t)}
                v_lshlrev_b32 {v(BF+8*tt+2*t)}, 16, {v(RES+4*tt+t)}
                v_and_b32 {v(BF+8*tt+2*t+1)}, 0xffff0000, {v(RES+4*tt+t)}
                v_add_f32 {v(BF+8*tt+2*t)}, {v(BF+8*tt+2*t)}, v6
                v_add_f32 {v(BF+8*tt+2*t+1)}, {v(BF+8*tt+2*t+1)}, v7""")
    def final(tt):
        P = 48
        for kh in range(2):
            for z in range(2):
                a(f"ds_read_b128 {v(P+8*kh+4*z,4)}, v3 offset:{(2*tt+kh)*32*PROW+16*z}")
        a("s_waitcnt lgkmcnt(0)")
        for r in range(8): a(f"v_add_f32 {v(P+r)}, {v(P+r)}, {v(P+8+r)}")
        for r in range(8): a(f"v_fma_f32 {v(P+r)}, {v(P+r)}, {v(12+tt)}, {v(BF+8*tt+r)}")
        for t in range(4): a(cvt(P + 16 + 4 * tt + t, P + 2 * t, P + 2 * t + 1))
        a(f"buffer_store_dwordx4 {v(P+16+4*tt,4)}, v5, {s(SB_,4)}, {s(sT+2)} offen{SC1(cfg.outs)}")
        if tt == 0: a(f"s_add_u32 {s(sT+2)}, {s(sT+2)}, {32*896}")
    for c in range(14):
        a.wait(vm=[("hh", c)])
        a("s_barrier")
        if c + D < 14: hdma(c + D)
        if c == 1: consts()
        if c == 12: final(0)
    stamp(17)
    a("s_barrier")
    final(1)
    stamp(18)
    stamp_flush(3)
    a("s_endpgm")
    a("LA_idle:")
    if cfg.wb:
        a(f"""s_cmp_lg_u32 {s(sI)}, 28
        s_cbranch_scc1 LA_idle2
        s_cmp_lg_u32 {s(sW)}, 0
        s_cbranch_scc1 LA_idle2
        buffer_wbl2 sc1
        s_lshl_b32 {s(sT)}, {s(sJ)}, 10
        s_add_u32 {s(sT)}, {s(sT)}, {FD}
        v_and_b32 v4, 7, v0
        v_lshrrev_b32 v5, 3, v0
        v_lshlrev_b32 v5, 5, v5
        v_add_lshl_u32 v4, v4, v5, 2""")
        poll(sT, 4, 5)
        a(f"s_add_u32 {s(sT)}, {s(sT)}, 24")
        poll(sT, 4, 5)
        a("buffer_wbl2 sc1\nLA_idle2:")
    stamp_flush(3)
    a("s_endpgm")

def fallback():
    mx = 8
    def tile_loads(kv):
        o = [f"buffer_load_dwordx4 {v(vK0+4*t,4)}, {v(vL16)}, {s(SWS,4)}, {s(sT+6)} offen offset:{t*K} sc1" for t in range(kv)]
        return "\n".join(o)
    t = f"""Lfb:
    s_lshl_b32 {s(sT+6)}, {s(sH)}, 18
    s_add_u32 {s(sT+6)}, {s(sT+6)}, {KV}
    s_mov_b32 {s(sT+7)}, 64
    v_cndmask_b32 {v(vQ+6)}, {v(vQ+6)}, 0, {s(sUP,2)}
    v_mov_b32 {v(mx)}, 0xff800000
    Lfb1:
    {tile_loads(2)}
    s_waitcnt vmcnt(0)
    {mfma(vS0, vK0, vQ, None)}
    {mfma(vS0, vK1, vQ+4, vS0)}
    s_add_u32 {s(sT+6)}, {s(sT+6)}, {4*K}
    s_sub_u32 {s(sT+7)}, {s(sT+7)}, 1
    s_cmp_lg_u32 {s(sT+7)}, 0
    """
    for r in range(0, 16, 2): t += f"v_max3_f32 {v(mx)}, {v(mx)}, {v(vS0+r)}, {v(vS0+r+1)}\n"
    t += f"""s_cbranch_scc1 Lfb1
    v_mov_b32 v9, {v(mx)}
    v_permlane32_swap_b32 v9, {v(mx)}
    v_max_f32 {v(mx)}, v9, {v(mx)}
    v_sub_f32 {v(mx)}, 0, {v(mx)}
    v_and_b32 v9, 0xffff0000, {v(mx)}
    v_sub_f32 {v(mx)}, {v(mx)}, v9
    v_and_b32 v10, 0xffff0000, {v(mx)}
    v_sub_f32 {v(mx)}, {v(mx)}, v10
    v_mov_b32 v11, 0
    {cvt(9, 9, 10)}
    {cvt(10, mx, 11)}
    v_cndmask_b32 {v(vQ+6)}, {v(vQ+6)}, v9, {s(sUP,2)}
    v_cndmask_b32 {v(vQ+7)}, {v(vQ+7)}, v10, {s(sUP,2)}
    s_sub_u32 {s(sT+6)}, {s(sT+6)}, {256*K}
    s_mov_b32 {s(sT+7)}, 64
    """
    for r in range(16): t += f"v_mov_b32 {v(vO+r)}, 0\n"
    t += f"""Lfb2:
    {tile_loads(4)}
    s_waitcnt vmcnt(0)
    {mfma(vS0, vK0, vQ, None)}
    {mfma(vS0, vK1, vQ+4, vS0)}
    s_add_u32 {s(sT+6)}, {s(sT+6)}, {4*K}
    s_sub_u32 {s(sT+7)}, {s(sT+7)}, 1
    s_cmp_lg_u32 {s(sT+7)}, 0
    """
    for r in range(16): t += f"v_exp_f32 {v(vS0+r)}, {v(vS0+r)}\n"
    t += f"""{smf(vO, vV0, vS0, vIDX)}
    {smf(vO, vV1, vS0+8, vIDX)}
    s_nop 7
    s_cbranch_scc1 Lfb2
    s_nop 7
    s_branch Lfbd"""
    ool.append(t)

def post_B():
    stamp(7)
    a(f"""s_lshl2_add_u32 {s(sT+2)}, {s(sRB)}, {s(sW4)}
    s_lshl_b32 {s(sT+3)}, {s(sT+2)}, 4
    s_add_u32 {s(sT+3)}, {s(sT+3)}, {s(sH)}
    s_lshl_b32 {s(sT+3)}, {s(sT+3)}, 11
    s_add_u32 {s(sT+3)}, {s(sT+3)}, {OF}
    s_lshl_b32 {s(sT+2)}, {s(sT+2)}, 5
    s_add_u32 {s(sT+2)}, {s(sT+2)}, {s(sH)}
    s_lshl_b32 {s(sT+2)}, {s(sT+2)}, 2
    s_add_u32 {s(sT+2)}, {s(sT+2)}, {FB}
    s_mov_b32 {s(sT+4)}, {f32(2.0**40)}
    s_mov_b32 {s(sT+5)}, {f32(2.0**-40)}
    s_setprio 3
    s_barrier""")
    stamp(33)
    for g in (1, 0, 2, 3): a(f"ds_read_b128 {v(vS0+4*g,4)}, v3 offset:{g*K}", ("r", g))
    for g in (1, 0, 2, 3):
        a.wait(lg=[("r", g)])
        for t in (3, 0, 1, 2): a(f"v_add_f32 {v(vO+4*g+t)}, {v(vO+4*g+t)}, {v(vS0+4*g+t)}")
        if g == 1:
            a(f"""v_cmp_ngt_f32 vcc, {s(sT+4)}, {v(vO+7)}
            v_cmp_nlt_f32 {s(sCM,2)}, {s(sT+5)}, {v(vO+7)}""")
    a(f"s_or_b64 vcc, vcc, {s(sCM,2)}")
    a("s_branch Lfb" if cfg.force_fallback else "s_cbranch_scc1 Lfb")
    a(f"Lfbd:\nv_rcp_f32 v5, {v(vO+7)}\nv_mov_b32 v6, {s(sG)}")
    for u in range(2):
        for r in range(8): a(f"v_mul_f32 {v(vO+8*u+r)}, {v(vO+8*u+r)}, v5")
        for t in range(4): a(cvt(vS0 + 4 * u + t, vO + 8 * u + 2 * t, vO + 8 * u + 2 * t + 1))
        a(f"buffer_store_dwordx4 {v(vS0+4*u,4)}, {v(vL16)}, {s(SWS,4)}, {s(sT+3)} offen offset:{u*K} sc1")
    stamp(34)
    fallback()
    a(f"""s_mul_i32 {s(sT+3)}, {s(sT4)}, 14
    s_add_u32 {s(sT+3)}, {s(sT+3)}, {s(sSL)}
    s_lshl_b32 {s(sT+3)}, {s(sT+3)}, 13
    s_add_u32 {s(sT+3)}, {s(sT+3)}, {HH}
    v_add_u32 v3, {s(sP0DS)}, {v(vL16)}
    v_add_u32 v12, {64*K}, v3
    v_lshlrev_b32 v13, 7, v0
    s_cmp_ge_u32 {s(sI)}, 28
    s_waitcnt vmcnt(0)
    buffer_store_dword v6, {v(vF0)}, {s(SWS,4)}, {s(sT+2)} offen sc1
    s_setprio 0""")
    stamp(8)
    a("s_cbranch_scc1 LB_idle")
    w2load(cfg.w2n3, 0)
    a("v_mov_b32 v6, 0\nv_mov_b32 v7, 0")
    for c in range(7):
        for n in range(4): a(f"ds_read_b128 {v(32+16*(c%2)+4*n,4)}, {v(3 if c < 4 else 12)} offset:{(c%4)*16*K+n*K}", ("c", c))
        if c:
            for r in range(16): a(f"v_dot2c_f32_bf16 {v(6+r%2)}, {s(sONE)}, {v(32+16*((c-1)%2)+r)}")
        a.wait(lg=[("c", c)])
    for r in range(16): a(f"v_dot2c_f32_bf16 {v(6+r%2)}, {s(sONE)}, {v(32+r)}")
    a(f"""v_lshlrev_b32 v5, 16, {v(vB1)}
    v_mov_b32 v10, 0
    v_add_f32 v6, v6, v7
    {cvt(7, 6, 6)}
    v_and_b32 v7, 0xffff0000, v7
    v_sub_f32 v7, v6, v7
    {cvt(8, 6, 7)}
    {cvt(9, 6, 5)}
    v_mov_b32 v11, 0
    s_lshl_b32 {s(sT)}, {s(sW4)}, 10
    s_add_u32 {s(sT)}, {s(sT)}, {L_AUG1}
    v_add_u32 v4, {s(sT)}, {v(vL16)}""")
    stamp(15)
    a("s_barrier")
    a("ds_write_b128 v4, v[8:11]")
    if cfg.hhtouch: a(f"buffer_load_dword v14, v13, {s(SWS,4)}, {s(sT+3)} offen sc1")
    w2load(cfg.w2n1, 0)
    stamp(16)
    a("s_waitcnt lgkmcnt(0)\ns_barrier")
    stamp(9)
    w2load(56 - nw[0], 0)
    AC, HBUF, NB = 16, [4, 8, 12], 3
    a(f"""s_lshr_b32 {s(sT)}, {s(sW4)}, 1
    s_lshl_b32 {s(sT+1)}, {s(sT)}, 13
    v_and_b32 v4, 31, v0
    v_mul_u32_u24 v4, {PROW}, v4
    v_lshrrev_b32 v5, 5, v0
    v_lshl_add_u32 v4, v5, 4, v4
    s_mul_i32 {s(sT)}, {s(sT)}, {32*PROW}
    s_and_b32 {s(sT+2)}, {s(sW4)}, 1
    s_lshl_b32 {s(sT+2)}, {s(sT+2)}, 7
    s_add_u32 {s(sT)}, {s(sT)}, {s(sT+2)}
    s_add_u32 {s(sT)}, {s(sT)}, {L_PART}
    v_add_u32 v0, {s(sT)}, v4
    v_add_u32 v2, {s(sT+1)}, {v(vL16)}
    v_add_u32 v3, {64*K}, v2
    s_waitcnt vmcnt(0)""")
    if cfg.stamps: a("v_mov_b32 v1, v15"); vSTAMP[0] = 1
    stamp(10)
    a("s_barrier")
    nr = [0]
    def hread():
        n = nr[0]
        if n >= 112: return
        nr[0] += 1
        q = n % 56
        if q % 8 == 0:
            if n == 64: a.wait(lg=["pw"])
            a("s_barrier")
            stamp(48 + n // 8)
        off = (q // 8) * 16 * K + (q % 8) * K
        a(f"ds_read_b128 {v(HBUF[n%NB],4)}, {v(2 + off // (64*K))} offset:{off % (64*K)}", ("h", n))
    for _ in range(NB - 1): hread()
    for n in range(112):
        q = n % 56
        hread()
        a.wait(lg=[("h", n)] + (["pw"] if n == 56 else []))
        a(mfma(AC, wreg(q), HBUF[n % NB], AC if q else None))
        if q == 55:
            for g in range(4): a(f"ds_write_b128 v0, {v(AC+4*g,4)} offset:{(n//56)*64*PROW+32*g}", "pw")
    a("s_waitcnt lgkmcnt(0)")
    stamp(11)
    a("s_barrier")
    stamp_flush(3)
    a("s_endpgm")
    vSTAMP[0] = 15
    a("LB_idle:\ns_barrier")
    stamp_flush(3)
    a("Lend:\ns_endpgm")

prologue()
p1_A()
attention(0)
post_A()
p1_B()
attention(1)
post_B()
body = a.lines + [l.strip() for blk in ool for l in blk.split("\n") if l.strip()]
body, npad = pad_all(body, verbose="-v" in sys.argv[1])
print("instructions:", len(body), "pads:", npad, file=sys.stderr)

head = open("cdna_kernels/%s.s.ref" % NAME).read().split("; Override launch")[0]
out = head + f"; @launch grid=(256,1,1) block=(512,1,1) lds={LDS_SIZE}\n"
out += f""".amdgcn_target "amdgcn-amd-amdhsa--gfx950"
.text
.globl {KN}
.p2align 8
.type {KN},@function
{KN}:
"""
out += "\n".join(("" if l.endswith(":") else "    ") + l for l in body)
out += f"""
Lcode_end:
    s_endpgm
.section .rodata,"a"
.p2align 6
.amdhsa_kernel {KN}
  .amdhsa_next_free_vgpr 256
  .amdhsa_next_free_sgpr 102
  .amdhsa_accum_offset 256
  .amdhsa_group_segment_fixed_size 0
  .amdhsa_kernarg_size 88
  .amdhsa_user_sgpr_count 2
  .amdhsa_user_sgpr_kernarg_segment_ptr 1
  .amdhsa_system_sgpr_workgroup_id_x 1
.end_amdhsa_kernel
"""
open(sys.argv[1].replace("-v", ""), "w").write(out)
```

```python
import sys, struct, math
from asmlib import Asm, v, s, pad_all

NAME = "sequential_preLN__mha_block__dense_activation_squared_relu__prompt"
KN = NAME + "_kernel"

class Cfg:
    stamps = False
    force_global = False
    force_fallback = False
    permute = 0
    n1 = 96
    c0j, c0i = 1, 4
    wb = 0
    xq = 4
    ne = 2
    touch = 1
    w2win = 3
    w2n0, w2n3, w2n1 = 14, 8, 10
    hwin = 9
    xw = 3
    kvtouch = 0
    hhtouch = 0
    p4b = 48
    da, db, dm = -1, -1, 1
    dskew = 0
    spoll = 0
    p0ck = 8
    kvs, hs, hhs, wps, outs = 1, 0, 1, 0, 0
    p5d = 2
cfg = Cfg()
for arg in sys.argv[2:]:
    k, val = arg.split("=")
    setattr(cfg, k, int(val))

def SC1(x): return " sc1" if x else ""
def f32(x): return "0x%08x" % struct.unpack("<I", struct.pack("<f", x))[0]

EPOCH = 0
FW, FA, FC, FD = 0x1000, 0x2000, 0x4000, 0x6000
GOFF = 0x10000
FP0, FB = 0x8000, 0xA000
DBG = 0x40000
WP = 0x100000
WOT = 0x250000
W1T = 0x2C0000
W2T = 0x448000
ST = 0x5D0000
HF = 0x650000
OF = 0x810000
KV = 0xA10000
HH = 0xE10000
WS_SIZE = 0x1510000
OOB = 0x40000000

K = 1024
L_XR = 0
L_P0 = 48 * K
L_QX = 32 * K
L_MODE = 151 * K
L_W = 64 * K
L_AUG = 148 * K
L_RS = 152 * K
L_RED = 144 * K
L_O = 112 * K
L_AUG1 = 152 * K
L_R2 = 156 * K
L_PART = 112 * K
PROW = 272
LDS_SIZE = 160 * K

sB, sW, sJ, sI, sH, sRB = 2, 3, 4, 5, 6, 7
SX, SWS, SA, SB_ = 8, 12, 16, 20
sG, sL, sMODE, sSPIN = 24, 25, 26, 27
sT = 28
pX, pWQKV, pWO, pW1, pB1, pW2, pB2, pOUT = 36, 38, 40, 44, 46, 48, 50, 52
sCH = 56
sUP = 64
sPADV = 66
sW4 = 68
sKVB = 69
sPF = 70
sM0 = 71
sT3, sFT, sT4, sSL, sT5, sC7 = 72, 73, 74, 75, 76, 77
sP0D, sP0DS, sP0M, sP0ST = 78, 79, 80, 81
sCM = 82
sTS = 84
SC = 88
sONE = 92

a = Asm()
ool = []

def srd(d, p, nbytes):
    a(f"s_mov_b32 {s(d)}, {s(p)}\ns_mov_b32 {s(d+1)}, {s(p+1)}\ns_mov_b32 {s(d+2)}, {nbytes}\ns_mov_b32 {s(d+3)}, 0x20000")

def mfma(d, A, B, C):
    c = "0" if C is None else v(C, 16)
    return f"v_mfma_f32_32x32x16_bf16 {v(d,16)}, {v(A,4)}, {v(B,4)}, {c}"
def smf(d, A, B, idx): return f"v_smfmac_f32_32x32x32_bf16 {v(d,16)}, {v(A,4)}, {v(B,8)}, {v(idx)}"
def cvt(d, x, y): return f"v_cvt_pk_bf16_f32 {v(d)}, {v(x)}, {v(y)}"

vSTAMP = [15]
sSI = 93
def stamp(n):
    if n == cfg.da: a.lines.append("s_memrealtime s[96:97]")
    if n == cfg.db: a.lines.append("s_memrealtime s[98:99]")
    if cfg.dskew and n == 0:
        a.lines += ["s_memrealtime s[96:97]", "s_waitcnt lgkmcnt(0)", "v_mov_b32 v14, s96", f"s_lshl_b32 s98, {s(sB)}, 2", f"s_addk_i32 s98, 0x7000", "s_addk_i32 s98, 0x7000",
                    f"buffer_store_dword v14, {v(vF0)}, {s(SWS,4)}, s98 offen sc1"]
        a.vmq.append(None)
    if not cfg.stamps: return
    a.lines += [f"s_mov_b32 {s(sSI+1)}, m0", f"s_mov_b32 m0, {s(sSI)}", f"v_writelane_b32 {v(vSTAMP[0])}, {s(sTS)}, m0", f"s_mov_b32 m0, {s(sSI+1)}",
                f"{'s_memrealtime' if cfg.stamps == 2 else 's_memtime'} {s(sTS,2)}", f"s_mov_b32 {s(sSI)}, {n}"]
def stamp_flush(vt):
    if not cfg.stamps: return
    a("s_waitcnt lgkmcnt(0)")
    stamp(63)
    a(f"""v_mbcnt_lo_u32_b32 {v(vt)}, -1, 0
    v_mbcnt_hi_u32_b32 {v(vt)}, -1, {v(vt)}
    v_lshlrev_b32 {v(vt)}, 2, {v(vt)}
    s_lshl_b32 {s(sT)}, {s(sB)}, 3
    s_add_u32 {s(sT)}, {s(sT)}, {s(sW)}
    s_lshl_b32 {s(sT)}, {s(sT)}, 8
    s_add_u32 {s(sT)}, {s(sT)}, {DBG}
    buffer_store_dword {v(vSTAMP[0])}, {v(vt)}, {s(SWS,4)}, {s(sT)} offen""")

vL16 = 1
vF0 = 2
vTMP = 3

def publish(soff, vt, older=0, thru=0):
    l1, l2 = a.label("Lpubg"), a.label("Lpubd")
    a(f"""v_mov_b32 {v(vt)}, {s(sL)}
    s_cmp_lg_u32 {s(sMODE)}, 0
    s_waitcnt vmcnt({older})
    buffer_store_dword {v(vt)}, {v(vF0)}, {s(SWS,4)}, {s(soff)} offen
    s_cbranch_scc1 {l1}
    {l2}:""")
    ool.append(f"""{l1}:
    {"" if thru else "buffer_wbl2 sc1"}
    s_add_u32 {s(soff)}, {s(soff)}, {GOFF}
    s_waitcnt vmcnt(0)
    v_mov_b32 {v(vt)}, {s(sG)}
    buffer_store_dword {v(vt)}, {v(vF0)}, {s(SWS,4)}, {s(soff)} offen sc1
    s_branch {l2}""")

def spin_tail(loop, done):
    return f"""s_sub_u32 {s(sSPIN)}, {s(sSPIN)}, 1
    s_cbranch_scc0 {loop}
    s_mov_b32 {s(sSPIN)}, 0
    s_branch {done}"""

def poll(soff, vaddr, vt):
    lp, lg, ld, lr, lgd = a.label("Lpoll"), a.label("Lpollg"), a.label("Lpolld"), a.label("Lpollr"), a.label("Lpollgd")
    a(f"""s_cmp_lg_u32 {s(sMODE)}, 0
    s_cbranch_scc1 {lg}
    {lp}:
    buffer_load_dword {v(vt)}, {v(vaddr)}, {s(SWS,4)}, {s(soff)} offen sc1
    s_waitcnt vmcnt(0)
    v_cmp_ne_u32 vcc, {s(sL)}, {v(vt)}
    s_cbranch_vccnz {lr}
    {ld}:""")
    ool.append(f"""{lr}:
    {spin_tail(lp, ld)}
    {lg}:
    s_add_u32 {s(sT+7)}, {s(soff)}, {GOFF}
    buffer_load_dword {v(vt)}, {v(vaddr)}, {s(SWS,4)}, {s(soff)} offen sc1
    buffer_load_dword {v(vt+1)}, {v(vaddr)}, {s(SWS,4)}, {s(sT+7)} offen sc1
    s_waitcnt vmcnt(0)
    v_cmp_ne_u32 vcc, {s(sL)}, {v(vt)}
    v_cmp_ne_u32 {s(sCM,2)}, {s(sG)}, {v(vt+1)}
    s_nop 1
    s_and_b64 vcc, vcc, {s(sCM,2)}
    s_cbranch_scc0 {lgd}
    s_sub_u32 {s(sSPIN)}, {s(sSPIN)}, 1
    s_cbranch_scc0 {lg}
    s_mov_b32 {s(sSPIN)}, 0
    {lgd}:
    buffer_inv sc1
    s_waitcnt vmcnt(0)
    s_branch {ld}""")

def poll_g(soff, vaddr, vt):
    lp, ld, lr = a.label("Lpoll"), a.label("Lpolld"), a.label("Lpollr")
    a(f"""{lp}:
    buffer_load_dword {v(vt)}, {v(vaddr)}, {s(SWS,4)}, {s(soff)} offen sc1
    s_waitcnt vmcnt(0)
    v_cmp_ne_u32 vcc, {s(sG)}, {v(vt)}
    s_cbranch_vccnz {lr}
    {ld}:""")
    ool.append(f"{lr}:\n{spin_tail(lp, ld)}")

def poll_s(soff):
    lp, ld, lr = a.label("Lpoll"), a.label("Lpolld"), a.label("Lpollr")
    F = 36 + 0
    a(f"""s_add_u32 {s(sCM)}, {s(SWS)}, {s(soff)}
    s_addc_u32 {s(sCM+1)}, {s(SWS+1)}, 0
    s_mov_b32 {s(sT+6)}, {s(sG)}
    s_mov_b32 {s(sT+7)}, {s(sG)}
    {lp}:
    s_load_dwordx8 {s(36,8)}, {s(sCM,2)}, 0 glc
    s_load_dwordx8 {s(56,8)}, {s(sCM,2)}, 32 glc
    s_waitcnt lgkmcnt(0)""")
    for base in (36, 56):
        for t in range(4): a(f"s_cmp_eq_u64 {s(base+2*t,2)}, {s(sT+6,2)}\ns_cbranch_scc0 {lr}")
    a(f"{ld}:")
    ool.append(f"{lr}:\n{spin_tail(lp, ld)}")

def interleave(main, fill, start, per):
    fill = list(fill)
    for n, g in enumerate(main):
        g()
        if n >= start:
            for _ in range(per):
                if fill: fill.pop(0)()
    for f in fill: f()

def I(text, tag=None): return lambda: a(text, tag)

def prologue():
    a(f"""s_cmp_ge_u32 {s(sB)}, 256
    s_cbranch_scc1 Lend
    s_load_dwordx4 {s(36,4)}, s[0:1], 0
    s_load_dwordx2 {s(SWS,2)}, s[0:1], 80
    v_lshrrev_b32 v3, 6, v0
    v_and_b32 v0, 63, v0
    v_readfirstlane_b32 {s(sW)}, v3""")
    if cfg.permute:
        a(f"""s_lshr_b32 {s(sT)}, {s(sB)}, {cfg.permute}
        s_lshl_b32 {s(sB)}, {s(sB)}, {8-cfg.permute}
        s_or_b32 {s(sB)}, {s(sB)}, {s(sT)}
        s_and_b32 {s(sB)}, {s(sB)}, 255""")
    if cfg.stamps: a(f"v_mov_b32 v15, 0\ns_mov_b32 {s(sSI)}, 62\ns_mov_b32 {s(sTS)}, 0")
    a(f"""s_and_b32 {s(sJ)}, {s(sB)}, 7
    s_lshr_b32 {s(sI)}, {s(sB)}, 3
    s_and_b32 {s(sW4)}, {s(sW)}, 3
    v_lshlrev_b32 {v(vL16)}, 4, v0
    v_cmp_eq_u32 vcc, 0, v0
    v_mov_b32 v3, {OOB}
    s_mov_b32 {s(SWS+2)}, {WS_SIZE}
    s_mov_b32 {s(SWS+3)}, 0x20000
    v_cndmask_b32 {v(vF0)}, v3, 0, vcc
    s_cmp_ge_u32 {s(sW)}, 4
    s_cbranch_scc1 LB_start""")

def chunks():
    a(f"""s_and_b32 {s(sT)}, {s(sI)}, 1
    s_lshl1_add_u32 {s(sH)}, {s(sJ)}, {s(sT)}
    s_lshr_b32 {s(sRB)}, {s(sI)}, 1
    s_mul_i32 {s(sT)}, {s(sT)}, {cfg.c0i}
    s_mul_i32 {s(sT+1)}, {s(sJ)}, {cfg.c0j}
    s_add_u32 {s(sT)}, {s(sT)}, {s(sT+1)}
    s_mul_i32 {s(sT+1)}, {s(sT)}, 37
    s_lshr_b32 {s(sT+1)}, {s(sT+1)}, 8
    s_mul_i32 {s(sT+1)}, {s(sT+1)}, 7
    s_sub_u32 {s(sCH)}, {s(sT)}, {s(sT+1)}""")
    for q in range(1, 7):
        a(f"""s_add_u32 {s(sCH+q)}, {s(sCH+q-1)}, 1
        s_cmp_eq_u32 {s(sCH+q)}, 7
        s_cselect_b32 {s(sCH+q)}, 0, {s(sCH+q)}""")

def roles(t):
    a(f"""s_load_dwordx8 {s(40,8)}, s[0:1], 16
    s_load_dwordx4 {s(48,4)}, s[0:1], 48
    s_load_dwordx2 {s(pOUT,2)}, s[0:1], 64
    s_mov_b32 {s(sUP)}, 0
    s_mov_b32 {s(sUP+1)}, -1
    s_mov_b32 {s(sPADV)}, 0x88008800
    s_mov_b32 {s(sPADV+1)}, 0x88008800
    s_mov_b32 {s(sSPIN)}, 0x20000
    s_mov_b32 {s(sONE)}, 0x3f803f80
    s_getreg_b32 {s(sL)}, hwreg(HW_REG_XCC_ID, 0, 4)
    s_lshr_b32 {s(t)}, {s(sI)}, 2
    s_lshl3_add_u32 {s(sT3)}, {s(sJ)}, {s(t)}
    s_and_b32 {s(t)}, {s(sI)}, 3
    s_lshl2_add_u32 {s(sFT)}, {s(t)}, {s(sW4)}
    s_cmp_ge_u32 {s(sI)}, 14
    s_cselect_b32 {s(t)}, 1, 0
    s_mul_i32 {s(t+1)}, {s(t)}, 14
    s_sub_u32 {s(sSL)}, {s(sI)}, {s(t+1)}
    s_lshl1_add_u32 {s(t)}, {s(sJ)}, {s(t)}
    s_lshl2_add_u32 {s(sT4)}, {s(t)}, {s(sW4)}
    s_mul_i32 {s(t)}, {s(sI)}, 37
    s_lshr_b32 {s(t)}, {s(t)}, 8
    s_mul_i32 {s(t+1)}, {s(t)}, 7
    s_sub_u32 {s(sC7)}, {s(sI)}, {s(t+1)}
    s_lshl2_add_u32 {s(t)}, {s(sJ)}, {s(t)}
    s_lshl_b32 {s(sT5)}, {s(t)}, 1
    s_lshl_b32 {s(sKVB)}, {s(sH)}, 18
    s_add_u32 {s(sKVB)}, {s(sKVB)}, {KV}
    s_waitcnt lgkmcnt(0)""")

def nonce(vt):
    a(f"""v_readfirstlane_b32 {s(sG)}, {v(vt)}
    s_add_u32 {s(sL)}, {s(sL)}, 1
    s_lshl_b32 {s(sL)}, {s(sL)}, 27
    s_mul_i32 {s(sG)}, {s(sG)}, 0x9E3779B1
    s_add_u32 {s(sG)}, {s(sG)}, 0x7F4A7C15
    s_xor_b32 {s(sL)}, {s(sL)}, {s(sG)}""")

vO, vS0, vS1, vK0, vK1, vV0, vV1, vQ = 16, 32, 48, 64, 68, 72, 76, 80
vPF = 128

def p1_A():
    XF = 128
    aK, aV, aQ, WB, MH, ML, RR, PK = 16, 32, 48, 64, 96, 100, 104, 120
    NB = 8
    vXA, vXR = 240, 244
    s1, s2, rstd, vEP, vWA, vKS, vONE, vTC = 248, 249, 250, 251, 252, 253, 254, 255
    XQ = cfg.xq
    chunks()
    a(f"""v_lshrrev_b32 v3, 3, v0
    v_and_b32 v4, 7, v0
    v_lshrrev_b32 v5, 1, v3
    v_xor_b32 v4, v4, v5
    v_mul_u32_u24 v3, 896, v3
    v_lshl_add_u32 {v(vXA)}, v4, 4, v3
    v_xor_b32 {v(vXA+1)}, 64, {v(vXA)}
    v_add_u32 {v(vXA+1)}, {7168-1024}, {v(vXA+1)}
    v_add_u32 {v(vXA+2)}, {14336-2048}, {v(vXA)}
    v_add_u32 {v(vXA+3)}, {14336-2048}, {v(vXA+1)}
    s_lshl2_add_u32 {s(sT)}, {s(sRB)}, {s(sW)}
    s_mul_i32 {s(sT)}, {s(sT)}, {32*896}
    s_mul_i32 {s(sM0)}, {s(sW)}, {12*K}
    s_waitcnt lgkmcnt(0)""")
    srd(SX, pX, 2048 * 896)
    stamp(0)
    nx = [0]
    def xop():
        k = nx[0]
        if k >= 28: return
        nx[0] += 1
        q, g = divmod(k, 4)
        if g == 0:
            a(f"""s_lshl_b32 {s(sT+1)}, {s(sCH+q)}, 7
            s_add_u32 m0, {s(sM0)}, {(q%3)*4096}
            s_add_u32 {s(sT+1)}, {s(sT+1)}, {s(sT)}""")
            if q >= 3: a.wait(lg=[("xr", q - 3)])
        a(f"buffer_load_dwordx4 {v(vXA+g)}, {s(SX,4)}, {s(sT+1)} offen offset:{1024*g} lds", ("x", k))
    XW = cfg.xw
    for k in range(XW): xop()
    roles(sT + 2)
    a(f"""v_and_b32 v3, 31, v0
    v_lshrrev_b32 v4, 5, v0
    v_bfe_u32 v5, v3, 1, 3
    v_xor_b32 v5, v5, v4
    v_lshlrev_b32 v6, 7, v3
    v_lshl_add_u32 v6, v5, 4, v6
    v_add_u32 {v(vXR)}, {s(sM0)}, v6
    v_xor_b32 {v(vXR+1)}, 32, {v(vXR)}
    v_xor_b32 {v(vXR+2)}, 64, {v(vXR)}
    v_xor_b32 {v(vXR+3)}, 0x60, {v(vXR)}
    v_mov_b32 {v(s1)}, 0
    v_mov_b32 {v(s2)}, 0
    v_add_u32 {v(vWA)}, {L_W}, {v(vL16)}
    v_mov_b32 {v(vONE)}, {s(sONE)}
    v_bfe_u32 v5, v3, 2, 1
    v_bfe_u32 v6, v3, 3, 1
    v_and_b32 v7, 0x33, v0
    v_lshl_or_b32 v7, v5, 3, v7
    v_lshl_or_b32 v7, v6, 2, v7
    v_lshlrev_b32 {v(vKS)}, 4, v7
    s_lshl_b32 {s(sT+4)}, {s(sW)}, 7
    s_add_u32 {s(sT+4)}, {s(sT+4)}, {L_RS}
    v_lshl_add_u32 v10, v3, 2, {s(sT+4)}
    v_lshl_add_u32 v11, v4, 4, {s(sT+4)}
    v_lshlrev_b32 v12, 7, v3""")
    a(f"""s_lshl2_add_u32 {s(sT+5)}, {s(sRB)}, {s(sW)}
    s_lshl_b32 {s(sT+2)}, {s(sT+5)}, 12
    s_add_u32 {s(sT+2)}, {s(sT+2)}, {s(sKVB)}
    s_lshl_b32 {s(sT+3)}, {s(sH)}, 6
    s_add_u32 {s(sT+3)}, {s(sT+3)}, {s(sT+5)}
    s_lshl_b32 {s(sT+3)}, {s(sT+3)}, 2
    s_add_u32 {s(sT+3)}, {s(sT+3)}, {FA}
    s_lshl_b32 {s(sT+4)}, {s(sW)}, 12
    v_add_u32 v4, {s(sT+4)}, {v(vKS)}
    v_add_u32 v5, {s(sT+4)}, {v(vL16)}
    s_lshl_b32 {s(sT+4)}, {s(sW)}, 11
    s_add_u32 {s(sT+4)}, {s(sT+4)}, {L_QX}
    v_add_u32 v6, {s(sT+4)}, {v(vL16)}
    v_add_u32 v7, {56*K}, {v(vWA)}
    v_mov_b32 v8, {L_MODE}
    s_lshl_b32 {s(sP0D)}, {s(sB)}, 2
    s_add_u32 {s(sP0D)}, {s(sP0D)}, {FP0}
    s_cmp_eq_u32 {s(sW)}, 0
    s_cselect_b32 {s(sP0D)}, {s(sP0D)}, {OOB}""")
    def xread(q):
        a.wait(vm=[("x", 4 * q + 3)])
        stamp(20 + q)
        for t in range(4):
            a(f"ds_read_b128 {v(XF+16*q+4*t,4)}, {v(vXR+t)} offset:{(q%3)*4096}", ("xr", q))
    def xdot(q, lo=0, hi=16):
        a.wait(lg=[("xr", q)])
        for r in range(lo, hi):
            a(f"v_dot2c_f32_bf16 {v(s1)}, {s(sONE)}, {v(XF+16*q+r)}\nv_dot2c_f32_bf16 {v(s2)}, {v(XF+16*q+r)}, {v(XF+16*q+r)}")
    for k in range(4 * XQ + 4):
        q, g = divmod(k, 4)
        a.wait(vm=[("x", k)])
        if g == 3: xread(q)
        if k == 4: a(f"buffer_load_dword {v(vEP)}, {v(vF0)}, {s(SWS,4)}, 0 offen sc1", "ep")
        xop()
        if k == 16: a.wait(vm=["ep"]); nonce(vEP)
        if q: xdot(q - 1, 4 * g, 4 * g + 4)
    while nx[0] < 28: xop()
    if cfg.kvtouch: a(f"buffer_load_dword {v(vTC)}, v12, {s(SWS,4)}, {s(sT+2)} offen sc1")
    xdot(XQ)
    fin = [I(x) for x in f"""v_mov_b32 v3, {v(s1)}
    v_mov_b32 v9, {v(s2)}
    v_mov_b32 v13, {s(sG)}
    v_permlane32_swap_b32 v3, {v(s1)}
    v_permlane32_swap_b32 v9, {v(s2)}
    v_add_f32 v3, v3, {v(s1)}
    v_add_f32 v9, v9, {v(s2)}
    v_mul_f32 v3, {f32(-1.0/448)}, v3
    v_mul_f32 v9, {f32(1.0/448)}, v9
    v_fma_f32 v9, -v3, v3, v9
    v_max_f32 v9, 0, v9
    v_add_f32 v9, {f32(1e-5)}, v9
    v_rsq_f32 {v(rstd)}, v9
    {cvt(MH, 3, 3)}
    ds_write_b32 v10, {v(rstd)}
    v_and_b32 v9, 0xffff0000, {v(MH)}
    v_sub_f32 v9, v3, v9
    {cvt(ML, 9, 9)}""".split("\n")]
    for t in range(1, 4): fin += [I(f"v_mov_b32 {v(MH+t)}, {v(MH)}"), I(f"v_mov_b32 {v(ML+t)}, {v(ML)}")]
    fin += [I(f"ds_read_b128 {v(RR+4*g,4)}, v11 offset:{32*g}", "rr") for g in range(4)]
    acc = [aK, aV, aQ]
    groups = [[0, 1], [2]] if cfg.ne == 2 else [[0], [1], [2]]
    reads = []
    for gr in groups: reads += [(m, q) for q in range(28) for m in gr] + [(m, 28) for m in gr]
    buf = {r: WB + 4 * (n % NB) for n, r in enumerate(reads)}
    nread = [0]
    def issue_read():
        if nread[0] >= len(reads): return
        m, q = reads[nread[0]]; nread[0] += 1
        if (m, q) == (0, 0):
            stamp(2)
            a("s_barrier")
            stamp(3)
            a("ds_read_b32 v14, v8", "mode")
        if q == 28 and any(m == gr[0] for gr in groups):
            a.wait(lg=[("xr", 6)])
            stamp(27 + 2 * m); a("s_barrier"); stamp(28 + 2 * m)
            if m == 2: a(f"buffer_store_dword v13, {v(vF0)}, {s(SWS,4)}, {s(sP0D)} offen sc1")
        off = (m * 28 + q) * K if q < 28 else (L_AUG - L_W) + m * K
        if off >= 56 * K: a(f"ds_read_b128 {v(buf[(m,q)],4)}, v7 offset:{off-56*K}", ("w", m, q))
        else: a(f"ds_read_b128 {v(buf[(m,q)],4)}, {v(vWA)} offset:{off}", ("w", m, q))
    for _ in range(NB - 1): issue_read()
    a("s_setprio 1")
    a.wait(lg=["mode"])
    a(f"v_readfirstlane_b32 {s(sMODE)}, v14")
    def item(m, q):
        def f():
            w = buf[(m, min(q, 28))]
            x = XF + 4 * q if q < 28 else (MH if q == 28 else ML)
            a.wait(lg=[("w", m, min(q, 28))])
            a(mfma(acc[m], x, w, acc[m] if q else None) if m == 1 else mfma(acc[m], w, x, acc[m] if q else None))
            if q != 28: issue_read()
        return f
    epK = [I(f"v_mul_f32 {v(aK+r)}, {v(aK+r)}, {v(rstd)}") for r in range(16)]
    epK += [I(f"v_cndmask_b32 {v(aK+12+t)}, {v(aK+12+t)}, {'1.0' if t < 3 else '0'}, {s(sUP,2)}") for t in range(4)]
    epK += [I(cvt(PK + t, aK + 2 * t, aK + 2 * t + 1)) for t in range(8)]
    epK += [I(f"buffer_store_dwordx4 {v(PK+4*u,4)}, {v(vKS)}, {s(SWS,4)}, {s(sT+2)} offen offset:{u*K}{SC1(cfg.kvs)}") for u in range(2)]
    epKl = [I(f"ds_write_b128 v4, {v(PK+4*u,4)} offset:{u*K}", "kw") for u in range(2)]
    epV = [lambda: a.wait(lg=["rr"])] + [I(f"v_mul_f32 {v(aV+r)}, {v(aV+r)}, {v(RR+r)}") for r in range(16)]
    epV += [I(cvt(RR + t, aV + 2 * t, aV + 2 * t + 1)) for t in range(8)]
    epV += [I(f"v_cndmask_b32 {v(RR+t)}, {v(RR+t)}, {v(vONE)}, {s(sPADV,2)}") for t in range(8)]
    epV += [I(f"buffer_store_dwordx4 {v(RR+4*u,4)}, {v(vL16)}, {s(SWS,4)}, {s(sT+2)} offen offset:{(2+u)*K}{SC1(cfg.kvs)}") for u in range(2)]
    epVl = [I(f"ds_write_b128 v5, {v(RR+4*u,4)} offset:{(2+u)*K}", "vw") for u in range(2)]
    g0 = groups[0]
    for c in range(5):
        if c + 2 > XQ: xread(c + 2)
        for q in range(4 * c, 4 * c + 4):
            for m in g0: item(m, q)()
        if c + 2 > XQ: xdot(c + 2)
    stamp(1)
    interleave([item(m, q) for q in range(20, 28) for m in g0], fin, 0, 4)
    for m in g0: item(m, 28)(); item(m, 29)()
    if cfg.ne == 2:
        interleave([item(2, q) for q in range(20)], epK + epV + epKl + epVl, 0, 4)
    else:
        interleave([item(1, q) for q in range(30)], epK + epKl, 1, 4)
        interleave([item(2, q) for q in range(20)], epV + epVl, 1, 4)
    interleave([item(2, q) for q in range(20, 30)], [I(f"v_mul_f32 {v(rstd)}, {f32(28**-0.5*math.log2(math.e))}, {v(rstd)}")], 0, 1)
    stamp(4)
    publish(sT + 3, 9, older=1, thru=cfg.kvs)
    for r in range(16): a(f"v_mul_f32 {v(aQ+r)}, {v(aQ+r)}, {v(rstd)}")
    for t in range(4): a(f"v_cndmask_b32 {v(aQ+12+t)}, {v(aQ+12+t)}, 0, {s(sUP,2)}")
    a(f"v_mul_f32 v9, {v(aQ)}, {v(aK)}\nv_mul_f32 v10, {v(aQ+1)}, {v(aK+1)}")
    for r in range(2, 16): a(f"v_fmac_f32 {v(9+r%2)}, {v(aQ+r)}, {v(aK+r)}")
    a("v_add_f32 v9, v9, v10")
    for t in range(3): a(cvt(vQ + t, aQ + 2 * t, aQ + 2 * t + 1))
    a("v_mov_b32 v10, v9")
    for t in range(3, 6): a(cvt(vQ + t, aQ + 2 * t, aQ + 2 * t + 1))
    a(f"""v_permlane32_swap_b32 v9, v10
    {cvt(vQ+7, aQ+14, aQ+15)}
    ds_write_b128 v6, {v(vQ,4)}
    v_add_f32 v9, v9, v10
    v_cndmask_b32 {v(aQ+12)}, {v(aQ+12)}, -v9, {s(sUP,2)}
    {cvt(vQ+6, aQ+12, aQ+13)}
    ds_write_b128 v6, {v(vQ+4,4)} offset:{K}""")
    a(f"""s_lshl_b32 {s(sPF)}, {s(sFT)}, 15
    s_add_u32 {s(sPF)}, {s(sPF)}, {WOT}
    s_cmp_lt_u32 {s(sFT)}, 14
    s_cselect_b32 {s(sPF)}, {s(sPF)}, {OOB}""")
    att_setup(0)
    stamp(5)
    a("s_waitcnt lgkmcnt(0)\ns_barrier")

SLOT = [0, 4, 5, 6, 7, 8, 9, 5, 6, 7, 8, 9, 5, 6, 7, 8]
PRE = 2

def p1_B():
    vRA, vT0, vT1, vST, vEP, vWA, vAU = 16, 17, 18, 19, 20, 21, 22
    FR = 32
    a("LB_start:")
    a.reset_q()
    a(f"""s_setprio 3
    v_lshrrev_b32 v3, 4, v0
    v_and_b32 v4, 15, v0
    v_mul_u32_u24 v5, 2688, v3
    v_lshl_add_u32 {v(vRA)}, v4, 4, v5
    s_add_u32 {s(sT)}, {s(sW4)}, 1
    s_cmp_eq_u32 {s(sT)}, 3
    s_cselect_b32 {s(sT)}, 0, {s(sT)}
    s_mul_i32 {s(sT)}, {s(sT)}, 896
    s_mul_i32 {s(sT+1)}, {s(sJ)}, 112
    s_and_b32 {s(sT+2)}, {s(sT+1)}, 127
    s_sub_u32 {s(sT+1)}, {s(sT+1)}, {s(sT+2)}
    s_add_u32 {s(sT)}, {s(sT)}, {s(sT+1)}
    s_mul_i32 {s(sT+1)}, {s(sI)}, {16*2688}
    s_add_u32 {s(sT)}, {s(sT)}, {s(sT+1)}
    s_mul_i32 {s(sT+3)}, {s(sW4)}, {28*K}
    s_add_u32 {s(sT+3)}, {s(sT+3)}, {L_W}
    s_mov_b32 m0, {s(sT+3)}
    s_mov_b32 {s(SA+2)}, {448*2688}
    s_mov_b32 {s(SA+3)}, 0x20000
    s_cmp_lt_u32 {s(sI)}, 28
    s_cselect_b32 {s(sT+4)}, {s(sW4)}, 3
    s_cmp_eq_u32 {s(sT+4)}, 3
    s_waitcnt lgkmcnt(0)
    s_mov_b32 {s(SA)}, {s(pWQKV)}
    s_mov_b32 {s(SA+1)}, {s(pWQKV+1)}""")
    stamp(0)
    a("s_cbranch_scc1 LB_norep")
    for n in range(4):
        a(f"buffer_load_dwordx4 {v(vRA)}, {s(SA,4)}, {s(sT)} offen offset:{n*K} lds")
        if n < 3: a(f"s_add_u32 {s(sT)}, {s(sT)}, {4*2688-K}")
    a(f"""buffer_load_dword {v(vEP)}, {v(vF0)}, {s(SWS,4)}, 0 offen sc1
    s_mul_i32 {s(sT+6)}, {s(sJ)}, 6
    s_add_u32 {s(sT+6)}, {s(sT+6)}, {s(sW4)}
    s_mul_i32 {s(sT+6)}, {s(sT+6)}, 28
    s_add_u32 {s(sT+6)}, {s(sT+6)}, {s(sI)}
    s_lshl_b32 {s(sT+6)}, {s(sT+6)}, 10
    s_add_u32 {s(sT+6)}, {s(sT+6)}, {WP}
    s_add_u32 {s(sT+7)}, {s(sT+6)}, {84*K}""")
    if not cfg.wps:
        a(f"""v_and_b32 v5, 7, v0
        v_bfe_u32 v6, v0, 3, 1
        v_mul_u32_u24 v6, {84*K}, v6
        v_lshl_add_u32 v5, v5, 7, v6
        buffer_load_dword v9, v5, {s(SWS,4)}, {s(sT+6)} offen sc1""")
    chunks()
    roles(sT)
    a(f"""v_lshrrev_b32 v3, 5, v0
    v_bfe_u32 v4, v0, 2, 2
    v_lshl_add_u32 v4, v3, 3, v4
    v_lshlrev_b32 v4, 8, v4
    v_bfe_u32 v5, v0, 4, 1
    v_lshl_add_u32 v4, v5, 5, v4
    v_and_b32 v5, 3, v0
    v_lshl_add_u32 v4, v5, 3, v4
    s_add_u32 {s(sT+2)}, {s(sT+2)}, {s(sT+3)}
    v_add_u32 {v(vT0)}, {s(sT+2)}, v4
    v_and_b32 v5, 31, v0
    v_cmp_lt_u32 vcc, 10, v5
    v_addc_co_u32 v6, vcc, 0, v5, vcc
    v_cmp_lt_u32 vcc, 13, v5
    v_addc_co_u32 v6, vcc, 0, v6, vcc
    v_cmp_lt_u32 vcc, 24, v5
    v_addc_co_u32 v6, vcc, 0, v6, vcc
    v_and_b32 v7, 1, v5
    v_lshlrev_b32 v7, 2, v7
    v_bfe_u32 v8, v5, 1, 1
    v_lshl_add_u32 v7, v8, 4, v7
    v_add_u32 v7, 11, v7
    v_cmp_lt_u32 vcc, 27, v5
    v_cndmask_b32 v6, v6, v7, vcc
    s_cmp_eq_u32 {s(sW4)}, 1
    s_cselect_b64 vcc, -1, 0
    v_cndmask_b32 v6, v5, v6, vcc
    v_lshl_add_u32 v6, v3, 5, v6
    v_lshlrev_b32 {v(vST)}, 4, v6""")
    stamp(20)
    a("s_waitcnt vmcnt(0)")
    stamp(22)
    for e in range(2):
        for z in range(2):
            a(f"ds_read_b64_tr_b16 {v(FR+4*e+2*z,2)}, {v(vT0)} offset:{56*e+1024*z}")
    a(f"""s_waitcnt lgkmcnt(2)
    buffer_store_dwordx4 {v(FR,4)}, {v(vST)}, {s(SWS,4)}, {s(sT+6)} offen{SC1(cfg.wps)}
    s_waitcnt lgkmcnt(0)
    buffer_store_dwordx4 {v(FR+4,4)}, {v(vST)}, {s(SWS,4)}, {s(sT+7)} offen{SC1(cfg.wps)}
    s_branch LB_rep
    LB_norep:""")
    a(f"""buffer_load_dword {v(vEP)}, {v(vF0)}, {s(SWS,4)}, 0 offen sc1
    s_getpc_b64 {s(SC,2)}
    Lpc:
    s_sub_u32 {s(SC)}, {s(SC)}, Lpc-{KN}
    s_subb_u32 {s(SC+1)}, {s(SC+1)}, 0
    s_mov_b32 {s(SC+2)}, Lcode_end-{KN}
    s_mov_b32 {s(SC+3)}, 0x20000
    s_lshl_b32 {s(sT)}, {s(sI)}, 11
    v_and_b32 v5, 15, v0
    v_lshlrev_b32 v5, 7, v5
    v_and_b32 v6, 3, v0
    v_bfe_u32 v7, v0, 2, 1
    v_lshlrev_b32 v6, 7, v6
    v_lshl_add_u32 v6, v7, 12, v6
    s_lshl_b32 {s(sT+1)}, {s(sJ)}, 9
    s_add_u32 {s(sT+1)}, {s(sT+1)}, {FW}
    buffer_load_dword v9, v6, {s(SWS,4)}, {s(sT+1)} offen sc1
    buffer_load_dword v10, v5, {s(SC,4)}, {s(sT)} offen""")
    chunks()
    roles(sT)
    a("s_waitcnt vmcnt(2)\nLB_rep:")
    nonce(vEP)
    stamp(1)
    a(f"""s_lshl_b32 {s(sT)}, {s(sJ)}, 9
    s_add_u32 {s(sT)}, {s(sT)}, {FW}
    s_lshl2_add_u32 {s(sT+1)}, {s(sI)}, {s(sW4)}
    s_lshl2_add_u32 {s(sT+1)}, {s(sT+1)}, {s(sT)}
    v_mov_b32 v3, {s(sL)}
    v_lshlrev_b32 v4, 3, v0
    s_mov_b32 {s(sMODE)}, 0
    s_mov_b32 {s(sT+2)}, {0 if cfg.force_global else cfg.n1}
    s_waitcnt vmcnt(0)
    buffer_store_dword v3, {v(vF0)}, {s(SWS,4)}, {s(sT+1)} offen""")
    if cfg.force_global: a("s_branch LB_wglob")
    a(f"""LB_wpoll:
    buffer_load_dwordx2 v[6:7], v4, {s(SWS,4)}, {s(sT)} offen sc1
    s_waitcnt vmcnt(0)
    v_cmp_ne_u32 vcc, {s(sL)}, v6
    v_cmp_ne_u32 {s(sCM,2)}, {s(sL)}, v7
    s_nop 1
    s_or_b64 vcc, vcc, {s(sCM,2)}
    s_cbranch_scc1 LB_wretry
    LB_wdone:""")
    ool.append(f"""LB_wretry:
    s_sub_u32 {s(sT+2)}, {s(sT+2)}, 1
    s_cbranch_scc0 LB_wpoll
    LB_wglob:
    s_mov_b32 {s(sMODE)}, 1
    buffer_wbl2 sc1
    s_add_u32 {s(sT+1)}, {s(sT+1)}, {GOFF}
    s_add_u32 {s(sT+2)}, {s(sT)}, {GOFF}
    v_mov_b32 v3, {s(sG)}
    s_waitcnt vmcnt(0)
    buffer_store_dword v3, {v(vF0)}, {s(SWS,4)}, {s(sT+1)} offen sc1
    LB_wgl:
    buffer_load_dwordx2 v[6:7], v4, {s(SWS,4)}, {s(sT)} offen sc1
    buffer_load_dwordx2 v[8:9], v4, {s(SWS,4)}, {s(sT+2)} offen sc1
    s_waitcnt vmcnt(0)
    v_cmp_ne_u32 vcc, {s(sL)}, v6
    v_cmp_ne_u32 {s(sCM,2)}, {s(sG)}, v8
    s_nop 1
    s_and_b64 {s(sT+4,2)}, vcc, {s(sCM,2)}
    v_cmp_ne_u32 vcc, {s(sL)}, v7
    v_cmp_ne_u32 {s(sCM,2)}, {s(sG)}, v9
    s_nop 1
    s_and_b64 vcc, vcc, {s(sCM,2)}
    s_or_b64 vcc, vcc, {s(sT+4,2)}
    s_cbranch_scc0 LB_wgd
    s_sub_u32 {s(sSPIN)}, {s(sSPIN)}, 1
    s_cbranch_scc0 LB_wgl
    s_mov_b32 {s(sSPIN)}, 0
    LB_wgd:
    buffer_inv sc1
    s_waitcnt vmcnt(0)
    s_branch LB_wdone""")
    a.reset_q()
    stamp(2)
    a(f"""s_mul_i32 {s(sT)}, {s(sH)}, 84
    s_add_u32 {s(sT)}, {s(sT)}, {s(sW4)}
    s_lshl_b32 {s(sT)}, {s(sT)}, 10
    s_add_u32 {s(sT)}, {s(sT)}, {WP}
    s_lshl_b32 {s(sM0)}, {s(sW4)}, 10""")
    for q in range(7): a(f"s_lshl_b32 {s(sCH+q)}, {s(sCH+q)}, 12\ns_add_u32 {s(sCH+q)}, {s(sCH+q)}, {s(sT)}")
    groups = [[0, 1], [2]] if cfg.ne == 2 else [[0], [1], [2]]
    def wdma(gr):
        for q in range(7):
            for m in gr:
                a(f"s_add_u32 m0, {s(sM0)}, {L_W+(m*28+4*q)*K}")
                if m: a(f"s_add_u32 {s(sCH+q)}, {s(sCH+q)}, {28*K}")
                else: a("s_nop 0")
                a(f"buffer_load_dwordx4 {v(vL16)}, {s(SWS,4)}, {s(sCH+q)} offen sc1 lds", ("w", m))
    wdma(groups[0]); wdma(groups[1])
    stamp(23)
    a(f"""v_mov_b32 v3, {s(sMODE)}
    v_mov_b32 v4, {L_MODE}
    ds_write_b32 v4, v3
    s_add_u32 {s(sT)}, {s(sM0)}, {L_W}
    v_add_u32 {v(vWA)}, {s(sT)}, {v(vL16)}
    s_lshl_b32 {s(sT)}, {s(sW4)}, 2
    s_add_u32 {s(sT)}, {s(sT)}, {L_AUG}
    v_add_u32 {v(vAU)}, {s(sT)}, {v(vL16)}
    s_cmp_lt_u32 {s(sB)}, 32
    s_cbranch_scc1 LB_p0o
    s_cmp_lt_u32 {s(sB)}, 144
    s_cbranch_scc1 LB_p01""")
    srd(SB_, pW2, 1792 * 896)
    a(f"""s_sub_u32 {s(sT)}, {s(sB)}, 144
    s_mul_i32 {s(sT+1)}, {s(sT)}, {16*896}
    s_lshl_b32 {s(sP0D)}, {s(sT)}, 10
    s_add_u32 {s(sP0D)}, {s(sP0D)}, {W2T}
    s_mov_b32 {s(sP0DS)}, {112*K}
    s_mov_b32 {s(sP0ST)}, 896
    s_mov_b32 {s(sP0M)}, -1
    s_mov_b32 {s(sT+2)}, 1024
    s_branch LB_p0j
    LB_p01:""")
    srd(SB_, pW1, 448 * 3584)
    a(f"""s_sub_u32 {s(sT)}, {s(sB)}, 32
    s_and_b32 {s(sT+3)}, {s(sT)}, 3
    s_lshr_b32 {s(sT)}, {s(sT)}, 2
    s_mul_i32 {s(sT+1)}, {s(sT)}, {16*3584}
    s_mul_i32 {s(sT+4)}, {s(sT+3)}, 896
    s_add_u32 {s(sT+1)}, {s(sT+1)}, {s(sT+4)}
    s_mul_i32 {s(sT+3)}, {s(sT+3)}, {14*28}
    s_add_u32 {s(sT)}, {s(sT)}, {s(sT+3)}
    s_lshl_b32 {s(sP0D)}, {s(sT)}, 10
    s_add_u32 {s(sP0D)}, {s(sP0D)}, {W1T}
    s_mov_b32 {s(sP0DS)}, {28*K}
    s_mov_b32 {s(sP0ST)}, 3584
    s_mov_b32 {s(sP0M)}, -1
    s_mov_b32 {s(sT+2)}, 1024
    s_branch LB_p0j
    LB_p0o:""")
    srd(SB_, pWO, 448 * 896)
    a(f"""s_mul_i32 {s(sT+1)}, {s(sB)}, {14*896}
    s_lshl_b32 {s(sP0D)}, {s(sB)}, 10
    s_add_u32 {s(sP0D)}, {s(sP0D)}, {WOT}
    s_mov_b32 {s(sP0DS)}, {32*K}
    s_mov_b32 {s(sP0ST)}, 896
    s_mov_b32 {s(sP0M)}, 0xffff
    s_mov_b32 {s(sT+2)}, 768
    LB_p0j:
    s_lshl_b32 {s(sT+3)}, {s(sW4)}, 8
    s_add_u32 {s(sT+1)}, {s(sT+1)}, {s(sT+3)}
    s_lshl_b32 {s(sT+3)}, {s(sP0DS)}, 2
    s_mul_i32 {s(sT+3)}, {s(sT+3)}, {s(sW4)}
    s_add_u32 {s(sP0D)}, {s(sP0D)}, {s(sT+3)}
    v_lshrrev_b32 v3, 4, v0
    v_and_b32 v4, 15, v0
    v_mul_u32_u24 v5, {s(sP0ST)}, v3
    v_lshl_add_u32 {v(vRA)}, v4, 4, v5
    s_lshl_b32 {s(sP0ST)}, {s(sP0ST)}, 2
    s_sub_u32 {s(sP0ST)}, {s(sP0ST)}, {K}
    s_lshl_b32 {s(sT+3)}, {s(sW4)}, 12
    s_add_u32 {s(sT+3)}, {s(sT+3)}, {L_P0}
    v_lshrrev_b32 v3, 5, v0
    v_bfe_u32 v4, v0, 2, 2
    v_lshlrev_b32 v4, 8, v4
    v_bfe_u32 v5, v0, 4, 1
    v_lshl_add_u32 v4, v5, 5, v4
    v_and_b32 v5, 3, v0
    v_lshl_add_u32 v4, v5, 3, v4
    v_add_u32 v4, {s(sT+3)}, v4
    v_lshl_add_u32 {v(vT0)}, v3, 10, v4
    v_mad_u32_u24 {v(vT1)}, v3, {s(sT+2)}, v4""")
    def colsum(m):
        for q in range(7):
            off = (m * 28 + 4 * q) * K
            if off >= 56 * K and q == 0: a(f"v_add_u32 {v(vWA)}, {56*K}, {v(vWA)}")
            a(f"ds_read_b128 {v(FR+4*q,4)}, {v(vWA)} offset:{off % (56*K)}", ("c", q))
        for q in range(7):
            a.wait(lg=[("c", q)])
            for t in range(4):
                r = FR + 4 * q + t
                if q == 0 and t == 0: a(f"v_and_b32 v3, 0xffff0000, {v(r)}\nv_lshlrev_b32 v4, 16, {v(r)}")
                else: a(f"v_and_b32 v5, 0xffff0000, {v(r)}\nv_lshlrev_b32 v6, 16, {v(r)}\nv_add_f32 v3, v3, v5\nv_add_f32 v4, v4, v6")
        a(f"""v_add_f32 v3, v3, v4
        {cvt(4, 3, 3)}
        v_and_b32 v4, 0xffff0000, v4
        v_sub_f32 v4, v3, v4
        {cvt(4, 3, 4)}
        ds_write_b32 {v(vAU)}, v4 offset:{m*K}""")
    a.wait(vm=[("w", m) for m in groups[0]])
    a("s_waitcnt lgkmcnt(0)")
    stamp(3)
    a("s_barrier")
    if cfg.ne == 1: wdma(groups[2])
    a(f"s_mov_b32 m0, {s(sT+3)}\ns_setprio 0")
    for n in range(4):
        a(f"buffer_load_dwordx4 {v(vRA)}, {s(SB_,4)}, {s(sT+1)} offen offset:{n*K} lds", "p0")
        if n < 3: a(f"s_add_u32 {s(sT+1)}, {s(sT+1)}, {s(sP0ST)}")
    def p0():
        a.wait(vm=["p0"])
        for t in range(4):
            a(f"ds_read_b64_tr_b16 {v(FR+4*t,2)}, {v(vT0)} offset:{64*t}", ("t", t))
            a(f"ds_read_b64_tr_b16 {v(FR+4*t+2,2)}, {v(vT1)} offset:{64*t+2048}", ("t", t))
        for t in range(4):
            a.wait(lg=[("t", t)])
            a(f"v_and_b32 {v(FR+4*t+3)}, {s(sP0M)}, {v(FR+4*t+3)}")
            if t == 2: a(f"s_cmp_eq_u32 {s(sW4)}, 3\ns_cselect_b32 {s(sP0D)}, {OOB}, {s(sP0D)}")
            a(f"buffer_store_dwordx4 {v(FR+4*t,4)}, {v(vL16)}, {s(SWS,4)}, {s(sP0D)} offen sc1")
            if t < 3: a(f"s_add_u32 {s(sP0D)}, {s(sP0D)}, {s(sP0DS)}")
    colsum(0)
    if cfg.ne == 1:
        a.wait(vm=[("w", 1)])
        a("s_waitcnt lgkmcnt(0)\ns_barrier")
    colsum(1)
    stamp(12)
    p0()
    stamp(13)
    a("s_barrier")
    colsum(2)
    a("s_waitcnt vmcnt(0) lgkmcnt(0)")
    stamp(14)
    a("s_barrier")
    stamp(4)
    a(f"""s_lshl_b32 {s(sT)}, {s(sH)}, 8
    s_add_u32 {s(sT)}, {s(sT)}, {FA}
    v_lshlrev_b32 v4, 2, v0""")
    poll(sT, 4, 6)
    a.reset_q()
    stamp(5)
    a(f"s_lshl_b32 {s(sT+1)}, {s(sW4)}, 12")
    for be in range(1, PRE + 1):
        a(f"""s_add_u32 {s(sT)}, {s(sRB)}, {be}
        s_and_b32 {s(sT)}, {s(sT)}, 15
        s_lshl_b32 {s(sT)}, {s(sT)}, 14
        s_add_u32 {s(sT)}, {s(sT)}, {s(sKVB)}
        s_add_u32 m0, {s(sT+1)}, {SLOT[be]*16*K}
        s_add_u32 {s(sT)}, {s(sT)}, {s(sT+1)}""")
        for n in range(4):
            a(f"buffer_load_dwordx4 {v(vL16)}, {s(SWS,4)}, {s(sT)} offen offset:{n*K} sc1 lds", ("kv", be))
    a(f"""s_lshl2_add_u32 {s(sT)}, {s(sSL)}, {s(sW4)}
    s_mul_i32 {s(sPF)}, {s(sT)}, {28*K}
    s_add_u32 {s(sPF)}, {s(sPF)}, {W1T}
    s_cmp_lt_u32 {s(sI)}, 28
    s_cselect_b32 {s(sPF)}, {s(sPF)}, {OOB}
    s_cmp_eq_u32 {s(sW)}, 7
    s_cselect_b32 {s(sP0D)}, {FP0}, {OOB}
    s_cselect_b32 {s(sP0M)}, {s(sG)}, 0
    s_lshl_b32 {s(sP0DS)}, {s(sW4)}, 12
    s_lshl_b32 {s(sT+4)}, {s(sW4)}, 11
    s_add_u32 {s(sT+4)}, {s(sT+4)}, {L_QX}
    v_add_u32 v9, {s(sT+4)}, {v(vL16)}""")
    att_setup(1)
    a("s_barrier")
    a(f"""ds_read_b128 {v(vQ,4)}, v9
    ds_read_b128 {v(vQ+4,4)}, v9 offset:{K}""", "q")

vXR, vB1, sW2 = 88, 88, 95
def wreg(q): return vPF + 4 * q if q < 32 else 32 + 4 * (q - 32)
nw = [0]
def w2load(cnt, win):
    for _ in range(cnt):
        p = nw[0]; nw[0] += 1
        if win and p >= win: a.wait(vm=[("w2", p - win)])
        a(f"buffer_load_dwordx4 {v(wreg(p),4)}, {v(vL16)}, {s(SWS,4)}, {s(sW2)} offen offset:{(p%4)*K} sc1", ("w2", p))
        if p % 4 == 3: a(f"s_add_u32 {s(sW2)}, {s(sW2)}, {4*K}")
vA0, vIDX, vFL = 4, 7, 8
def att_setup(g):
    a(f"""v_add_u32 {v(vA0)}, {g*8*K}, {v(vL16)}
    v_add_u32 {v(vA0+1)}, {g*8*K+64*K}, {v(vL16)}
    v_add_u32 {v(vA0+2)}, {g*8*K+128*K}, {v(vL16)}
    v_mov_b32 {v(vIDX)}, 0xdddddddd
    s_lshl_b32 {s(sM0)}, {s(sW)}, 11
    s_add_u32 {s(sKVB)}, {s(sKVB)}, {s(sM0)}""")
    if g == 0:
        a(f"""v_and_b32 v8, 31, v0
        v_mul_u32_u24 v8, 896, v8
        v_lshrrev_b32 v9, 5, v0
        v_lshl_add_u32 v8, v9, 3, v8
        s_mul_i32 {s(sP0DS)}, {s(sT3)}, {32*896}
        s_lshl_b32 {s(sT+2)}, {s(sFT)}, 6
        s_add_u32 {s(sP0DS)}, {s(sP0DS)}, {s(sT+2)}""")
    else:
        srd(SA, pB1, 3584)
        a(f"""s_lshl2_add_u32 {s(sT)}, {s(sSL)}, {s(sW4)}
        s_lshl_b32 {s(sP0ST)}, {s(sT)}, 6
        s_and_b32 {s(sT)}, {s(sW4)}, 1
        s_lshl1_add_u32 {s(sT)}, {s(sC7)}, {s(sT)}
        s_lshr_b32 {s(sT+3)}, {s(sW4)}, 1
        s_lshl1_add_u32 {s(sT)}, {s(sT)}, {s(sT+3)}
        s_mul_i32 {s(sW2)}, {s(sT)}, {56*K}
        s_add_u32 {s(sW2)}, {s(sW2)}, {W2T}
        s_cmp_lt_u32 {s(sI)}, 28
        s_cselect_b32 {s(sW2)}, {s(sW2)}, {OOB}
        v_and_b32 {v(vB1)}, 31, v0
        v_lshlrev_b32 {v(vB1)}, 1, {v(vB1)}""")
    if g: a("v_and_b32 v13, 15, v0\nv_lshlrev_b32 v13, 7, v13\nv_and_b32 v14, 7, v0\nv_lshlrev_b32 v14, 7, v14")
    for r in range(16): a(f"v_mov_b32 {v(vO+r)}, 0")

BARS = {1: 2, 4: 4, 8: 6, 12: 8, 16: 10, 20: 12, 24: 14, 28: 15}
def attention(role):
    stamp(6)
    def rd(dst, n, part, tag):
        addr = SLOT[n // 2] * 16 * K + (n % 2) * 4 * K + part * K
        a(f"ds_read_b128 {v(dst,4)}, {v(vA0 + addr // (64*K))} offset:{addr % (64*K)}", tag)
    vm = {n: [] for n in range(-1, 32)}
    sched = {3: -1, 4: 0, 5: 1, 6: 2}
    for be in range(7, 16): sched[be] = 4 * ((be - 3) // 2) + (be - 3) % 2
    bl = sorted(BARS)
    for n, n2 in zip(bl, bl[1:] + [32]): assert BARS[n] >= min((n2 + 1) // 2, 15)
    for be, s0 in sched.items():
        prev = [p for p in range(be) if SLOT[p] == SLOT[be]]
        if prev: assert any(b <= s0 and 2 * prev[-1] <= b - 2 for b in BARS), (be, s0)
        assert s0 < min(b for b, u in BARS.items() if u >= be)
        def first(be=be):
            a(f"""s_add_u32 {s(sT)}, {s(sRB)}, {be}
            s_and_b32 {s(sT)}, {s(sT)}, 15
            s_lshl_b32 {s(sT)}, {s(sT)}, 14
            s_add_u32 m0, {s(sM0)}, {SLOT[be]*16*K}
            s_add_u32 {s(sT)}, {s(sT)}, {s(sKVB)}""")
            a(f"buffer_load_dwordx4 {v(vL16)}, {s(SWS,4)}, {s(sT)} offen sc1 lds", ("kv", be))
        def second(be=be):
            a(f"buffer_load_dwordx4 {v(vL16)}, {s(SWS,4)}, {s(sT)} offen offset:{K} sc1 lds", ("kv", be))
        vm[s0] += [first, second]
    def spread(ops, lo, hi):
        lvl = 0
        while sum(max(0, lvl - len(vm[n])) for n in range(lo, hi)) < len(ops): lvl += 1
        room = [n for n in range(lo, hi) for _ in range(max(0, lvl - len(vm[n])))]
        extra = len(room) - len(ops)
        top = [n for n in range(lo, hi) if lvl > len(vm[n])]
        for t in range(extra): room.remove(top[(t * len(top)) // extra])
        for n, o in zip(room, ops): vm[n].append(o)
    CK = cfg.p0ck
    if role == 0:
        ops = []
        for p in range(32):
            def ld(p=p):
                a(f"buffer_load_dwordx4 {v(vPF+4*p,4)}, {v(vL16)}, {s(SWS,4)}, {s(sPF)} offen offset:{(p%4)*K} sc1", "pf")
                if p % 4 == 3: a(f"s_add_u32 {s(sPF)}, {s(sPF)}, {4*K}")
            ops.append(ld)
        vm[3] += [I(f"buffer_load_dwordx2 {v(vXR+2*g,2)}, v8, {s(SX,4)}, {s(sP0DS)} offen offset:{16*g}") for g in range(4)]
        spread(ops, CK, 29)
    else:
        ops = []
        for p in range(28):
            def ld(p=p):
                a(f"s_add_u32 m0, {s(sP0DS)}, {(p//4)*16*K}\ns_nop 0")
                a(f"buffer_load_dwordx4 {v(vL16)}, {s(SWS,4)}, {s(sPF)} offen offset:{(p%4)*K} sc1 lds", ("w1", p // 4))
                if p % 4 == 3: a(f"s_add_u32 {s(sPF)}, {s(sPF)}, {4*K}")
            ops.append(ld)
        spread(ops[20:], 28, 31)
        ops = ops[:20]
        for p in range(cfg.w2n0):
            ops.insert(((p + 1) * 20) // cfg.w2n0 + p, lambda: w2load(1, 0))
        vm[CK - 2].append(I(f"buffer_load_dwordx4 {v(vFL,4)}, {v(vL16)}, {s(SWS,4)}, {s(sP0D)} offen sc1", "fl"))
        vm[3].append(I(f"buffer_load_ushort {v(vB1)}, {v(vB1)}, {s(SA,4)}, {s(sP0ST)} offen"))
        if cfg.touch:
            def t1():
                a(f"""s_mul_i32 {s(sT+1)}, {s(sT3)}, 28
                s_lshl1_add_u32 {s(sT+1)}, {s(sFT)}, {s(sT+1)}
                s_lshl_b32 {s(sT+1)}, {s(sT+1)}, 10
                s_add_u32 {s(sT+1)}, {s(sT+1)}, {HF}""")
                a(f"buffer_load_dword v12, v13, {s(SWS,4)}, {s(sT+1)} offen sc1")
            def t2():
                a(f"""s_lshl_b32 {s(sT+1)}, {s(sI)}, 10
                s_lshl_b32 {s(sT+2)}, {s(sJ)}, 15
                s_add_u32 {s(sT+1)}, {s(sT+1)}, {s(sT+2)}
                s_add_u32 {s(sT+1)}, {s(sT+1)}, {ST}""")
                a(f"buffer_load_dword v12, v14, {s(SWS,4)}, {s(sT+1)} offen sc1")
            def t3():
                a(f"""s_lshl_b32 {s(sT+1)}, {s(sJ)}, 10
                s_and_b32 {s(sT+2)}, {s(sW)}, 1
                s_lshl_b32 {s(sT+2)}, {s(sT+2)}, 13
                s_add_u32 {s(sT+1)}, {s(sT+1)}, {s(sT+2)}
                s_add_u32 {s(sT+1)}, {s(sT+1)}, {FC}""")
                a(f"buffer_load_dword v12, v14, {s(SWS,4)}, {s(sT+1)} offen sc1")
            ops += [t3] if cfg.hs else [t1, t2, t3]
        spread(ops, CK, 28)
    def flagcheck():
        a.wait(vm=["fl"])
        a(f"""Lp0c:
        v_xor_b32 {v(vFL)}, {v(vFL)}, {v(vFL+1)}
        v_xor_b32 {v(vFL+1)}, {v(vFL+1)}, {v(vFL+2)}
        v_xor_b32 {v(vFL+2)}, {v(vFL+2)}, {v(vFL+3)}
        v_xor_b32 {v(vFL+3)}, {s(sP0M)}, {v(vFL+3)}
        v_or3_b32 {v(vFL)}, {v(vFL)}, {v(vFL+1)}, {v(vFL+2)}
        v_or_b32 {v(vFL)}, {v(vFL)}, {v(vFL+3)}
        v_cmp_ne_u32 vcc, 0, {v(vFL)}
        s_cbranch_vccnz Lp0r
        Lp0d:""")
        ool.append(f"""Lp0r:
        buffer_load_dwordx4 {v(vFL,4)}, {v(vL16)}, {s(SWS,4)}, {s(sP0D)} offen sc1
        s_waitcnt vmcnt(0)
        {spin_tail('Lp0c', 'Lp0d')}""")
    def bar(n):
        stamp(40 + bl.index(n))
        if role == 1 and n == CK: flagcheck()
        a.wait(vm=[("kv", b) for b in range(1, BARS[n] + 1)])
        a("s_barrier")
        if n == 1: rd(vK0, 2, 0, ("k0", 2)); rd(vK1, 2, 1, ("k1", 2))
    S = [vS0, vS1]
    rd(vK0, 0, 0, ("k0", 0)); rd(vK1, 0, 1, ("k1", 0))
    for n in range(-1, 32):
        cur, nxt = S[n % 2], S[(n + 1) % 2]
        if n >= 0:
            if n in BARS and role == 1: bar(n)
            a("s_setprio 0")
            for r in range(16):
                if r == 8: a("s_setprio 1")
                a(f"v_exp_f32 {v(cur+r)}, {v(cur+r)}")
        if n in BARS and role == 0: bar(n)
        a("s_setprio 2")
        def q0():
            if n < 31: a.wait(lg=["q", ("k0", n + 1)]); a(mfma(nxt, vK0, vQ, None))
            if n < 30 and n != 0: rd(vK0, n + 2, 0, ("k0", n + 2))
        def q1():
            if n < 31: a.wait(lg=[("k1", n + 1)]); a(mfma(nxt, vK1, vQ + 4, nxt))
            if n < 30 and n != 0: rd(vK1, n + 2, 1, ("k1", n + 2))
        def p0():
            if n >= 0: a.wait(lg=[("v0", n)]); a(smf(vO, vV0, cur, vIDX))
            if n < 31: rd(vV0, n + 1, 2, ("v0", n + 1))
        def p1():
            if n >= 0: a.wait(lg=[("v1", n)]); a(smf(vO, vV1, cur + 8, vIDX))
            if n < 31: rd(vV1, n + 1, 3, ("v1", n + 1))
        seq = [p0, q0, q1, p1] if (n == 1 and role == 0) else [q0, q1, p0, p1]
        ops = list(vm[n])
        for f in seq:
            f()
            if ops: ops.pop(0)()
        assert not ops
    a(f"""s_lshl_b32 {s(sT)}, {s(sW4)}, 12
    s_add_u32 {s(sT)}, {s(sT)}, {L_RED}
    v_add_u32 v3, {s(sT)}, {v(vL16)}""")

def post_A():
    stamp(7)
    XR = 88
    for g in range(4): a(f"ds_write_b128 v3, {v(vO+4*g,4)} offset:{g*K}")
    a(f"""v_mov_b32 v6, {s(sG)}
    s_waitcnt lgkmcnt(0)
    s_barrier""")
    stamp(33)
    a("s_waitcnt vmcnt(0)")
    for t in range(8):
        a(f"v_lshlrev_b32 {v(vO+2*t)}, 16, {v(XR+t)}\nv_and_b32 {v(vO+2*t+1)}, 0xffff0000, {v(XR+t)}")
    a(f"""s_lshl_b32 {s(sT)}, {s(sT3)}, 7
    s_add_u32 {s(sT)}, {s(sT)}, {FB}
    v_and_b32 v4, 15, v0
    v_lshlrev_b32 v4, 2, v4
    s_lshl_b32 {s(sT+1)}, {s(sT3)}, 15
    s_add_u32 {s(sT+1)}, {s(sT+1)}, {OF}
    s_lshl_b32 {s(sT+2)}, {s(sW)}, 12
    s_add_u32 {s(sT+1)}, {s(sT+1)}, {s(sT+2)}
    s_add_u32 {s(sT+3)}, {s(sT+1)}, {16*K}
    s_add_u32 m0, {s(sT+2)}, {L_O}
    v_add_u32 v3, {L_O}, {v(vL16)}""")
    if cfg.spoll: poll_s(sT)
    else: poll_g(sT, 4, 5)
    a.reset_q()
    stamp(9)
    for n in range(4): a(f"buffer_load_dwordx4 {v(vL16)}, {s(SWS,4)}, {s(sT+1)} offen offset:{n*K} sc1 lds")
    a(f"s_add_u32 m0, {s(sT+2)}, {L_O+16*K}\ns_nop 0")
    for n in range(4): a(f"buffer_load_dwordx4 {v(vL16)}, {s(SWS,4)}, {s(sT+3)} offen offset:{n*K} sc1 lds")
    a(f"""s_or_b32 {s(sT)}, {s(sB)}, {s(sW)}
    s_cmp_eq_u32 {s(sT)}, 0
    s_cselect_b32 {s(sT)}, 0, {OOB}
    s_mul_i32 {s(sT+1)}, {s(sT3)}, 28
    s_lshl1_add_u32 {s(sT+1)}, {s(sFT)}, {s(sT+1)}
    s_lshl_b32 {s(sT+1)}, {s(sT+1)}, 10
    s_add_u32 {s(sT+1)}, {s(sT+1)}, {HF}
    s_lshl_b32 {s(sT+2)}, {s(sJ)}, 5
    s_add_u32 {s(sT+2)}, {s(sT+2)}, {s(sI)}
    s_lshl_b32 {s(sT+2)}, {s(sT+2)}, 8
    s_add_u32 {s(sT+2)}, {s(sT+2)}, {s(sW)}
    s_lshl_b32 {s(sT+2)}, {s(sT+2)}, 2
    s_add_u32 {s(sT+2)}, {s(sT+2)}, {ST}
    s_lshl_b32 {s(sT+3)}, {s(sT3)}, 5
    s_add_u32 {s(sT+3)}, {s(sT+3)}, {s(sFT)}
    s_lshl_b32 {s(sT+3)}, {s(sT+3)}, 2
    s_add_u32 {s(sT+3)}, {s(sT+3)}, {FC}
    s_waitcnt vmcnt(0)
    s_barrier""")
    stamp(10)
    a(f"""buffer_store_dword v6, {v(vF0)}, {s(SWS,4)}, {s(sT)} offen sc1
    s_cmp_ge_u32 {s(sFT)}, 14
    s_cbranch_scc1 LA_p3d""")
    NB = 12; OB = 32
    def ord_(n): a(f"ds_read_b128 {v(OB+4*(n%NB),4)}, v3 offset:{n*K}", ("o", n))
    for n in range(NB - 1): ord_(n)
    for n in range(32):
        a.wait(lg=[("o", n)])
        a(mfma(vO, vPF + 4 * n, OB + 4 * (n % NB), vO))
        if n + NB - 1 < 32: ord_(n + NB - 1)
    stamp(35)
    for u in range(2):
        for t in range(4): a(cvt(OB + 4 * u + t, vO + 8 * u + 2 * t, vO + 8 * u + 2 * t + 1))
        a(f"buffer_store_dwordx4 {v(OB+4*u,4)}, {v(vL16)}, {s(SWS,4)}, {s(sT+1)} offen offset:{u*K}{SC1(cfg.hs)}")
    a(f"v_add_f32 v8, {v(vO)}, {v(vO+1)}\nv_mul_f32 v9, {v(vO)}, {v(vO)}\nv_fmac_f32 v9, {v(vO+1)}, {v(vO+1)}")
    for r in range(2, 16): a(f"v_add_f32 v8, v8, {v(vO+r)}\nv_fmac_f32 v9, {v(vO+r)}, {v(vO+r)}")
    a(f"""v_permlane32_swap_b32 v8, v9
    v_add_f32 v8, v8, v9
    buffer_store_dword v8, {v(vL16)}, {s(SWS,4)}, {s(sT+2)} offen{SC1(cfg.hs)}""")
    publish(sT + 3, 5, thru=cfg.hs)
    a("LA_p3d:")
    stamp(11)
    a(f"s_cmp_ge_u32 {s(sI)}, 28\ns_cbranch_scc1 LA_idle")
    HB, AC, SS, AUG = 128, 16, 96, 240
    a(f"""s_lshl_b32 {s(sT)}, {s(sT4)}, 7
    s_add_u32 {s(sT)}, {s(sT)}, {FC}
    v_min_u32 v4, 13, v0
    v_lshlrev_b32 v4, 2, v4
    s_mul_i32 {s(sT+1)}, {s(sT4)}, {28*K}
    s_add_u32 {s(sT+1)}, {s(sT+1)}, {HF}
    s_lshl_b32 {s(sT+2)}, {s(sT4)}, 12
    s_add_u32 {s(sT+2)}, {s(sT+2)}, {ST}
    s_mul_i32 {s(sT+3)}, {s(sT4)}, 14
    s_add_u32 {s(sT+3)}, {s(sT+3)}, {s(sSL)}
    s_lshl_b32 {s(sT+3)}, {s(sT+3)}, 13
    s_add_u32 {s(sT+3)}, {s(sT+3)}, {HH}
    s_lshl_b32 {s(sT+4)}, {s(sT4)}, 5
    s_add_u32 {s(sT+4)}, {s(sT+4)}, {s(sSL)}
    s_lshl_b32 {s(sT+4)}, {s(sT+4)}, 2
    s_add_u32 {s(sT+4)}, {s(sT+4)}, {FD}
    v_add_u32 v3, {64*K}, {v(vL16)}
    v_add_u32 v7, {128*K}, {v(vL16)}""")
    wbufs = [80, 84, 88, 92, 112, 116, 120, 124, 244, 248, 252]
    NB = len(wbufs)
    seq = [(t, q) for q in range(28) for t in range(3)] + [(t, 28) for t in range(3)] + [(3, q) for q in range(29)]
    nr = [0]
    def wread():
        if nr[0] >= len(seq): return
        t, q = seq[nr[0]]; b = wbufs[nr[0] % NB]; nr[0] += 1
        off = (q // 4) * 16 * K + t * 4 * K + (q % 4) * K if q < 28 else L_AUG1 + t * K
        a(f"ds_read_b128 {v(b,4)}, {v([vL16, 3, 7][off // (64*K)])} offset:{off % (64*K)}", ("w", t, q))
    for _ in range(NB - 1): wread()
    poll(sT, 4, 5)
    a.reset_q(lg=a.lgq)
    stamp(12)
    loads = []
    for q in range(28):
        def ld(q=q):
            a(f"buffer_load_dwordx4 {v(HB+4*q,4)}, {v(vL16)}, {s(SWS,4)}, {s(sT+1)} offen offset:{(q%4)*K} sc1", ("h", q))
            if q % 4 == 3: a(f"s_add_u32 {s(sT+1)}, {s(sT+1)}, {4*K}")
        loads.append(ld)
    for t in range(4):
        loads.insert(22 + 2 * t, I(f"buffer_load_dwordx{4 if t < 3 else 2} {v(SS+4*t,4 if t < 3 else 2)}, {v(vL16)}, {s(SWS,4)}, {s(sT+2)} offen offset:{t*K} sc1", "st"))
    for _ in range(cfg.hwin): loads.pop(0)()
    def it(n):
        t, q = seq[n]
        def f():
            if n in (0, 1, 30, 66, 84): stamp(50 + (0, 1, 30, 66, 84).index(n))
            a.wait(vm=[("h", q)] if q < 28 else None, lg=[("w",) + seq[min(n + 1 - n % 2, len(seq) - 1)]])
            a(mfma(AC + 16 * t, wbufs[n % NB], HB + 4 * q if q < 28 else AUG, AC + 16 * t if q else None))
            if loads and n % 2 == 1: loads.pop(0)()
            if n == cfg.p4b: a("s_barrier")
            wread()
        return f
    stats = [lambda: a.wait(vm=["st"])]
    for t in range(2, 14): stats += [I(f"v_add_f32 {v(SS+t%2)}, {v(SS+t%2)}, {v(SS+t)}")]
    stats += [I(x) for x in f"""v_add_f32 v8, {v(SS)}, {v(SS+1)}
    v_mov_b32 {v(AUG+2)}, 0
    v_mov_b32 v9, v8
    v_mov_b32 {v(AUG+3)}, 0
    v_and_b32 v12, 31, v0
    v_permlane32_swap_b32 v8, v9
    v_mul_f32 v8, {f32(-1.0/448)}, v8
    v_mul_f32 v9, {f32(1.0/448)}, v9
    v_fma_f32 v9, -v8, v8, v9
    v_max_f32 v9, 0, v9
    v_add_f32 v9, {f32(1e-5)}, v9
    v_sqrt_f32 v10, v9
    v_rcp_f32 v9, v9
    {cvt(AUG, 8, 8)}
    v_and_b32 v11, 0xffff0000, {v(AUG)}
    v_sub_f32 v8, v8, v11
    {cvt(11, 10, 10)}
    v_and_b32 v11, 0xffff0000, v11
    v_sub_f32 v11, v10, v11
    v_cndmask_b32 v10, v10, v11, {s(sUP,2)}
    {cvt(AUG+1, 8, 10)}
    s_lshl_b32 {s(sT)}, {s(sW)}, 7
    s_add_u32 {s(sT)}, {s(sT)}, {L_R2}
    v_lshl_add_u32 v10, v12, 2, {s(sT)}
    ds_write_b32 v10, v9""".split("\n")]
    interleave([it(n) for n in range(84)], stats, 70, 3)
    assert not loads
    def ep(t):
        o = []
        for u in range(2):
            o += [I(f"v_mul_f32 {v(AC+16*t+r)}, {v(AC+16*t+r)}, |{v(AC+16*t+r)}|") for r in range(8 * u, 8 * u + 8)]
            d = SS + 8 * (t % 2) + 4 * u
            o += [I(cvt(d + k, AC + 16 * t + 8 * u + 2 * k, AC + 16 * t + 8 * u + 2 * k + 1)) for k in range(4)]
            o += [I(f"v_pk_max_i16 {v(d+k)}, {v(d+k)}, 0") for k in range(4)]
            o += [I(f"buffer_store_dwordx4 {v(d,4)}, {v(vL16)}, {s(SWS,4)}, {s(sT+3)} offen offset:{(2*(t%2)+u)*K}{SC1(cfg.hhs)}")]
        if t == 1: o += [I(f"s_add_u32 {s(sT+3)}, {s(sT+3)}, {4*K}")]
        return o
    interleave([it(n) for n in range(84, len(seq))], ep(0) + ep(1) + ep(2), 2, 4)
    stamp(13)
    a(f"""v_lshrrev_b32 v8, 3, v0
    s_lshl_b32 {s(sT)}, {s(sW)}, 3
    v_add_u32 v8, {s(sT)}, v8
    v_and_b32 v9, 7, v0
    v_lshrrev_b32 v10, 1, v9
    v_lshlrev_b32 v10, 10, v10
    v_lshl_add_u32 v10, v8, 4, v10
    v_and_b32 v11, 1, v9
    v_lshl_add_u32 v10, v11, 3, v10""")
    for f in ep(3): f()
    publish(sT + 4, 5, thru=cfg.hhs)
    a("s_waitcnt lgkmcnt(0)\ns_barrier")
    stamp(14)
    RES, B2 = 16, 24
    srd(SA, pB2, 896)
    srd(SB_, pOUT, 2048 * 896)
    a(f"""s_mul_i32 {s(sT)}, {s(sT5)}, 7
    s_add_u32 {s(sT)}, {s(sT)}, {s(sC7)}
    s_lshl_b32 {s(sT)}, {s(sT)}, 12
    s_add_u32 {s(sT)}, {s(sT)}, {HF}
    s_add_u32 {s(sT+1)}, {s(sT)}, {28*K}
    s_lshl_b32 {s(sT+2)}, {s(sC7)}, 7
    v_lshlrev_b32 v11, 4, v9
    buffer_load_dwordx2 {v(RES,2)}, v10, {s(SWS,4)}, {s(sT)} offen sc1
    buffer_load_dwordx2 {v(RES+2,2)}, v10, {s(SWS,4)}, {s(sT)} offen offset:512 sc1
    buffer_load_dwordx2 {v(RES+4,2)}, v10, {s(SWS,4)}, {s(sT+1)} offen sc1
    buffer_load_dwordx2 {v(RES+6,2)}, v10, {s(SWS,4)}, {s(sT+1)} offen offset:512 sc1
    buffer_load_dwordx4 {v(B2,4)}, v11, {s(SA,4)}, {s(sT+2)} offen
    s_lshl_b32 {s(sT)}, {s(sT5)}, 7
    s_add_u32 {s(sT)}, {s(sT)}, {FD}
    v_and_b32 v4, 31, v0
    v_min_u32 v4, 13, v4
    v_and_b32 v5, 32, v0
    v_add_lshl_u32 v4, v4, v5, 2
    s_mul_i32 {s(sT+1)}, {s(sT5)}, {112*K}
    s_lshr_b32 {s(sT+3)}, {s(sW)}, 1
    s_mul_i32 {s(sT+3)}, {s(sT+3)}, {56*K}
    s_add_u32 {s(sT+1)}, {s(sT+1)}, {s(sT+3)}
    s_and_b32 {s(sT+3)}, {s(sW)}, 1
    s_lshl_b32 {s(sT+3)}, {s(sT+3)}, 12
    s_add_u32 {s(sT+1)}, {s(sT+1)}, {s(sT+3)}
    s_add_u32 {s(sT+1)}, {s(sT+1)}, {HH}
    s_lshl_b32 {s(sM0)}, {s(sW)}, 12""")
    poll(sT, 4, 5)
    a.reset_q()
    stamp(16)
    def hdma(c):
        a(f"s_add_u32 m0, {s(sM0)}, {(c%7)*16*K}")
        if c: a(f"s_add_u32 {s(sT+1)}, {s(sT+1)}, {8*K if c != 7 else (112-48)*K}")
        else: a("s_nop 0")
        for n in range(4): a(f"buffer_load_dwordx4 {v(vL16)}, {s(SWS,4)}, {s(sT+1)} offen offset:{n*K} sc1 lds", ("hh", c))
    D = cfg.p5d
    for c in range(D): hdma(c)
    BF = 32
    def consts():
        a(f"""v_mul_u32_u24 v3, {PROW}, v8
        v_lshl_add_u32 v3, v9, 5, v3
        v_add_u32 v3, {L_PART}, v3
        s_and_b32 {s(sT)}, {s(sT5)}, 3
        s_lshl_b32 {s(sT)}, {s(sT)}, 7
        s_add_u32 {s(sT)}, {s(sT)}, {L_R2}
        v_lshl_add_u32 v4, v8, 2, {s(sT)}
        ds_read_b32 v12, v4
        ds_read_b32 v13, v4 offset:128
        v_mul_u32_u24 v5, 896, v8
        v_add_u32 v5, v5, v11
        s_mul_i32 {s(sT)}, {s(sT5)}, {32*896}
        s_add_u32 {s(sT+2)}, {s(sT+2)}, {s(sT)}""")
        for tt in range(2):
            for t in range(4):
                a(f"""v_lshlrev_b32 v6, 16, {v(B2+t)}
                v_and_b32 v7, 0xffff0000, {v(B2+t)}
                v_lshlrev_b32 {v(BF+8*tt+2*t)}, 16, {v(RES+4*tt+t)}
                v_and_b32 {v(BF+8*tt+2*t+1)}, 0xffff0000, {v(RES+4*tt+t)}
                v_add_f32 {v(BF+8*tt+2*t)}, {v(BF+8*tt+2*t)}, v6
                v_add_f32 {v(BF+8*tt+2*t+1)}, {v(BF+8*tt+2*t+1)}, v7""")
    def final(tt):
        P = 48
        for kh in range(2):
            for z in range(2):
                a(f"ds_read_b128 {v(P+8*kh+4*z,4)}, v3 offset:{(2*tt+kh)*32*PROW+16*z}")
        a("s_waitcnt lgkmcnt(0)")
        for r in range(8): a(f"v_add_f32 {v(P+r)}, {v(P+r)}, {v(P+8+r)}")
        for r in range(8): a(f"v_fma_f32 {v(P+r)}, {v(P+r)}, {v(12+tt)}, {v(BF+8*tt+r)}")
        for t in range(4): a(cvt(P + 16 + 4 * tt + t, P + 2 * t, P + 2 * t + 1))
        a(f"buffer_store_dwordx4 {v(P+16+4*tt,4)}, v5, {s(SB_,4)}, {s(sT+2)} offen{SC1(cfg.outs)}")
        if tt == 0: a(f"s_add_u32 {s(sT+2)}, {s(sT+2)}, {32*896}")
    for c in range(14):
        a.wait(vm=[("hh", c)])
        a("s_barrier")
        if c + D < 14: hdma(c + D)
        if c == 1: consts()
        if c == 12: final(0)
    stamp(17)
    a("s_barrier")
    final(1)
    stamp(18)
    if cfg.da >= 0 or cfg.dskew:
        a(f"s_or_b32 {s(sT)}, {s(sB)}, {s(sW)}\ns_cmp_lg_u32 {s(sT)}, 0\ns_cbranch_scc1 Ldly_e")
        if cfg.dskew:
            a(f"""s_mov_b32 s98, 0xe000
            buffer_load_dwordx4 v[20:23], {v(vL16)}, {s(SWS,4)}, s98 offen sc1
            s_waitcnt vmcnt(0)
            v_max_u32 v24, v20, v21
            v_max3_u32 v24, v24, v22, v23
            v_min_u32 v25, v20, v21
            v_min3_u32 v25, v25, v22, v23
            s_mov_b32 s98, 0
            s_mov_b32 s96, -1""")
            for l in range(64):
                a(f"v_readlane_b32 s100, v24, {l}\nv_readlane_b32 s101, v25, {l}\ns_nop 0\ns_max_u32 s98, s98, s100\ns_min_u32 s96, s96, s101")
        a(f"""s_memrealtime s[100:101]
        s_waitcnt lgkmcnt(0)
        s_sub_u32 s98, s98, s96
        s_min_u32 s98, s98, 10000
        s_mul_i32 s98, s98, {cfg.dm}
        Ldly:
        s_memrealtime s[96:97]
        s_waitcnt lgkmcnt(0)
        s_sub_u32 s96, s96, s100
        s_cmp_lt_u32 s96, s98
        s_cbranch_scc1 Ldly
        Ldly_e:""")
    stamp_flush(3)
    a("s_endpgm")
    a("LA_idle:")
    if cfg.wb:
        a(f"""s_cmp_lg_u32 {s(sI)}, 28
        s_cbranch_scc1 LA_idle2
        s_cmp_lg_u32 {s(sW)}, 0
        s_cbranch_scc1 LA_idle2
        buffer_wbl2 sc1
        s_lshl_b32 {s(sT)}, {s(sJ)}, 10
        s_add_u32 {s(sT)}, {s(sT)}, {FD}
        v_and_b32 v4, 7, v0
        v_lshrrev_b32 v5, 3, v0
        v_lshlrev_b32 v5, 5, v5
        v_add_lshl_u32 v4, v4, v5, 2""")
        poll(sT, 4, 5)
        a(f"s_add_u32 {s(sT)}, {s(sT)}, 24")
        poll(sT, 4, 5)
        a("buffer_wbl2 sc1\nLA_idle2:")
    stamp_flush(3)
    a("s_endpgm")

def fallback():
    mx = 8
    def tile_loads(kv):
        o = [f"buffer_load_dwordx4 {v(vK0+4*t,4)}, {v(vL16)}, {s(SWS,4)}, {s(sT+6)} offen offset:{t*K} sc1" for t in range(kv)]
        return "\n".join(o)
    t = f"""Lfb:
    s_lshl_b32 {s(sT+6)}, {s(sH)}, 18
    s_add_u32 {s(sT+6)}, {s(sT+6)}, {KV}
    s_mov_b32 {s(sT+7)}, 64
    v_cndmask_b32 {v(vQ+6)}, {v(vQ+6)}, 0, {s(sUP,2)}
    v_mov_b32 {v(mx)}, 0xff800000
    Lfb1:
    {tile_loads(2)}
    s_waitcnt vmcnt(0)
    {mfma(vS0, vK0, vQ, None)}
    {mfma(vS0, vK1, vQ+4, vS0)}
    s_add_u32 {s(sT+6)}, {s(sT+6)}, {4*K}
    s_sub_u32 {s(sT+7)}, {s(sT+7)}, 1
    s_cmp_lg_u32 {s(sT+7)}, 0
    """
    for r in range(0, 16, 2): t += f"v_max3_f32 {v(mx)}, {v(mx)}, {v(vS0+r)}, {v(vS0+r+1)}\n"
    t += f"""s_cbranch_scc1 Lfb1
    v_mov_b32 v9, {v(mx)}
    v_permlane32_swap_b32 v9, {v(mx)}
    v_max_f32 {v(mx)}, v9, {v(mx)}
    v_sub_f32 {v(mx)}, 0, {v(mx)}
    v_and_b32 v9, 0xffff0000, {v(mx)}
    v_sub_f32 {v(mx)}, {v(mx)}, v9
    v_and_b32 v10, 0xffff0000, {v(mx)}
    v_sub_f32 {v(mx)}, {v(mx)}, v10
    v_mov_b32 v11, 0
    {cvt(9, 9, 10)}
    {cvt(10, mx, 11)}
    v_cndmask_b32 {v(vQ+6)}, {v(vQ+6)}, v9, {s(sUP,2)}
    v_cndmask_b32 {v(vQ+7)}, {v(vQ+7)}, v10, {s(sUP,2)}
    s_sub_u32 {s(sT+6)}, {s(sT+6)}, {256*K}
    s_mov_b32 {s(sT+7)}, 64
    """
    for r in range(16): t += f"v_mov_b32 {v(vO+r)}, 0\n"
    t += f"""Lfb2:
    {tile_loads(4)}
    s_waitcnt vmcnt(0)
    {mfma(vS0, vK0, vQ, None)}
    {mfma(vS0, vK1, vQ+4, vS0)}
    s_add_u32 {s(sT+6)}, {s(sT+6)}, {4*K}
    s_sub_u32 {s(sT+7)}, {s(sT+7)}, 1
    s_cmp_lg_u32 {s(sT+7)}, 0
    """
    for r in range(16): t += f"v_exp_f32 {v(vS0+r)}, {v(vS0+r)}\n"
    t += f"""{smf(vO, vV0, vS0, vIDX)}
    {smf(vO, vV1, vS0+8, vIDX)}
    s_nop 7
    s_cbranch_scc1 Lfb2
    s_nop 7
    s_branch Lfbd"""
    ool.append(t)

def post_B():
    stamp(7)
    a(f"""s_lshl2_add_u32 {s(sT+2)}, {s(sRB)}, {s(sW4)}
    s_lshl_b32 {s(sT+3)}, {s(sT+2)}, 4
    s_add_u32 {s(sT+3)}, {s(sT+3)}, {s(sH)}
    s_lshl_b32 {s(sT+3)}, {s(sT+3)}, 11
    s_add_u32 {s(sT+3)}, {s(sT+3)}, {OF}
    s_lshl_b32 {s(sT+2)}, {s(sT+2)}, 5
    s_add_u32 {s(sT+2)}, {s(sT+2)}, {s(sH)}
    s_lshl_b32 {s(sT+2)}, {s(sT+2)}, 2
    s_add_u32 {s(sT+2)}, {s(sT+2)}, {FB}
    s_mov_b32 {s(sT+4)}, {f32(2.0**40)}
    s_mov_b32 {s(sT+5)}, {f32(2.0**-40)}
    s_setprio 3
    s_barrier""")
    stamp(33)
    for g in (1, 0, 2, 3): a(f"ds_read_b128 {v(vS0+4*g,4)}, v3 offset:{g*K}", ("r", g))
    for g in (1, 0, 2, 3):
        a.wait(lg=[("r", g)])
        for t in (3, 0, 1, 2): a(f"v_add_f32 {v(vO+4*g+t)}, {v(vO+4*g+t)}, {v(vS0+4*g+t)}")
        if g == 1:
            a(f"""v_cmp_ngt_f32 vcc, {s(sT+4)}, {v(vO+7)}
            v_cmp_nlt_f32 {s(sCM,2)}, {s(sT+5)}, {v(vO+7)}""")
    a(f"s_or_b64 vcc, vcc, {s(sCM,2)}")
    a("s_branch Lfb" if cfg.force_fallback else "s_cbranch_scc1 Lfb")
    a(f"Lfbd:\nv_rcp_f32 v5, {v(vO+7)}\nv_mov_b32 v6, {s(sG)}")
    for u in range(2):
        for r in range(8): a(f"v_mul_f32 {v(vO+8*u+r)}, {v(vO+8*u+r)}, v5")
        for t in range(4): a(cvt(vS0 + 4 * u + t, vO + 8 * u + 2 * t, vO + 8 * u + 2 * t + 1))
        a(f"buffer_store_dwordx4 {v(vS0+4*u,4)}, {v(vL16)}, {s(SWS,4)}, {s(sT+3)} offen offset:{u*K} sc1")
    stamp(34)
    fallback()
    a(f"""s_mul_i32 {s(sT+3)}, {s(sT4)}, 14
    s_add_u32 {s(sT+3)}, {s(sT+3)}, {s(sSL)}
    s_lshl_b32 {s(sT+3)}, {s(sT+3)}, 13
    s_add_u32 {s(sT+3)}, {s(sT+3)}, {HH}
    v_add_u32 v3, {s(sP0DS)}, {v(vL16)}
    v_add_u32 v12, {64*K}, v3
    v_lshlrev_b32 v13, 7, v0
    s_cmp_ge_u32 {s(sI)}, 28
    s_waitcnt vmcnt(0)
    buffer_store_dword v6, {v(vF0)}, {s(SWS,4)}, {s(sT+2)} offen sc1
    s_setprio 0""")
    stamp(8)
    a("s_cbranch_scc1 LB_idle")
    w2load(cfg.w2n3, 0)
    a("v_mov_b32 v6, 0\nv_mov_b32 v7, 0")
    for c in range(7):
        for n in range(4): a(f"ds_read_b128 {v(32+16*(c%2)+4*n,4)}, {v(3 if c < 4 else 12)} offset:{(c%4)*16*K+n*K}", ("c", c))
        if c:
            for r in range(16): a(f"v_dot2c_f32_bf16 {v(6+r%2)}, {s(sONE)}, {v(32+16*((c-1)%2)+r)}")
        a.wait(lg=[("c", c)])
    for r in range(16): a(f"v_dot2c_f32_bf16 {v(6+r%2)}, {s(sONE)}, {v(32+r)}")
    a(f"""v_lshlrev_b32 v5, 16, {v(vB1)}
    v_mov_b32 v10, 0
    v_add_f32 v6, v6, v7
    {cvt(7, 6, 6)}
    v_and_b32 v7, 0xffff0000, v7
    v_sub_f32 v7, v6, v7
    {cvt(8, 6, 7)}
    {cvt(9, 6, 5)}
    v_mov_b32 v11, 0
    s_lshl_b32 {s(sT)}, {s(sW4)}, 10
    s_add_u32 {s(sT)}, {s(sT)}, {L_AUG1}
    v_add_u32 v4, {s(sT)}, {v(vL16)}""")
    stamp(15)
    a("s_barrier")
    a("ds_write_b128 v4, v[8:11]")
    if cfg.hhtouch: a(f"buffer_load_dword v14, v13, {s(SWS,4)}, {s(sT+3)} offen sc1")
    w2load(cfg.w2n1, 0)
    stamp(16)
    a("s_waitcnt lgkmcnt(0)\ns_barrier")
    stamp(9)
    w2load(56 - nw[0], 0)
    AC, HBUF, NB = 16, [4, 8, 12], 3
    a(f"""s_lshr_b32 {s(sT)}, {s(sW4)}, 1
    s_lshl_b32 {s(sT+1)}, {s(sT)}, 13
    v_and_b32 v4, 31, v0
    v_mul_u32_u24 v4, {PROW}, v4
    v_lshrrev_b32 v5, 5, v0
    v_lshl_add_u32 v4, v5, 4, v4
    s_mul_i32 {s(sT)}, {s(sT)}, {32*PROW}
    s_and_b32 {s(sT+2)}, {s(sW4)}, 1
    s_lshl_b32 {s(sT+2)}, {s(sT+2)}, 7
    s_add_u32 {s(sT)}, {s(sT)}, {s(sT+2)}
    s_add_u32 {s(sT)}, {s(sT)}, {L_PART}
    v_add_u32 v0, {s(sT)}, v4
    v_add_u32 v2, {s(sT+1)}, {v(vL16)}
    v_add_u32 v3, {64*K}, v2
    s_waitcnt vmcnt(0)""")
    if cfg.stamps: a("v_mov_b32 v1, v15"); vSTAMP[0] = 1
    stamp(10)
    a("s_barrier")
    nr = [0]
    def hread():
        n = nr[0]
        if n >= 112: return
        nr[0] += 1
        q = n % 56
        if q % 8 == 0:
            if n == 64: a.wait(lg=["pw"])
            a("s_barrier")
            stamp(48 + n // 8)
        off = (q // 8) * 16 * K + (q % 8) * K
        a(f"ds_read_b128 {v(HBUF[n%NB],4)}, {v(2 + off // (64*K))} offset:{off % (64*K)}", ("h", n))
    for _ in range(NB - 1): hread()
    for n in range(112):
        q = n % 56
        hread()
        a.wait(lg=[("h", n)] + (["pw"] if n == 56 else []))
        a(mfma(AC, wreg(q), HBUF[n % NB], AC if q else None))
        if q == 55:
            for g in range(4): a(f"ds_write_b128 v0, {v(AC+4*g,4)} offset:{(n//56)*64*PROW+32*g}", "pw")
    a("s_waitcnt lgkmcnt(0)")
    stamp(11)
    a("s_barrier")
    stamp_flush(3)
    a("s_endpgm")
    vSTAMP[0] = 15
    a("LB_idle:\ns_barrier")
    stamp_flush(3)
    a("Lend:\ns_endpgm")

prologue()
p1_A()
attention(0)
post_A()
p1_B()
attention(1)
post_B()
body = a.lines + [l.strip() for blk in ool for l in blk.split("\n") if l.strip()]
body, npad = pad_all(body, verbose="-v" in sys.argv[1])
print("instructions:", len(body), "pads:", npad, file=sys.stderr)

head = open("cdna_kernels/%s.s.ref" % NAME).read().split("; Override launch")[0]
out = head + f"; @launch grid=(256,1,1) block=(512,1,1) lds={LDS_SIZE}\n"
out += f""".amdgcn_target "amdgcn-amd-amdhsa--gfx950"
.text
.globl {KN}
.p2align 8
.type {KN},@function
{KN}:
"""
out += "\n".join(("" if l.endswith(":") else "    ") + l for l in body)
out += f"""
Lcode_end:
    s_endpgm
.section .rodata,"a"
.p2align 6
.amdhsa_kernel {KN}
  .amdhsa_next_free_vgpr 256
  .amdhsa_next_free_sgpr 102
  .amdhsa_accum_offset 256
  .amdhsa_group_segment_fixed_size 0
  .amdhsa_kernarg_size 88
  .amdhsa_user_sgpr_count 2
  .amdhsa_user_sgpr_kernarg_segment_ptr 1
  .amdhsa_system_sgpr_workgroup_id_x 1
.end_amdhsa_kernel
"""
open(sys.argv[1].replace("-v", ""), "w").write(out)
```

```python
import sys, struct, math
from asmlib import Asm, v, s, pad_all

NAME = "sequential_preLN__mha_block__dense_activation_squared_relu__prompt"
KN = NAME + "_kernel"

class Cfg:
    stamps = False
    force_global = False
    force_fallback = False
    permute = 0
    n1 = 96
    c0j, c0i = 0, 0
    wb = 0
    x0n = 4
    lagend = 1
    na = 3
    xtouch = 1
    lst = 1
    xq = 1
    ne = 2
    touch = 1
    w2win = 3
    w2n0, w2n3, w2n1 = 14, 8, 10
    hwin = 9
    xw = 6
    kvtouch = 0
    hhtouch = 0
    p4b = 48
    da, db, dm = -1, -1, 1
    dskew = 0
    dbuf = 0
    spoll = 0
    p0ck = 12
    w1end = 16
    kvs, hs, hhs, wps, outs = 1, 0, 1, 0, 0
    p5d = 3
cfg = Cfg()
for arg in sys.argv[2:]:
    k, val = arg.split("=")
    setattr(cfg, k, int(val))

def SC1(x): return " sc1" if x else ""
def f32(x): return "0x%08x" % struct.unpack("<I", struct.pack("<f", x))[0]

EPOCH = 0
FW, FA, FC, FD = 0x1000, 0x2000, 0x4000, 0x6000
GOFF = 0x10000
FP0, FB = 0x8000, 0xA000
DBG = 0x40000
WP = 0x100000
WOT = 0x250000
W1T = 0x2C0000
W2T = 0x448000
ST = 0x5D0000
HF = 0x650000
OF = 0x810000
KV = 0xA10000
HH = 0xE10000
WS_SIZE = 0x1510000
OOB = 0x40000000

K = 1024
L_XR = 0
L_P0 = 48 * K
L_QX = 32 * K
L_MODE = 151 * K
L_W = 64 * K
L_AUG = 148 * K
L_RS = 152 * K
L_RED = 144 * K
L_O = 112 * K
L_AUG1 = 152 * K
L_R2 = 156 * K
L_PART = 112 * K
PROW = 272
LDS_SIZE = 160 * K

sB, sW, sJ, sI, sH, sRB = 2, 3, 4, 5, 6, 7
SX, SWS, SA, SB_ = 8, 12, 16, 20
sG, sL, sMODE, sSPIN = 24, 25, 26, 27
sT = 28
pX, pWQKV, pWO, pW1, pB1, pW2, pB2, pOUT = 36, 38, 40, 44, 46, 48, 50, 52
sCH = 56
sUP = 64
sPADV = 66
sW4 = 68
sKVB = 69
sPF = 70
sM0 = 71
sT3, sFT, sT4, sSL, sT5, sC7 = 72, 73, 74, 75, 76, 77
sP0D, sP0DS, sP0M, sP0ST = 78, 79, 80, 81
sCM = 82
sTS = 84
SC = 88
sONE = 92

a = Asm()
ool = []

def srd(d, p, nbytes):
    a(f"s_mov_b32 {s(d)}, {s(p)}\ns_mov_b32 {s(d+1)}, {s(p+1)}\ns_mov_b32 {s(d+2)}, {nbytes}\ns_mov_b32 {s(d+3)}, 0x20000")

def mfma(d, A, B, C):
    c = "0" if C is None else v(C, 16)
    return f"v_mfma_f32_32x32x16_bf16 {v(d,16)}, {v(A,4)}, {v(B,4)}, {c}"
def smf(d, A, B, idx): return f"v_smfmac_f32_32x32x32_bf16 {v(d,16)}, {v(A,4)}, {v(B,8)}, {v(idx)}"
def cvt(d, x, y): return f"v_cvt_pk_bf16_f32 {v(d)}, {v(x)}, {v(y)}"

vSTAMP = [15]
sSI = 93
def stamp(n):
    if n == cfg.da: a.lines.append("s_memrealtime s[96:97]")
    if n == cfg.db: a.lines.append("s_memrealtime s[98:99]")
    if cfg.dskew == 1 and n == 0:
        cfg.dskew = 2
        a.lines += ["s_memrealtime s[96:97]", "s_waitcnt lgkmcnt(0)", "v_mov_b32 v14, s96", f"s_lshl_b32 s98, {s(sB)}, 2", f"s_addk_i32 s98, 0x7000", "s_addk_i32 s98, 0x7000",
                    f"buffer_store_dword v14, {v(vF0)}, {s(SWS,4)}, s98 offen sc1"]
        a.vmq.append(None)
    if not cfg.stamps: return
    a.lines += [f"s_mov_b32 {s(sSI+1)}, m0", f"s_mov_b32 m0, {s(sSI)}", f"v_writelane_b32 {v(vSTAMP[0])}, {s(sTS)}, m0", f"s_mov_b32 m0, {s(sSI+1)}",
                f"{'s_memrealtime' if cfg.stamps == 2 else 's_memtime'} {s(sTS,2)}", f"s_mov_b32 {s(sSI)}, {n}"]
def stamp_flush(vt):
    if not cfg.stamps: return
    a("s_waitcnt lgkmcnt(0)")
    stamp(63)
    a(f"""v_mbcnt_lo_u32_b32 {v(vt)}, -1, 0
    v_mbcnt_hi_u32_b32 {v(vt)}, -1, {v(vt)}
    v_lshlrev_b32 {v(vt)}, 2, {v(vt)}
    s_lshl_b32 {s(sT)}, {s(sB)}, 3
    s_add_u32 {s(sT)}, {s(sT)}, {s(sW)}
    s_lshl_b32 {s(sT)}, {s(sT)}, 8
    s_add_u32 {s(sT)}, {s(sT)}, {DBG}
    buffer_store_dword {v(vSTAMP[0])}, {v(vt)}, {s(SWS,4)}, {s(sT)} offen""")

vL16 = 1
vF0 = 2
vTMP = 3

def publish(soff, vt, older=0, thru=0):
    l1, l2 = a.label("Lpubg"), a.label("Lpubd")
    a(f"""v_mov_b32 {v(vt)}, {s(sL)}
    s_cmp_lg_u32 {s(sMODE)}, 0
    s_waitcnt vmcnt({older})
    buffer_store_dword {v(vt)}, {v(vF0)}, {s(SWS,4)}, {s(soff)} offen
    s_cbranch_scc1 {l1}
    {l2}:""")
    ool.append(f"""{l1}:
    {"" if thru else "buffer_wbl2 sc1"}
    s_add_u32 {s(soff)}, {s(soff)}, {GOFF}
    s_waitcnt vmcnt(0)
    v_mov_b32 {v(vt)}, {s(sG)}
    buffer_store_dword {v(vt)}, {v(vF0)}, {s(SWS,4)}, {s(soff)} offen sc1
    s_branch {l2}""")

def spin_tail(loop, done):
    return f"""s_sub_u32 {s(sSPIN)}, {s(sSPIN)}, 1
    s_cbranch_scc0 {loop}
    s_mov_b32 {s(sSPIN)}, 0
    s_branch {done}"""

def poll(soff, vaddr, vt):
    lp, lg, ld, lr, lgd = a.label("Lpoll"), a.label("Lpollg"), a.label("Lpolld"), a.label("Lpollr"), a.label("Lpollgd")
    a(f"""s_cmp_lg_u32 {s(sMODE)}, 0
    s_cbranch_scc1 {lg}
    {lp}:
    buffer_load_dword {v(vt)}, {v(vaddr)}, {s(SWS,4)}, {s(soff)} offen sc1
    s_waitcnt vmcnt(0)
    v_cmp_ne_u32 vcc, {s(sL)}, {v(vt)}
    s_cbranch_vccnz {lr}
    {ld}:""")
    ool.append(f"""{lr}:
    {spin_tail(lp, ld)}
    {lg}:
    s_add_u32 {s(sT+7)}, {s(soff)}, {GOFF}
    buffer_load_dword {v(vt)}, {v(vaddr)}, {s(SWS,4)}, {s(soff)} offen sc1
    buffer_load_dword {v(vt+1)}, {v(vaddr)}, {s(SWS,4)}, {s(sT+7)} offen sc1
    s_waitcnt vmcnt(0)
    v_cmp_ne_u32 vcc, {s(sL)}, {v(vt)}
    v_cmp_ne_u32 {s(sCM,2)}, {s(sG)}, {v(vt+1)}
    s_nop 1
    s_and_b64 vcc, vcc, {s(sCM,2)}
    s_cbranch_scc0 {lgd}
    s_sub_u32 {s(sSPIN)}, {s(sSPIN)}, 1
    s_cbranch_scc0 {lg}
    s_mov_b32 {s(sSPIN)}, 0
    {lgd}:
    buffer_inv sc1
    s_waitcnt vmcnt(0)
    s_branch {ld}""")

def poll_g(soff, vaddr, vt):
    lp, ld, lr = a.label("Lpoll"), a.label("Lpolld"), a.label("Lpollr")
    a(f"""{lp}:
    buffer_load_dword {v(vt)}, {v(vaddr)}, {s(SWS,4)}, {s(soff)} offen sc1
    s_waitcnt vmcnt(0)
    v_cmp_ne_u32 vcc, {s(sG)}, {v(vt)}
    s_cbranch_vccnz {lr}
    {ld}:""")
    ool.append(f"{lr}:\n{spin_tail(lp, ld)}")

def poll_s(soff):
    lp, ld, lr = a.label("Lpoll"), a.label("Lpolld"), a.label("Lpollr")
    F = 36 + 0
    a(f"""s_add_u32 {s(sCM)}, {s(SWS)}, {s(soff)}
    s_addc_u32 {s(sCM+1)}, {s(SWS+1)}, 0
    s_mov_b32 {s(sT+6)}, {s(sG)}
    s_mov_b32 {s(sT+7)}, {s(sG)}
    {lp}:
    s_load_dwordx8 {s(36,8)}, {s(sCM,2)}, 0 glc
    s_load_dwordx8 {s(56,8)}, {s(sCM,2)}, 32 glc
    s_waitcnt lgkmcnt(0)""")
    for base in (36, 56):
        for t in range(4): a(f"s_cmp_eq_u64 {s(base+2*t,2)}, {s(sT+6,2)}\ns_cbranch_scc0 {lr}")
    a(f"{ld}:")
    ool.append(f"{lr}:\n{spin_tail(lp, ld)}")

def interleave(main, fill, start, per):
    fill = list(fill)
    for n, g in enumerate(main):
        g()
        if n >= start:
            for _ in range(per):
                if fill: fill.pop(0)()
    for f in fill: f()

def I(text, tag=None): return lambda: a(text, tag)

def prologue():
    if cfg.da == 99: a("s_memrealtime s[96:97]")
    if cfg.da == 98:
        a(f"""s_load_dwordx2 s[88:89], s[0:1], {cfg.dbuf}
        s_mov_b32 s90, 0x60000
        s_mov_b32 s91, 0x20000
        v_readfirstlane_b32 s3, v0
        v_mov_b32 v5, 0
        s_or_b32 s3, s3, s2
        s_cmp_lg_u32 s3, 0
        s_waitcnt lgkmcnt(0)
        s_cbranch_scc1 Ldg_s
        s_memrealtime s[96:97]
        s_waitcnt lgkmcnt(0)""")
        for t in range(8): a(f"s_mov_b32 s3, {0x9080*t+0x400}\nbuffer_load_dword v4, v5, s[88:91], s3 offen\ns_waitcnt vmcnt(0)")
        a("""s_memrealtime s[98:99]
        s_waitcnt lgkmcnt(0)
        s_branch Ldg_e
        Ldg_s:
        s_sleep 127
        s_sleep 60
        Ldg_e:""")
    a(f"""s_cmp_ge_u32 {s(sB)}, 256
    s_cbranch_scc1 Lend
    s_load_dwordx4 {s(36,4)}, s[0:1], 0
    s_load_dwordx2 {s(SWS,2)}, s[0:1], 80
    v_lshrrev_b32 v3, 6, v0
    v_and_b32 v0, 63, v0
    v_readfirstlane_b32 {s(sW)}, v3""")
    if cfg.permute:
        a(f"""s_lshr_b32 {s(sT)}, {s(sB)}, {cfg.permute}
        s_lshl_b32 {s(sB)}, {s(sB)}, {8-cfg.permute}
        s_or_b32 {s(sB)}, {s(sB)}, {s(sT)}
        s_and_b32 {s(sB)}, {s(sB)}, 255""")
    if cfg.stamps: a(f"v_mov_b32 v15, 0\ns_mov_b32 {s(sSI)}, 62\ns_mov_b32 {s(sTS)}, 0")
    a(f"""s_and_b32 {s(sJ)}, {s(sB)}, 7
    s_lshr_b32 {s(sI)}, {s(sB)}, 3
    s_and_b32 {s(sW4)}, {s(sW)}, 3
    v_lshlrev_b32 {v(vL16)}, 4, v0
    v_cmp_eq_u32 vcc, 0, v0
    v_mov_b32 v3, {OOB}
    s_mov_b32 {s(SWS+2)}, {WS_SIZE}
    s_mov_b32 {s(SWS+3)}, 0x20000
    v_cndmask_b32 {v(vF0)}, v3, 0, vcc
    s_cmp_ge_u32 {s(sW)}, 4
    s_cbranch_scc1 LB_start""")

def chunks():
    a(f"""s_and_b32 {s(sT)}, {s(sI)}, 1
    s_lshl1_add_u32 {s(sH)}, {s(sJ)}, {s(sT)}
    s_lshr_b32 {s(sRB)}, {s(sI)}, 1
    s_mul_i32 {s(sT)}, {s(sT)}, {cfg.c0i}
    s_mul_i32 {s(sT+1)}, {s(sJ)}, {cfg.c0j}
    s_add_u32 {s(sT)}, {s(sT)}, {s(sT+1)}
    s_mul_i32 {s(sT+1)}, {s(sT)}, 37
    s_lshr_b32 {s(sT+1)}, {s(sT+1)}, 8
    s_mul_i32 {s(sT+1)}, {s(sT+1)}, 7
    s_sub_u32 {s(sCH)}, {s(sT)}, {s(sT+1)}""")
    for q in range(1, 7):
        a(f"""s_add_u32 {s(sCH+q)}, {s(sCH+q-1)}, 1
        s_cmp_eq_u32 {s(sCH+q)}, 7
        s_cselect_b32 {s(sCH+q)}, 0, {s(sCH+q)}""")

def roles(t):
    a(f"""s_load_dwordx8 {s(40,8)}, s[0:1], 16
    s_load_dwordx4 {s(48,4)}, s[0:1], 48
    s_load_dwordx2 {s(pOUT,2)}, s[0:1], 64
    s_mov_b32 {s(sUP)}, 0
    s_mov_b32 {s(sUP+1)}, -1
    s_mov_b32 {s(sPADV)}, 0x88008800
    s_mov_b32 {s(sPADV+1)}, 0x88008800
    s_mov_b32 {s(sSPIN)}, 0x20000
    s_mov_b32 {s(sONE)}, 0x3f803f80
    s_getreg_b32 {s(sL)}, hwreg(HW_REG_XCC_ID, 0, 4)
    s_lshr_b32 {s(t)}, {s(sI)}, 2
    s_lshl3_add_u32 {s(sT3)}, {s(sJ)}, {s(t)}
    s_and_b32 {s(t)}, {s(sI)}, 3
    s_lshl2_add_u32 {s(sFT)}, {s(t)}, {s(sW4)}
    s_cmp_ge_u32 {s(sI)}, 14
    s_cselect_b32 {s(t)}, 1, 0
    s_mul_i32 {s(t+1)}, {s(t)}, 14
    s_sub_u32 {s(sSL)}, {s(sI)}, {s(t+1)}
    s_lshl1_add_u32 {s(t)}, {s(sJ)}, {s(t)}
    s_lshl2_add_u32 {s(sT4)}, {s(t)}, {s(sW4)}
    s_mul_i32 {s(t)}, {s(sI)}, 37
    s_lshr_b32 {s(t)}, {s(t)}, 8
    s_mul_i32 {s(t+1)}, {s(t)}, 7
    s_sub_u32 {s(sC7)}, {s(sI)}, {s(t+1)}
    s_lshl2_add_u32 {s(t)}, {s(sJ)}, {s(t)}
    s_lshl_b32 {s(sT5)}, {s(t)}, 1
    s_lshl_b32 {s(sKVB)}, {s(sH)}, 18
    s_add_u32 {s(sKVB)}, {s(sKVB)}, {KV}
    s_waitcnt lgkmcnt(0)""")

def nonce(vt):
    a(f"""v_readfirstlane_b32 {s(sG)}, {v(vt)}
    s_add_u32 {s(sL)}, {s(sL)}, 1
    s_lshl_b32 {s(sL)}, {s(sL)}, 27
    s_mul_i32 {s(sG)}, {s(sG)}, 0x9E3779B1
    s_add_u32 {s(sG)}, {s(sG)}, 0x7F4A7C15
    s_xor_b32 {s(sL)}, {s(sL)}, {s(sG)}""")

vO, vS0, vS1, vK0, vK1, vV0, vV1, vQ = 16, 32, 48, 64, 68, 72, 76, 80
vPF = 128

def p1_A():
    XF = 128
    aK, aV, aQ, WB, MH, ML, RR, PK = 16, 32, 48, 64, 96, 100, 104, 120
    NB = 8
    vXA, vXR = 240, 244
    s1, s2, rstd, vEP, vWA, vKS, vONE, vTC = 248, 249, 250, 251, 252, 253, 254, 255
    XQ = cfg.xq
    chunks()
    a(f"""v_lshrrev_b32 v3, 3, v0
    v_and_b32 v4, 7, v0
    v_lshrrev_b32 v5, 1, v3
    v_xor_b32 v4, v4, v5
    v_mul_u32_u24 v3, 896, v3
    v_lshl_add_u32 {v(vXA)}, v4, 4, v3
    v_xor_b32 {v(vXA+1)}, 64, {v(vXA)}
    v_add_u32 {v(vXA+1)}, {7168-1024}, {v(vXA+1)}
    v_add_u32 {v(vXA+2)}, {14336-2048}, {v(vXA)}
    v_add_u32 {v(vXA+3)}, {14336-2048}, {v(vXA+1)}
    s_lshl2_add_u32 {s(sT)}, {s(sRB)}, {s(sW)}
    s_mul_i32 {s(sT)}, {s(sT)}, {32*896}
    s_mul_i32 {s(sM0)}, {s(sW)}, {12*K}
    s_waitcnt lgkmcnt(0)""")
    srd(SX, pX, 2048 * 896)
    stamp(0)
    nx = [0]
    def xop():
        k = nx[0]
        if k >= 28: return
        nx[0] += 1
        q, g = divmod(k, 4)
        if g == 0:
            a(f"""s_lshl_b32 {s(sT+1)}, {s(sCH+q)}, 7
            s_add_u32 m0, {s(sM0)}, {(q%3)*4096}
            s_add_u32 {s(sT+1)}, {s(sT+1)}, {s(sT)}""")
            if q >= 3: a.wait(lg=[("xr", q - 3)])
        a(f"buffer_load_dwordx4 {v(vXA+g)}, {s(SX,4)}, {s(sT+1)} offen offset:{1024*g} lds", ("x", k))
    XW = cfg.xw
    a(f"buffer_load_dword {v(vEP)}, {v(vF0)}, {s(SWS,4)}, 0 offen sc1", "ep")
    if cfg.xtouch:
        a(f"""s_lshl_b32 {s(sT+2)}, {s(sRB)}, 4
        s_add_u32 {s(sT+2)}, {s(sT+2)}, {s(sH)}
        s_mul_i32 {s(sT+2)}, {s(sT+2)}, 7168
        s_mul_i32 {s(sT+3)}, {s(sW)}, 1792
        s_add_u32 {s(sT+2)}, {s(sT+2)}, {s(sT+3)}
        v_min_u32 v3, 13, v0
        v_lshlrev_b32 v3, 7, v3
        buffer_load_dword {v(vTC)}, v3, {s(SX,4)}, {s(sT+2)} offen""")
    roles(sT + 2)
    a(f"""v_and_b32 v3, 31, v0
    v_lshrrev_b32 v4, 5, v0
    v_bfe_u32 v5, v3, 1, 3
    v_xor_b32 v5, v5, v4
    v_lshlrev_b32 v6, 7, v3
    v_lshl_add_u32 v6, v5, 4, v6
    v_add_u32 {v(vXR)}, {s(sM0)}, v6
    v_xor_b32 {v(vXR+1)}, 32, {v(vXR)}
    v_xor_b32 {v(vXR+2)}, 64, {v(vXR)}
    v_xor_b32 {v(vXR+3)}, 0x60, {v(vXR)}
    v_mov_b32 {v(s1)}, 0
    v_mov_b32 {v(s2)}, 0
    v_add_u32 {v(vWA)}, {L_W}, {v(vL16)}
    v_mov_b32 {v(vONE)}, {s(sONE)}
    v_bfe_u32 v5, v3, 2, 1
    v_bfe_u32 v6, v3, 3, 1
    v_and_b32 v7, 0x33, v0
    v_lshl_or_b32 v7, v5, 3, v7
    v_lshl_or_b32 v7, v6, 2, v7
    v_lshlrev_b32 {v(vKS)}, 4, v7
    s_lshl_b32 {s(sT+4)}, {s(sW)}, 7
    s_add_u32 {s(sT+4)}, {s(sT+4)}, {L_RS}
    v_lshl_add_u32 v10, v3, 2, {s(sT+4)}
    v_lshl_add_u32 v11, v4, 4, {s(sT+4)}
    v_lshlrev_b32 v12, 7, v3""")
    a(f"""s_lshl2_add_u32 {s(sT+5)}, {s(sRB)}, {s(sW)}
    s_lshl_b32 {s(sT+2)}, {s(sT+5)}, 12
    s_add_u32 {s(sT+2)}, {s(sT+2)}, {s(sKVB)}
    s_lshl_b32 {s(sT+3)}, {s(sH)}, 6
    s_add_u32 {s(sT+3)}, {s(sT+3)}, {s(sT+5)}
    s_lshl_b32 {s(sT+3)}, {s(sT+3)}, 2
    s_add_u32 {s(sT+3)}, {s(sT+3)}, {FA}
    s_lshl_b32 {s(sT+4)}, {s(sW)}, 12
    v_add_u32 v4, {s(sT+4)}, {v(vKS)}
    v_add_u32 v5, {s(sT+4)}, {v(vL16)}
    s_lshl_b32 {s(sT+4)}, {s(sW)}, 11
    s_add_u32 {s(sT+4)}, {s(sT+4)}, {L_QX}
    v_add_u32 v6, {s(sT+4)}, {v(vL16)}
    v_add_u32 v7, {56*K}, {v(vWA)}
    v_mov_b32 v8, {L_MODE}
    s_lshl_b32 {s(sP0D)}, {s(sB)}, 2
    s_add_u32 {s(sP0D)}, {s(sP0D)}, {FP0}
    s_cmp_eq_u32 {s(sW)}, 0
    s_cselect_b32 {s(sP0D)}, {s(sP0D)}, {OOB}""")
    def xread(q):
        a.wait(vm=[("x", 4 * q + 3)])
        stamp(20 + q)
        for t in range(4):
            a(f"ds_read_b128 {v(XF+16*q+4*t,4)}, {v(vXR+t)} offset:{(q%3)*4096}", ("xr", q))
    def xdot(q, lo=0, hi=16):
        a.wait(lg=[("xr", q)])
        for r in range(lo, hi):
            a(f"v_dot2c_f32_bf16 {v(s1)}, {s(sONE)}, {v(XF+16*q+r)}\nv_dot2c_f32_bf16 {v(s2)}, {v(XF+16*q+r)}, {v(XF+16*q+r)}")
    a.wait(vm=["ep"]); nonce(vEP)
    stamp(19)
    a("s_barrier")
    for k in range(cfg.x0n): xop()
    def xadv(k):
        a.wait(vm=[("x", k)])
        if k % 4 == 3: xread(k // 4)
        if k + 1 >= cfg.x0n:
            while nx[0] < min(k + 1 + XW, 28): xop()
        if k == 27 and cfg.kvtouch: a(f"buffer_load_dword {v(vTC)}, v12, {s(SWS,4)}, {s(sT+2)} offen sc1")
    for k in range(4 * XQ + 4):
        xadv(k)
        if k >= 4: xdot(k // 4 - 1, 4 * (k % 4), 4 * (k % 4) + 4)
    xdot(XQ)
    fin = [I(x) for x in f"""v_mov_b32 v3, {v(s1)}
    v_mov_b32 v9, {v(s2)}
    v_permlane32_swap_b32 v3, {v(s1)}
    v_permlane32_swap_b32 v9, {v(s2)}
    v_add_f32 v3, v3, {v(s1)}
    v_add_f32 v9, v9, {v(s2)}
    v_mul_f32 v3, {f32(-1.0/448)}, v3
    v_mul_f32 v9, {f32(1.0/448)}, v9
    v_fma_f32 v9, -v3, v3, v9
    v_max_f32 v9, 0, v9
    v_add_f32 v9, {f32(1e-5)}, v9
    v_rsq_f32 {v(rstd)}, v9
    {cvt(MH, 3, 3)}
    ds_write_b32 v10, {v(rstd)}
    v_and_b32 v9, 0xffff0000, {v(MH)}
    v_sub_f32 v9, v3, v9
    {cvt(ML, 9, 9)}""".split("\n")]
    for t in range(1, 4): fin += [I(f"v_mov_b32 {v(MH+t)}, {v(MH)}"), I(f"v_mov_b32 {v(ML+t)}, {v(ML)}")]
    fin += [I(f"ds_read_b128 {v(RR+4*g,4)}, v11 offset:{32*g}", "rr") for g in range(4)]
    acc = [aK, aV, aQ]
    groups = [[0, 1], [2]] if cfg.ne == 2 else [[0], [1], [2]]
    reads = []
    for gr in groups: reads += [(m, q) for q in range(28) for m in gr] + [(m, 28) for m in gr]
    buf = {r: WB + 4 * (n % NB) for n, r in enumerate(reads)}
    nread = [0]
    def issue_read():
        if nread[0] >= len(reads): return
        m, q = reads[nread[0]]; nread[0] += 1
        if (m, q) == (0, 0):
            stamp(2)
            a("s_barrier")
            stamp(3)
            a("ds_read_b32 v14, v8", "mode")
        if (m, q) == (0, 4 * cfg.na): a("s_barrier")
        if q == 28 and any(m == gr[0] for gr in groups):
            a.wait(lg=[("xr", 6)])
            stamp(27 + 2 * m); a("s_barrier"); stamp(28 + 2 * m)
        off = (m * 28 + q) * K if q < 28 else (L_AUG - L_W) + m * K
        if off >= 56 * K: a(f"ds_read_b128 {v(buf[(m,q)],4)}, v7 offset:{off-56*K}", ("w", m, q))
        else: a(f"ds_read_b128 {v(buf[(m,q)],4)}, {v(vWA)} offset:{off}", ("w", m, q))
    for _ in range(NB - 1): issue_read()
    a("s_setprio 1")
    a.wait(lg=["mode"])
    a(f"v_readfirstlane_b32 {s(sMODE)}, v14")
    def item(m, q):
        def f():
            w = buf[(m, min(q, 28))]
            x = XF + 4 * q if q < 28 else (MH if q == 28 else ML)
            a.wait(lg=[("w", m, min(q, 28))])
            a(mfma(acc[m], x, w, acc[m] if q else None) if m == 1 else mfma(acc[m], w, x, acc[m] if q else None))
            if q != 28: issue_read()
        return f
    epK = [I(f"v_mul_f32 {v(aK+r)}, {v(aK+r)}, {v(rstd)}") for r in range(16)]
    epK += [I(f"v_cndmask_b32 {v(aK+12+t)}, {v(aK+12+t)}, {'1.0' if t < 3 else '0'}, {s(sUP,2)}") for t in range(4)]
    epK += [I(cvt(PK + t, aK + 2 * t, aK + 2 * t + 1)) for t in range(8)]
    epK += [I(f"buffer_store_dwordx4 {v(PK+4*u,4)}, {v(vKS)}, {s(SWS,4)}, {s(sT+2)} offen offset:{u*K}{SC1(cfg.kvs)}") for u in range(2)]
    epKl = [I(f"ds_write_b128 v4, {v(PK+4*u,4)} offset:{u*K}", "kw") for u in range(2)]
    epV = [lambda: a.wait(lg=["rr"])] + [I(f"v_mul_f32 {v(aV+r)}, {v(aV+r)}, {v(RR+r)}") for r in range(16)]
    epV += [I(cvt(RR + t, aV + 2 * t, aV + 2 * t + 1)) for t in range(8)]
    epV += [I(f"v_cndmask_b32 {v(RR+t)}, {v(RR+t)}, {v(vONE)}, {s(sPADV,2)}") for t in range(8)]
    epV += [I(f"buffer_store_dwordx4 {v(RR+4*u,4)}, {v(vL16)}, {s(SWS,4)}, {s(sT+2)} offen offset:{(2+u)*K}{SC1(cfg.kvs)}") for u in range(2)]
    epVl = [I(f"ds_write_b128 v5, {v(RR+4*u,4)} offset:{(2+u)*K}", "vw") for u in range(2)]
    g0 = groups[0]
    early = [item(m, q) for q in range(28) for m in g0]
    per = 4 * len(g0)
    done = 0
    for c in range(XQ + 1, 7):
        upto = min(c, -(-(7 - cfg.lagend) * (c - XQ) // (6 - XQ))) * per
        cnt = upto - done
        for g in range(4):
            for f in early[done + cnt * g // 4: done + cnt * (g + 1) // 4 - (2 if g == 3 else 0)]: f()
            xadv(4 * c + g)
        for f in early[upto - 2: upto]: f()
        done = upto
        xdot(c)
    stamp(1)
    interleave(early[done:], fin, 0, 4)
    for m in g0: item(m, 28)(); item(m, 29)()
    if cfg.ne == 2:
        interleave([item(2, q) for q in range(20)], epK + epV + epKl + epVl, 0, 4)
    else:
        interleave([item(1, q) for q in range(30)], epK + epKl, 1, 4)
        interleave([item(2, q) for q in range(20)], epV + epVl, 1, 4)
    interleave([item(2, q) for q in range(20, 30)], [I(f"v_mul_f32 {v(rstd)}, {f32(28**-0.5*math.log2(math.e))}, {v(rstd)}")], 0, 1)
    stamp(4)
    publish(sT + 3, 9, thru=cfg.kvs)
    for r in range(16): a(f"v_mul_f32 {v(aQ+r)}, {v(aQ+r)}, {v(rstd)}")
    for t in range(4): a(f"v_cndmask_b32 {v(aQ+12+t)}, {v(aQ+12+t)}, 0, {s(sUP,2)}")
    a(f"v_mul_f32 v9, {v(aQ)}, {v(aK)}\nv_mul_f32 v10, {v(aQ+1)}, {v(aK+1)}")
    for r in range(2, 16): a(f"v_fmac_f32 {v(9+r%2)}, {v(aQ+r)}, {v(aK+r)}")
    a("v_add_f32 v9, v9, v10")
    for t in range(3): a(cvt(vQ + t, aQ + 2 * t, aQ + 2 * t + 1))
    a("v_mov_b32 v10, v9")
    for t in range(3, 6): a(cvt(vQ + t, aQ + 2 * t, aQ + 2 * t + 1))
    a(f"""v_permlane32_swap_b32 v9, v10
    {cvt(vQ+7, aQ+14, aQ+15)}
    ds_write_b128 v6, {v(vQ,4)}
    v_add_f32 v9, v9, v10
    v_cndmask_b32 {v(aQ+12)}, {v(aQ+12)}, -v9, {s(sUP,2)}
    {cvt(vQ+6, aQ+12, aQ+13)}
    ds_write_b128 v6, {v(vQ+4,4)} offset:{K}""")
    a(f"""s_lshl_b32 {s(sPF)}, {s(sFT)}, 15
    s_add_u32 {s(sPF)}, {s(sPF)}, {WOT}
    s_cmp_lt_u32 {s(sFT)}, 14
    s_cselect_b32 {s(sPF)}, {s(sPF)}, {OOB}""")
    att_setup(0)
    stamp(5)
    a("s_waitcnt lgkmcnt(0)\ns_barrier")

SLOT = [0, 4, 5, 6, 7, 8, 9, 5, 6, 7, 8, 9, 5, 6, 7, 8]
PRE = 2

def p1_B():
    vRA, vT0, vT1, vST, vEP, vWA, vAU = 16, 17, 18, 19, 20, 21, 22
    FR = 32
    a("LB_start:")
    a.reset_q()
    a(f"""s_setprio 3
    v_lshrrev_b32 v3, 4, v0
    v_and_b32 v4, 15, v0
    v_mul_u32_u24 v5, 2688, v3
    v_lshl_add_u32 {v(vRA)}, v4, 4, v5
    s_add_u32 {s(sT)}, {s(sW4)}, 1
    s_cmp_eq_u32 {s(sT)}, 3
    s_cselect_b32 {s(sT)}, 0, {s(sT)}
    s_mul_i32 {s(sT)}, {s(sT)}, 896
    s_mul_i32 {s(sT+1)}, {s(sJ)}, 112
    s_and_b32 {s(sT+2)}, {s(sT+1)}, 127
    s_sub_u32 {s(sT+1)}, {s(sT+1)}, {s(sT+2)}
    s_add_u32 {s(sT)}, {s(sT)}, {s(sT+1)}
    s_mul_i32 {s(sT+1)}, {s(sI)}, {16*2688}
    s_add_u32 {s(sT)}, {s(sT)}, {s(sT+1)}
    s_mul_i32 {s(sT+3)}, {s(sW4)}, {28*K}
    s_add_u32 {s(sT+3)}, {s(sT+3)}, {L_W}
    s_mov_b32 m0, {s(sT+3)}
    s_mov_b32 {s(SA+2)}, {448*2688}
    s_mov_b32 {s(SA+3)}, 0x20000
    s_cmp_lt_u32 {s(sI)}, 28
    s_cselect_b32 {s(sT+4)}, {s(sW4)}, 3
    s_cmp_eq_u32 {s(sT+4)}, 3
    s_waitcnt lgkmcnt(0)
    s_mov_b32 {s(SA)}, {s(pWQKV)}
    s_mov_b32 {s(SA+1)}, {s(pWQKV+1)}""")
    stamp(0)
    a("s_cbranch_scc1 LB_norep")
    for n in range(4):
        a(f"buffer_load_dwordx4 {v(vRA)}, {s(SA,4)}, {s(sT)} offen offset:{n*K} lds")
        if n < 3: a(f"s_add_u32 {s(sT)}, {s(sT)}, {4*2688-K}")
    a(f"""buffer_load_dword {v(vEP)}, {v(vF0)}, {s(SWS,4)}, 0 offen sc1
    s_mul_i32 {s(sT+6)}, {s(sJ)}, 6
    s_add_u32 {s(sT+6)}, {s(sT+6)}, {s(sW4)}
    s_mul_i32 {s(sT+6)}, {s(sT+6)}, 28
    s_add_u32 {s(sT+6)}, {s(sT+6)}, {s(sI)}
    s_lshl_b32 {s(sT+6)}, {s(sT+6)}, 10
    s_add_u32 {s(sT+6)}, {s(sT+6)}, {WP}
    s_add_u32 {s(sT+7)}, {s(sT+6)}, {84*K}""")
    if not cfg.wps:
        a(f"""v_and_b32 v5, 7, v0
        v_bfe_u32 v6, v0, 3, 1
        v_mul_u32_u24 v6, {84*K}, v6
        v_lshl_add_u32 v5, v5, 7, v6
        buffer_load_dword v9, v5, {s(SWS,4)}, {s(sT+6)} offen sc1""")
    chunks()
    roles(sT)
    a(f"""v_lshrrev_b32 v3, 5, v0
    v_bfe_u32 v4, v0, 2, 2
    v_lshl_add_u32 v4, v3, 3, v4
    v_lshlrev_b32 v4, 8, v4
    v_bfe_u32 v5, v0, 4, 1
    v_lshl_add_u32 v4, v5, 5, v4
    v_and_b32 v5, 3, v0
    v_lshl_add_u32 v4, v5, 3, v4
    s_add_u32 {s(sT+2)}, {s(sT+2)}, {s(sT+3)}
    v_add_u32 {v(vT0)}, {s(sT+2)}, v4
    v_and_b32 v5, 31, v0
    v_cmp_lt_u32 vcc, 10, v5
    v_addc_co_u32 v6, vcc, 0, v5, vcc
    v_cmp_lt_u32 vcc, 13, v5
    v_addc_co_u32 v6, vcc, 0, v6, vcc
    v_cmp_lt_u32 vcc, 24, v5
    v_addc_co_u32 v6, vcc, 0, v6, vcc
    v_and_b32 v7, 1, v5
    v_lshlrev_b32 v7, 2, v7
    v_bfe_u32 v8, v5, 1, 1
    v_lshl_add_u32 v7, v8, 4, v7
    v_add_u32 v7, 11, v7
    v_cmp_lt_u32 vcc, 27, v5
    v_cndmask_b32 v6, v6, v7, vcc
    s_cmp_eq_u32 {s(sW4)}, 1
    s_cselect_b64 vcc, -1, 0
    v_cndmask_b32 v6, v5, v6, vcc
    v_lshl_add_u32 v6, v3, 5, v6
    v_lshlrev_b32 {v(vST)}, 4, v6""")
    stamp(20)
    a("s_waitcnt vmcnt(0)")
    stamp(22)
    for e in range(2):
        for z in range(2):
            a(f"ds_read_b64_tr_b16 {v(FR+4*e+2*z,2)}, {v(vT0)} offset:{56*e+1024*z}")
    a(f"""s_waitcnt lgkmcnt(2)
    buffer_store_dwordx4 {v(FR,4)}, {v(vST)}, {s(SWS,4)}, {s(sT+6)} offen{SC1(cfg.wps)}
    s_waitcnt lgkmcnt(0)
    buffer_store_dwordx4 {v(FR+4,4)}, {v(vST)}, {s(SWS,4)}, {s(sT+7)} offen{SC1(cfg.wps)}
    s_branch LB_rep
    LB_norep:""")
    a(f"""buffer_load_dword {v(vEP)}, {v(vF0)}, {s(SWS,4)}, 0 offen sc1
    s_getpc_b64 {s(SC,2)}
    Lpc:
    s_sub_u32 {s(SC)}, {s(SC)}, Lpc-{KN}
    s_subb_u32 {s(SC+1)}, {s(SC+1)}, 0
    s_mov_b32 {s(SC+2)}, Lcode_end-{KN}
    s_mov_b32 {s(SC+3)}, 0x20000
    s_lshl_b32 {s(sT)}, {s(sI)}, 11
    v_and_b32 v5, 15, v0
    v_lshlrev_b32 v5, 7, v5
    v_and_b32 v6, 3, v0
    v_bfe_u32 v7, v0, 2, 1
    v_lshlrev_b32 v6, 7, v6
    v_lshl_add_u32 v6, v7, 12, v6
    s_lshl_b32 {s(sT+1)}, {s(sJ)}, 9
    s_add_u32 {s(sT+1)}, {s(sT+1)}, {FW}
    buffer_load_dword v9, v6, {s(SWS,4)}, {s(sT+1)} offen sc1
    buffer_load_dword v10, v5, {s(SC,4)}, {s(sT)} offen""")
    chunks()
    roles(sT)
    a("s_waitcnt vmcnt(2)\nLB_rep:\ns_barrier")
    nonce(vEP)
    stamp(1)
    a(f"""s_lshl_b32 {s(sT)}, {s(sJ)}, 9
    s_add_u32 {s(sT)}, {s(sT)}, {FW}
    s_lshl2_add_u32 {s(sT+1)}, {s(sI)}, {s(sW4)}
    s_lshl2_add_u32 {s(sT+1)}, {s(sT+1)}, {s(sT)}
    v_mov_b32 v3, {s(sL)}
    v_lshlrev_b32 v4, 3, v0
    s_mov_b32 {s(sMODE)}, 0
    s_mov_b32 {s(sT+2)}, {0 if cfg.force_global else cfg.n1}
    s_waitcnt vmcnt(0)
    buffer_store_dword v3, {v(vF0)}, {s(SWS,4)}, {s(sT+1)} offen""")
    if cfg.force_global: a("s_branch LB_wglob")
    a(f"""LB_wpoll:
    buffer_load_dwordx2 v[6:7], v4, {s(SWS,4)}, {s(sT)} offen sc1
    s_waitcnt vmcnt(0)
    v_cmp_ne_u32 vcc, {s(sL)}, v6
    v_cmp_ne_u32 {s(sCM,2)}, {s(sL)}, v7
    s_nop 1
    s_or_b64 vcc, vcc, {s(sCM,2)}
    s_cbranch_scc1 LB_wretry
    LB_wdone:""")
    ool.append(f"""LB_wretry:
    s_sub_u32 {s(sT+2)}, {s(sT+2)}, 1
    s_cbranch_scc0 LB_wpoll
    LB_wglob:
    s_mov_b32 {s(sMODE)}, 1
    buffer_wbl2 sc1
    s_add_u32 {s(sT+1)}, {s(sT+1)}, {GOFF}
    s_add_u32 {s(sT+2)}, {s(sT)}, {GOFF}
    v_mov_b32 v3, {s(sG)}
    s_waitcnt vmcnt(0)
    buffer_store_dword v3, {v(vF0)}, {s(SWS,4)}, {s(sT+1)} offen sc1
    LB_wgl:
    buffer_load_dwordx2 v[6:7], v4, {s(SWS,4)}, {s(sT)} offen sc1
    buffer_load_dwordx2 v[8:9], v4, {s(SWS,4)}, {s(sT+2)} offen sc1
    s_waitcnt vmcnt(0)
    v_cmp_ne_u32 vcc, {s(sL)}, v6
    v_cmp_ne_u32 {s(sCM,2)}, {s(sG)}, v8
    s_nop 1
    s_and_b64 {s(sT+4,2)}, vcc, {s(sCM,2)}
    v_cmp_ne_u32 vcc, {s(sL)}, v7
    v_cmp_ne_u32 {s(sCM,2)}, {s(sG)}, v9
    s_nop 1
    s_and_b64 vcc, vcc, {s(sCM,2)}
    s_or_b64 vcc, vcc, {s(sT+4,2)}
    s_cbranch_scc0 LB_wgd
    s_sub_u32 {s(sSPIN)}, {s(sSPIN)}, 1
    s_cbranch_scc0 LB_wgl
    s_mov_b32 {s(sSPIN)}, 0
    LB_wgd:
    buffer_inv sc1
    s_waitcnt vmcnt(0)
    s_branch LB_wdone""")
    a.reset_q()
    stamp(2)
    a(f"""s_mul_i32 {s(sT)}, {s(sH)}, 84
    s_add_u32 {s(sT)}, {s(sT)}, {s(sW4)}
    s_lshl_b32 {s(sT)}, {s(sT)}, 10
    s_add_u32 {s(sT)}, {s(sT)}, {WP}
    s_lshl_b32 {s(sM0)}, {s(sW4)}, 10""")
    for q in range(7): a(f"s_lshl_b32 {s(sCH+q)}, {s(sCH+q)}, 12\ns_add_u32 {s(sCH+q)}, {s(sCH+q)}, {s(sT)}")
    groups = [[0, 1], [2]] if cfg.ne == 2 else [[0], [1], [2]]
    def wdma(gr):
        for q in range(7):
            for m in gr:
                a(f"s_add_u32 m0, {s(sM0)}, {L_W+(m*28+4*q)*K}")
                if m: a(f"s_add_u32 {s(sCH+q)}, {s(sCH+q)}, {28*K}")
                else: a("s_nop 0")
                a(f"buffer_load_dwordx4 {v(vL16)}, {s(SWS,4)}, {s(sCH+q)} offen sc1 lds", ("w", m, q))
    wdma(groups[0])
    stamp(23)
    a(f"""v_mov_b32 v3, {s(sMODE)}
    v_mov_b32 v4, {L_MODE}
    ds_write_b32 v4, v3
    s_add_u32 {s(sT)}, {s(sM0)}, {L_W}
    v_add_u32 {v(vWA)}, {s(sT)}, {v(vL16)}
    s_lshl_b32 {s(sT)}, {s(sW4)}, 2
    s_add_u32 {s(sT)}, {s(sT)}, {L_AUG}
    v_add_u32 {v(vAU)}, {s(sT)}, {v(vL16)}
""")
    def p0par():
        a(f"""s_lshl2_add_u32 {s(sT)}, {s(sB)}, {s(sW4)}
        s_mul_i32 {s(sT+1)}, {s(sT)}, 9363
        s_lshr_b32 {s(sT+1)}, {s(sT+1)}, 16
        s_mul_i32 {s(sT+2)}, {s(sT+1)}, 7
        s_sub_u32 {s(sT+2)}, {s(sT)}, {s(sT+2)}
        s_sub_u32 {s(sT+3)}, {s(sT+1)}, 32
        s_cmp_lt_u32 {s(sT+1)}, 32
        s_cselect_b32 {s(SB_)}, {s(pWO)}, {s(pW2)}
        s_cselect_b32 {s(SB_+1)}, {s(pWO+1)}, {s(pW2+1)}
        s_cselect_b32 {s(SB_+2)}, 1, 4
        s_cselect_b32 {s(sT+1)}, {s(sT+1)}, {s(sT+3)}
        s_cselect_b32 {s(sT+3)}, 14, 16
        s_cselect_b32 {s(sP0DS)}, 2, 7
        s_cselect_b32 {s(sP0M)}, 0xffff, -1
        s_cselect_b32 {s(sT+4)}, 3, 4
        s_cselect_b32 {s(sP0D)}, 0, {W2T-WOT}
        s_mul_i32 {s(SB_+2)}, {s(SB_+2)}, {448*896}
        s_mov_b32 {s(SB_+3)}, 0x20000
        s_lshl_b32 {s(sP0DS)}, {s(sP0DS)}, 14
        s_lshl_b32 {s(sT+4)}, {s(sT+4)}, 7
        s_mul_i32 {s(sT+3)}, {s(sT+3)}, {s(sT+1)}
        s_mul_i32 {s(sT+3)}, {s(sT+3)}, 896
        s_lshl_b32 {s(sT+5)}, {s(sT+2)}, 7
        s_add_u32 {s(sP0ST)}, {s(sT+3)}, {s(sT+5)}
        s_lshl_b32 {s(sT+1)}, {s(sT+1)}, 10
        s_add_u32 {s(sP0D)}, {s(sP0D)}, {s(sT+1)}
        s_mul_i32 {s(sT+2)}, {s(sT+2)}, {s(sP0DS)}
        s_lshl1_add_u32 {s(sP0D)}, {s(sT+2)}, {s(sP0D)}
        s_add_u32 {s(sP0D)}, {s(sP0D)}, {WOT}
        s_cmp_lt_u32 {s(sT)}, 1008
        s_cselect_b32 {s(sP0D)}, {s(sP0D)}, {OOB}
        s_add_u32 {s(sP0E)}, {s(sP0D)}, {s(sP0DS)}
        v_lshrrev_b32 v3, 3, v0
        v_and_b32 v4, 7, v0
        v_mul_u32_u24 v5, 896, v3
        v_lshl_add_u32 {v(vRA)}, v4, 4, v5
        s_lshl_b32 {s(sT+3)}, {s(sW4)}, 12
        s_add_u32 {s(sT+3)}, {s(sT+3)}, {L_P0}
        v_lshrrev_b32 v3, 5, v0
        v_bfe_u32 v4, v0, 2, 2
        v_lshlrev_b32 v4, 7, v4
        v_bfe_u32 v5, v0, 4, 1
        v_lshl_add_u32 v4, v5, 5, v4
        v_and_b32 v5, 3, v0
        v_lshl_add_u32 v4, v5, 3, v4
        v_add_u32 v4, {s(sT+3)}, v4
        v_lshl_add_u32 {v(vT0)}, v3, 9, v4
        v_mad_u32_u24 {v(vT1)}, v3, {s(sT+4)}, v4
        s_mov_b32 m0, {s(sT+3)}
        s_add_u32 {s(sT+1)}, {s(sP0ST)}, {8*896-K}""")
    def colsum(m):
        for q in range(7):
            off = (m * 28 + 4 * q) * K
            if off >= 56 * K and q == 0: a(f"v_add_u32 {v(vWA)}, {56*K}, {v(vWA)}")
            a(f"ds_read_b128 {v(FR+4*q,4)}, {v(vWA)} offset:{off % (56*K)}", ("c", q))
        for q in range(7):
            a.wait(lg=[("c", q)])
            for t in range(4):
                r = FR + 4 * q + t
                if q == 0 and t == 0: a(f"v_and_b32 v3, 0xffff0000, {v(r)}\nv_lshlrev_b32 v4, 16, {v(r)}")
                else: a(f"v_and_b32 v5, 0xffff0000, {v(r)}\nv_lshlrev_b32 v6, 16, {v(r)}\nv_add_f32 v3, v3, v5\nv_add_f32 v4, v4, v6")
        a(f"""v_add_f32 v3, v3, v4
        {cvt(4, 3, 3)}
        v_and_b32 v4, 0xffff0000, v4
        v_sub_f32 v4, v3, v4
        {cvt(4, 3, 4)}
        ds_write_b32 {v(vAU)}, v4 offset:{m*K}""")
    a.wait(vm=[("w", m, cfg.na - 1) for m in groups[0]])
    a("s_waitcnt lgkmcnt(0)")
    stamp(3)
    a("s_barrier")
    for gr in groups[1:]: wdma(gr)
    a("s_setprio 0")
    a.wait(vm=[("w", m, 6) for m in groups[0]])
    a("s_barrier")
    colsum(0)
    if cfg.ne == 1:
        a.wait(vm=[("w", 1, 6)])
        a("s_waitcnt lgkmcnt(0)\ns_barrier")
    colsum(1)
    p0par()
    a(f"buffer_load_dwordx4 {v(vRA)}, {s(SB_,4)}, {s(sP0ST)} offen lds", "p0")
    a(f"buffer_load_dwordx4 {v(vRA)}, {s(SB_,4)}, {s(sT+1)} offen offset:{K} lds", "p0")
    stamp(12)
    a.wait(vm=[("w", 2, 6)])
    a("s_waitcnt lgkmcnt(0)")
    stamp(13)
    a("s_barrier")
    colsum(2)
    a("s_waitcnt lgkmcnt(0)")
    stamp(14)
    a("s_barrier")
    stamp(4)
    a.wait(vm=["p0"])
    for t in range(2):
        a(f"ds_read_b64_tr_b16 {v(vP0+4*t,2)}, {v(vT0)} offset:{64*t}")
        a(f"ds_read_b64_tr_b16 {v(vP0+4*t+2,2)}, {v(vT1)} offset:{64*t+1024}")
    att_setup(1)
    a("s_waitcnt lgkmcnt(0)")
    for t in range(2): a(f"v_and_b32 {v(vP0+4*t+3)}, {s(sP0M)}, {v(vP0+4*t+3)}")
    srd(SB_, pW1, 448 * 3584)
    a(f"""s_mul_i32 {s(sPF)}, {s(sW4)}, {16*3584}
    s_lshl_b32 {s(sT+1)}, {s(sSL)}, 8
    s_add_u32 {s(sPF)}, {s(sPF)}, {s(sT+1)}
    s_cmp_lt_u32 {s(sI)}, 28
    s_cselect_b32 {s(sPF)}, {s(sPF)}, {OOB}
    s_cmp_eq_u32 {s(sW)}, 7
    s_cselect_b32 {s(sFLO)}, {FP0}, {OOB}
    s_cselect_b32 {s(sP0M)}, {s(sG)}, 0
    s_lshl_b32 {s(sP0DS)}, {s(sW4)}, 12
    s_lshl_b32 {s(sT+4)}, {s(sW4)}, 11
    s_add_u32 {s(sT+4)}, {s(sT+4)}, {L_QX}
    v_add_u32 v9, {s(sT+4)}, {v(vL16)}
    v_lshrrev_b32 v10, 4, v0
    v_and_b32 v11, 15, v0
    v_lshlrev_b32 v12, 2, v10
    v_xor_b32 v11, v11, v12
    v_mul_u32_u24 v10, 3584, v10
    v_lshl_add_u32 {v(vW1)}, v11, 4, v10
    s_lshl_b32 {s(sT)}, {s(sH)}, 8
    s_add_u32 {s(sT)}, {s(sT)}, {FA}
    v_lshlrev_b32 v3, 2, v0""")
    poll(sT, 3, 10)
    a.reset_q()
    stamp(5)
    for be in range(1, PRE + 1):
        a(f"""s_add_u32 {s(sKO)}, {s(sKO)}, {16*K}
        s_and_b32 {s(sKO)}, {s(sKO)}, {240*K}
        s_add_u32 m0, {s(sP0DS)}, {SLOT[be]*16*K}
        s_add_u32 {s(sT)}, {s(sKO)}, {s(sKVB)}""")
        for n in range(4):
            a(f"buffer_load_dwordx4 {v(vL16)}, {s(SWS,4)}, {s(sT)} offen offset:{n*K} sc1 lds", ("kv", be))
    a("s_barrier")
    a(f"""ds_read_b128 {v(vQ,4)}, v9
    ds_read_b128 {v(vQ+4,4)}, v9 offset:{K}""", "q")

vXR, vB1, sW2 = 88, 88, 95
vW1, vKV, vP0 = 89, 96, 100
sKO, sP0E, sFLO = 54, 55, 86
def wreg(q): return vPF + 4 * q if q < 32 else 32 + 4 * (q - 32)
nw = [0]
def w2load(cnt, win):
    for _ in range(cnt):
        p = nw[0]; nw[0] += 1
        if win and p >= win: a.wait(vm=[("w2", p - win)])
        a(f"buffer_load_dwordx4 {v(wreg(p),4)}, {v(vL16)}, {s(SWS,4)}, {s(sW2)} offen offset:{(p%4)*K} sc1", ("w2", p))
        if p % 4 == 3: a(f"s_add_u32 {s(sW2)}, {s(sW2)}, {4*K}")
vA0, vIDX, vFL = 4, 7, 8
def att_setup(g):
    a(f"""v_add_u32 {v(vA0)}, {g*8*K}, {v(vL16)}
    v_add_u32 {v(vA0+1)}, {g*8*K+64*K}, {v(vL16)}
    v_add_u32 {v(vA0+2)}, {g*8*K+128*K}, {v(vL16)}
    v_mov_b32 {v(vIDX)}, 0xdddddddd
    s_lshl_b32 {s(sM0)}, {s(sW)}, 11
    s_add_u32 {s(sT)}, {s(sKVB)}, {s(sM0)}
    v_add_u32 {v(vKV)}, {s(sT)}, {v(vL16)}
    s_add_u32 {s(sKO)}, {s(sRB)}, {0 if g else PRE}
    s_lshl_b32 {s(sKO)}, {s(sKO)}, 14""")
    if g: a(f"s_lshl_b32 {s(sT)}, {s(sW4)}, 12\ns_add_u32 {s(sKVB)}, {s(sKVB)}, {s(sT)}")
    else: a(f"v_mov_b32 v13, {s(sG)}")
    if g == 0:
        a(f"""v_and_b32 v8, 31, v0
        v_mul_u32_u24 v8, 896, v8
        v_lshrrev_b32 v9, 5, v0
        v_lshl_add_u32 v8, v9, 3, v8
        s_mul_i32 {s(sP0DS)}, {s(sT3)}, {32*896}
        s_lshl_b32 {s(sT+2)}, {s(sFT)}, 6
        s_add_u32 {s(sP0DS)}, {s(sP0DS)}, {s(sT+2)}""")
    else:
        srd(SA, pB1, 3584)
        a(f"""s_lshl2_add_u32 {s(sT)}, {s(sSL)}, {s(sW4)}
        s_lshl_b32 {s(sP0ST)}, {s(sT)}, 6
        s_and_b32 {s(sT)}, {s(sW4)}, 1
        s_lshl1_add_u32 {s(sT)}, {s(sC7)}, {s(sT)}
        s_lshr_b32 {s(sT+3)}, {s(sW4)}, 1
        s_lshl1_add_u32 {s(sT)}, {s(sT)}, {s(sT+3)}
        s_mul_i32 {s(sW2)}, {s(sT)}, {56*K}
        s_add_u32 {s(sW2)}, {s(sW2)}, {W2T}
        s_cmp_lt_u32 {s(sI)}, 28
        s_cselect_b32 {s(sW2)}, {s(sW2)}, {OOB}
        v_and_b32 {v(vB1)}, 31, v0
        v_lshlrev_b32 {v(vB1)}, 1, {v(vB1)}""")
    if g: a("v_and_b32 v13, 15, v0\nv_lshlrev_b32 v13, 7, v13\nv_and_b32 v14, 7, v0\nv_lshlrev_b32 v14, 7, v14")
    for r in range(16): a(f"v_mov_b32 {v(vO+r)}, 0")

BARS = {1: 2, 4: 4, 8: 6, 12: 8, 16: 10, 20: 12, 24: 14, 28: 15}
def attention(role):
    stamp(6)
    def rd(dst, n, part, tag):
        addr = SLOT[n // 2] * 16 * K + (n % 2) * 4 * K + part * K
        a(f"ds_read_b128 {v(dst,4)}, {v(vA0 + addr // (64*K))} offset:{addr % (64*K)}", tag)
    vm = {n: [] for n in range(-1, 32)}
    sched = {3: -1, 4: 0, 5: 1, 6: 2}
    for be in range(7, 16): sched[be] = 4 * ((be - 3) // 2) + (be - 3) % 2
    bl = sorted(BARS)
    for n, n2 in zip(bl, bl[1:] + [32]): assert BARS[n] >= min((n2 + 1) // 2, 15)
    for be, s0 in sched.items():
        prev = [p for p in range(be) if SLOT[p] == SLOT[be]]
        if prev: assert any(b <= s0 and 2 * prev[-1] <= b - 2 for b in BARS), (be, s0)
        assert s0 < min(b for b, u in BARS.items() if u >= be)
        def first(be=be):
            a(f"""s_add_u32 m0, {s(sM0)}, {SLOT[be]*16*K}
            s_add_u32 {s(sKO)}, {s(sKO)}, {16*K}
            s_and_b32 {s(sKO)}, {s(sKO)}, {240*K}""")
            a(f"buffer_load_dwordx4 {v(vKV)}, {s(SWS,4)}, {s(sKO)} offen sc1 lds", ("kv", be))
        def second(be=be):
            a(f"buffer_load_dwordx4 {v(vKV)}, {s(SWS,4)}, {s(sKO)} offen offset:{K} sc1 lds", ("kv", be))
        vm[s0] += [first, second]
    def spread(ops, lo, hi):
        lvl = 0
        while sum(max(0, lvl - len(vm[n])) for n in range(lo, hi)) < len(ops): lvl += 1
        room = [n for n in range(lo, hi) for _ in range(max(0, lvl - len(vm[n])))]
        extra = len(room) - len(ops)
        top = [n for n in range(lo, hi) if lvl > len(vm[n])]
        for t in range(extra): room.remove(top[(t * len(top)) // extra])
        for n, o in zip(room, ops): vm[n].append(o)
    CK = cfg.p0ck
    if role == 0:
        ops = []
        for p in range(32):
            def ld(p=p):
                a(f"buffer_load_dwordx4 {v(vPF+4*p,4)}, {v(vL16)}, {s(SWS,4)}, {s(sPF)} offen offset:{(p%4)*K} sc1", "pf")
                if p % 4 == 3: a(f"s_add_u32 {s(sPF)}, {s(sPF)}, {4*K}")
            ops.append(ld)
        vm[3] += [I(f"buffer_load_dwordx2 {v(vXR+2*g,2)}, v8, {s(SX,4)}, {s(sP0DS)} offen offset:{16*g}") for g in range(4)]
        vm[4].append(I(f"buffer_store_dword v13, {v(vF0)}, {s(SWS,4)}, {s(sP0D)} offen sc1"))
        spread(ops, CK, 30)
    else:
        ops = []
        for p in range(28):
            def ld(p=p):
                a(f"s_add_u32 m0, {s(sP0DS)}, {(p//4)*16*K}")
                a(f"s_add_u32 {s(sT)}, {s(sPF)}, {(p//4)*64*3584 + (p%4)*(4*3584-K)}")
                a(f"buffer_load_dwordx4 {v(vW1)}, {s(SB_,4)}, {s(sT)} offen offset:{(p%4)*K} lds", ("w1", p // 4))
            ops.append(ld)
        vm[-1].append(I(f"buffer_store_dwordx4 {v(vP0,4)}, {v(vL16)}, {s(SWS,4)}, {s(sP0D)} offen sc1", "p0s"))
        vm[0].append(I(f"buffer_store_dwordx4 {v(vP0+4,4)}, {v(vL16)}, {s(SWS,4)}, {s(sP0E)} offen sc1", "p0s"))
        vm[CK - 2].append(I(f"buffer_load_dwordx4 {v(vFL,4)}, {v(vL16)}, {s(SWS,4)}, {s(sFLO)} offen sc1", "fl"))
        spread(ops[20:], 28, 31)
        spread(ops[4:16] + ops[0:4] + ops[16:20], 3, cfg.w1end)
        ops = [lambda: w2load(1, 0) for p in range(cfg.w2n0)]
        vm[3].append(I(f"buffer_load_ushort {v(vB1)}, {v(vB1)}, {s(SA,4)}, {s(sP0ST)} offen"))
        if cfg.touch:
            def t1():
                a(f"""s_mul_i32 {s(sT+1)}, {s(sT3)}, 28
                s_lshl1_add_u32 {s(sT+1)}, {s(sFT)}, {s(sT+1)}
                s_lshl_b32 {s(sT+1)}, {s(sT+1)}, 10
                s_add_u32 {s(sT+1)}, {s(sT+1)}, {HF}""")
                a(f"buffer_load_dword v12, v13, {s(SWS,4)}, {s(sT+1)} offen sc1")
            def t2():
                a(f"""s_lshl_b32 {s(sT+1)}, {s(sI)}, 10
                s_lshl_b32 {s(sT+2)}, {s(sJ)}, 15
                s_add_u32 {s(sT+1)}, {s(sT+1)}, {s(sT+2)}
                s_add_u32 {s(sT+1)}, {s(sT+1)}, {ST}""")
                a(f"buffer_load_dword v12, v14, {s(SWS,4)}, {s(sT+1)} offen sc1")
            def t3():
                a(f"""s_lshl_b32 {s(sT+1)}, {s(sJ)}, 10
                s_and_b32 {s(sT+2)}, {s(sW)}, 1
                s_lshl_b32 {s(sT+2)}, {s(sT+2)}, 13
                s_add_u32 {s(sT+1)}, {s(sT+1)}, {s(sT+2)}
                s_add_u32 {s(sT+1)}, {s(sT+1)}, {FC}""")
                a(f"buffer_load_dword v12, v14, {s(SWS,4)}, {s(sT+1)} offen sc1")
            ops += [t3] if cfg.hs else [t1, t2, t3]
        spread(ops, max(CK, cfg.w1end), 28)
    def flagcheck():
        a.wait(vm=["fl"])
        a(f"""Lp0c:
        v_xor_b32 {v(vFL)}, {v(vFL)}, {v(vFL+1)}
        v_xor_b32 {v(vFL+1)}, {v(vFL+1)}, {v(vFL+2)}
        v_xor_b32 {v(vFL+2)}, {v(vFL+2)}, {v(vFL+3)}
        v_xor_b32 {v(vFL+3)}, {s(sP0M)}, {v(vFL+3)}
        v_or3_b32 {v(vFL)}, {v(vFL)}, {v(vFL+1)}, {v(vFL+2)}
        v_or_b32 {v(vFL)}, {v(vFL)}, {v(vFL+3)}
        v_cmp_ne_u32 vcc, 0, {v(vFL)}
        s_cbranch_vccnz Lp0r
        Lp0d:""")
        ool.append(f"""Lp0r:
        buffer_load_dwordx4 {v(vFL,4)}, {v(vL16)}, {s(SWS,4)}, {s(sFLO)} offen sc1
        s_waitcnt vmcnt(0)
        {spin_tail('Lp0c', 'Lp0d')}""")
    def bar(n):
        if cfg.lst: stamp(40 + bl.index(n))
        if role == 1 and n == CK: flagcheck()
        a.wait(vm=[("kv", b) for b in range(1, BARS[n] + 1)] + (["p0s"] if n == 4 else []))
        a("s_barrier")
        if n == 1: rd(vK0, 2, 0, ("k0", 2)); rd(vK1, 2, 1, ("k1", 2))
    S = [vS0, vS1]
    rd(vK0, 0, 0, ("k0", 0)); rd(vK1, 0, 1, ("k1", 0))
    for n in range(-1, 32):
        cur, nxt = S[n % 2], S[(n + 1) % 2]
        if n >= 0:
            if n in BARS and role == 1: bar(n)
            a("s_setprio 0")
            for r in range(16):
                if r == 8: a("s_setprio 1")
                a(f"v_exp_f32 {v(cur+r)}, {v(cur+r)}")
        if n in BARS and role == 0: bar(n)
        a("s_setprio 2")
        def q0():
            if n < 31: a.wait(lg=["q", ("k0", n + 1)]); a(mfma(nxt, vK0, vQ, None))
            if n < 30 and n != 0: rd(vK0, n + 2, 0, ("k0", n + 2))
        def q1():
            if n < 31: a.wait(lg=[("k1", n + 1)]); a(mfma(nxt, vK1, vQ + 4, nxt))
            if n < 30 and n != 0: rd(vK1, n + 2, 1, ("k1", n + 2))
        def p0():
            if n >= 0: a.wait(lg=[("v0", n)]); a(smf(vO, vV0, cur, vIDX))
            if n < 31: rd(vV0, n + 1, 2, ("v0", n + 1))
        def p1():
            if n >= 0: a.wait(lg=[("v1", n)]); a(smf(vO, vV1, cur + 8, vIDX))
            if n < 31: rd(vV1, n + 1, 3, ("v1", n + 1))
        seq = [p0, q0, q1, p1] if (n == 1 and role == 0) else [q0, q1, p0, p1]
        ops = list(vm[n])
        for f in seq:
            f()
            if ops: ops.pop(0)()
        assert not ops
    a(f"""s_lshl_b32 {s(sT)}, {s(sW4)}, 12
    s_add_u32 {s(sT)}, {s(sT)}, {L_RED}
    v_add_u32 v3, {s(sT)}, {v(vL16)}""")

def post_A():
    stamp(7)
    XR = 88
    for g in range(4): a(f"ds_write_b128 v3, {v(vO+4*g,4)} offset:{g*K}")
    a(f"""v_mov_b32 v6, {s(sG)}
    s_waitcnt lgkmcnt(0)
    s_barrier""")
    stamp(33)
    a("s_waitcnt vmcnt(0)")
    for t in range(8):
        a(f"v_lshlrev_b32 {v(vO+2*t)}, 16, {v(XR+t)}\nv_and_b32 {v(vO+2*t+1)}, 0xffff0000, {v(XR+t)}")
    a(f"""s_lshl_b32 {s(sT)}, {s(sT3)}, 7
    s_add_u32 {s(sT)}, {s(sT)}, {FB}
    v_and_b32 v4, 15, v0
    v_lshlrev_b32 v4, 2, v4
    s_lshl_b32 {s(sT+1)}, {s(sT3)}, 15
    s_add_u32 {s(sT+1)}, {s(sT+1)}, {OF}
    s_lshl_b32 {s(sT+2)}, {s(sW)}, 12
    s_add_u32 {s(sT+1)}, {s(sT+1)}, {s(sT+2)}
    s_add_u32 {s(sT+3)}, {s(sT+1)}, {16*K}
    s_add_u32 m0, {s(sT+2)}, {L_O}
    v_add_u32 v3, {L_O}, {v(vL16)}""")
    if cfg.spoll: poll_s(sT)
    else: poll_g(sT, 4, 5)
    a.reset_q()
    stamp(9)
    for n in range(4): a(f"buffer_load_dwordx4 {v(vL16)}, {s(SWS,4)}, {s(sT+1)} offen offset:{n*K} sc1 lds")
    a(f"s_add_u32 m0, {s(sT+2)}, {L_O+16*K}\ns_nop 0")
    for n in range(4): a(f"buffer_load_dwordx4 {v(vL16)}, {s(SWS,4)}, {s(sT+3)} offen offset:{n*K} sc1 lds")
    a(f"""s_or_b32 {s(sT)}, {s(sB)}, {s(sW)}
    s_cmp_eq_u32 {s(sT)}, 0
    s_cselect_b32 {s(sT)}, 0, {OOB}
    s_mul_i32 {s(sT+1)}, {s(sT3)}, 28
    s_lshl1_add_u32 {s(sT+1)}, {s(sFT)}, {s(sT+1)}
    s_lshl_b32 {s(sT+1)}, {s(sT+1)}, 10
    s_add_u32 {s(sT+1)}, {s(sT+1)}, {HF}
    s_lshl_b32 {s(sT+2)}, {s(sJ)}, 5
    s_add_u32 {s(sT+2)}, {s(sT+2)}, {s(sI)}
    s_lshl_b32 {s(sT+2)}, {s(sT+2)}, 8
    s_add_u32 {s(sT+2)}, {s(sT+2)}, {s(sW)}
    s_lshl_b32 {s(sT+2)}, {s(sT+2)}, 2
    s_add_u32 {s(sT+2)}, {s(sT+2)}, {ST}
    s_lshl_b32 {s(sT+3)}, {s(sT3)}, 5
    s_add_u32 {s(sT+3)}, {s(sT+3)}, {s(sFT)}
    s_lshl_b32 {s(sT+3)}, {s(sT+3)}, 2
    s_add_u32 {s(sT+3)}, {s(sT+3)}, {FC}
    s_waitcnt vmcnt(0)
    s_barrier""")
    stamp(10)
    a(f"""buffer_store_dword v6, {v(vF0)}, {s(SWS,4)}, {s(sT)} offen sc1
    s_cmp_ge_u32 {s(sFT)}, 14
    s_cbranch_scc1 LA_p3d""")
    NB = 12; OB = 32
    def ord_(n): a(f"ds_read_b128 {v(OB+4*(n%NB),4)}, v3 offset:{n*K}", ("o", n))
    for n in range(NB - 1): ord_(n)
    for n in range(32):
        a.wait(lg=[("o", n)])
        a(mfma(vO, vPF + 4 * n, OB + 4 * (n % NB), vO))
        if n + NB - 1 < 32: ord_(n + NB - 1)
    stamp(35)
    for u in range(2):
        for t in range(4): a(cvt(OB + 4 * u + t, vO + 8 * u + 2 * t, vO + 8 * u + 2 * t + 1))
        a(f"buffer_store_dwordx4 {v(OB+4*u,4)}, {v(vL16)}, {s(SWS,4)}, {s(sT+1)} offen offset:{u*K}{SC1(cfg.hs)}")
    a(f"v_add_f32 v8, {v(vO)}, {v(vO+1)}\nv_mul_f32 v9, {v(vO)}, {v(vO)}\nv_fmac_f32 v9, {v(vO+1)}, {v(vO+1)}")
    for r in range(2, 16): a(f"v_add_f32 v8, v8, {v(vO+r)}\nv_fmac_f32 v9, {v(vO+r)}, {v(vO+r)}")
    a(f"""v_permlane32_swap_b32 v8, v9
    v_add_f32 v8, v8, v9
    buffer_store_dword v8, {v(vL16)}, {s(SWS,4)}, {s(sT+2)} offen{SC1(cfg.hs)}""")
    publish(sT + 3, 5, thru=cfg.hs)
    a("LA_p3d:")
    stamp(11)
    a(f"s_cmp_ge_u32 {s(sI)}, 28\ns_cbranch_scc1 LA_idle")
    HB, AC, SS, AUG = 128, 16, 96, 240
    a(f"""s_lshl_b32 {s(sT)}, {s(sT4)}, 7
    s_add_u32 {s(sT)}, {s(sT)}, {FC}
    v_min_u32 v4, 13, v0
    v_lshlrev_b32 v4, 2, v4
    s_mul_i32 {s(sT+1)}, {s(sT4)}, {28*K}
    s_add_u32 {s(sT+1)}, {s(sT+1)}, {HF}
    s_lshl_b32 {s(sT+2)}, {s(sT4)}, 12
    s_add_u32 {s(sT+2)}, {s(sT+2)}, {ST}
    s_mul_i32 {s(sT+3)}, {s(sT4)}, 14
    s_add_u32 {s(sT+3)}, {s(sT+3)}, {s(sSL)}
    s_lshl_b32 {s(sT+3)}, {s(sT+3)}, 13
    s_add_u32 {s(sT+3)}, {s(sT+3)}, {HH}
    s_lshl_b32 {s(sT+4)}, {s(sT4)}, 5
    s_add_u32 {s(sT+4)}, {s(sT+4)}, {s(sSL)}
    s_lshl_b32 {s(sT+4)}, {s(sT+4)}, 2
    s_add_u32 {s(sT+4)}, {s(sT+4)}, {FD}
    v_add_u32 v7, {128*K}, {v(vL16)}""")
    WA = 244
    w1addr(WA, range(4), 8)
    wbufs = [80, 84, 88, 92, 112, 116, 120, 124]
    NB = len(wbufs)
    seq = [(t, q) for q in range(28) for t in range(3)] + [(t, 28) for t in range(3)] + [(3, q) for q in range(29)]
    nr = [0]
    def wread():
        if nr[0] >= len(seq): return
        t, q = seq[nr[0]]; b = wbufs[nr[0] % NB]; nr[0] += 1
        if q == 28: a(f"ds_read_b128 {v(b,4)}, v7 offset:{L_AUG1 + t*K - 128*K}", ("w", t, q))
        else:
            for z in range(2): a(f"ds_read_b64_tr_b16 {v(b+2*z,2)}, {v(WA + 2*t + q//16)} offset:{(q%16)*4*K + z*2*K}", ("w", t, q))
    for _ in range(NB - 1): wread()
    poll(sT, 4, 5)
    a.reset_q(lg=a.lgq)
    stamp(12)
    loads = []
    for q in range(28):
        def ld(q=q):
            a(f"buffer_load_dwordx4 {v(HB+4*q,4)}, {v(vL16)}, {s(SWS,4)}, {s(sT+1)} offen offset:{(q%4)*K} sc1", ("h", q))
            if q % 4 == 3: a(f"s_add_u32 {s(sT+1)}, {s(sT+1)}, {4*K}")
        loads.append(ld)
    for t in range(4):
        loads.insert(22 + 2 * t, I(f"buffer_load_dwordx{4 if t < 3 else 2} {v(SS+4*t,4 if t < 3 else 2)}, {v(vL16)}, {s(SWS,4)}, {s(sT+2)} offen offset:{t*K} sc1", "st"))
    for _ in range(cfg.hwin): loads.pop(0)()
    def it(n):
        t, q = seq[n]
        def f():
            if n in (0, 1, 30, 66, 84): stamp(50 + (0, 1, 30, 66, 84).index(n))
            a.wait(vm=[("h", q)] if q < 28 else None, lg=[("w",) + seq[min(n + 1 - n % 2, len(seq) - 1)]])
            a(mfma(AC + 16 * t, wbufs[n % NB], HB + 4 * q if q < 28 else AUG, AC + 16 * t if q else None))
            if loads and n % 2 == 1: loads.pop(0)()
            if n == cfg.p4b: a("s_barrier")
            wread()
        return f
    stats = [lambda: a.wait(vm=["st"])]
    for t in range(2, 14): stats += [I(f"v_add_f32 {v(SS+t%2)}, {v(SS+t%2)}, {v(SS+t)}")]
    stats += [I(x) for x in f"""v_add_f32 v8, {v(SS)}, {v(SS+1)}
    v_mov_b32 {v(AUG+2)}, 0
    v_mov_b32 v9, v8
    v_mov_b32 {v(AUG+3)}, 0
    v_and_b32 v12, 31, v0
    v_permlane32_swap_b32 v8, v9
    v_mul_f32 v8, {f32(-1.0/448)}, v8
    v_mul_f32 v9, {f32(1.0/448)}, v9
    v_fma_f32 v9, -v8, v8, v9
    v_max_f32 v9, 0, v9
    v_add_f32 v9, {f32(1e-5)}, v9
    v_sqrt_f32 v10, v9
    v_rcp_f32 v9, v9
    {cvt(AUG, 8, 8)}
    v_and_b32 v11, 0xffff0000, {v(AUG)}
    v_sub_f32 v8, v8, v11
    {cvt(11, 10, 10)}
    v_and_b32 v11, 0xffff0000, v11
    v_sub_f32 v11, v10, v11
    v_cndmask_b32 v10, v10, v11, {s(sUP,2)}
    {cvt(AUG+1, 8, 10)}
    s_lshl_b32 {s(sT)}, {s(sW)}, 7
    s_add_u32 {s(sT)}, {s(sT)}, {L_R2}
    v_lshl_add_u32 v10, v12, 2, {s(sT)}
    ds_write_b32 v10, v9""".split("\n")]
    interleave([it(n) for n in range(84)], stats, 70, 3)
    assert not loads
    def ep(t):
        o = []
        for u in range(2):
            o += [I(f"v_mul_f32 {v(AC+16*t+r)}, {v(AC+16*t+r)}, |{v(AC+16*t+r)}|") for r in range(8 * u, 8 * u + 8)]
            d = SS + 8 * (t % 2) + 4 * u
            o += [I(cvt(d + k, AC + 16 * t + 8 * u + 2 * k, AC + 16 * t + 8 * u + 2 * k + 1)) for k in range(4)]
            o += [I(f"v_pk_max_i16 {v(d+k)}, {v(d+k)}, 0") for k in range(4)]
            o += [I(f"buffer_store_dwordx4 {v(d,4)}, {v(vL16)}, {s(SWS,4)}, {s(sT+3)} offen offset:{(2*(t%2)+u)*K}{SC1(cfg.hhs)}")]
        if t == 1: o += [I(f"s_add_u32 {s(sT+3)}, {s(sT+3)}, {4*K}")]
        return o
    interleave([it(n) for n in range(84, len(seq))], ep(0) + ep(1) + ep(2), 2, 4)
    stamp(13)
    a(f"""v_lshrrev_b32 v8, 3, v0
    s_lshl_b32 {s(sT)}, {s(sW)}, 3
    v_add_u32 v8, {s(sT)}, v8
    v_and_b32 v9, 7, v0
    v_lshrrev_b32 v10, 1, v9
    v_lshlrev_b32 v10, 10, v10
    v_lshl_add_u32 v10, v8, 4, v10
    v_and_b32 v11, 1, v9
    v_lshl_add_u32 v10, v11, 3, v10""")
    for f in ep(3): f()
    publish(sT + 4, 5, thru=cfg.hhs)
    a("s_waitcnt lgkmcnt(0)\ns_barrier")
    stamp(14)
    RES, B2 = 16, 24
    srd(SA, pB2, 896)
    srd(SB_, pOUT, 2048 * 896)
    a(f"""s_mul_i32 {s(sT)}, {s(sT5)}, 7
    s_add_u32 {s(sT)}, {s(sT)}, {s(sC7)}
    s_lshl_b32 {s(sT)}, {s(sT)}, 12
    s_add_u32 {s(sT)}, {s(sT)}, {HF}
    s_add_u32 {s(sT+1)}, {s(sT)}, {28*K}
    s_lshl_b32 {s(sT+2)}, {s(sC7)}, 7
    v_lshlrev_b32 v11, 4, v9
    buffer_load_dwordx2 {v(RES,2)}, v10, {s(SWS,4)}, {s(sT)} offen sc1
    buffer_load_dwordx2 {v(RES+2,2)}, v10, {s(SWS,4)}, {s(sT)} offen offset:512 sc1
    buffer_load_dwordx2 {v(RES+4,2)}, v10, {s(SWS,4)}, {s(sT+1)} offen sc1
    buffer_load_dwordx2 {v(RES+6,2)}, v10, {s(SWS,4)}, {s(sT+1)} offen offset:512 sc1
    buffer_load_dwordx4 {v(B2,4)}, v11, {s(SA,4)}, {s(sT+2)} offen
    s_lshl_b32 {s(sT)}, {s(sT5)}, 7
    s_add_u32 {s(sT)}, {s(sT)}, {FD}
    v_and_b32 v4, 31, v0
    v_min_u32 v4, 13, v4
    v_and_b32 v5, 32, v0
    v_add_lshl_u32 v4, v4, v5, 2
    s_mul_i32 {s(sT+1)}, {s(sT5)}, {112*K}
    s_lshr_b32 {s(sT+3)}, {s(sW)}, 1
    s_mul_i32 {s(sT+3)}, {s(sT+3)}, {56*K}
    s_add_u32 {s(sT+1)}, {s(sT+1)}, {s(sT+3)}
    s_and_b32 {s(sT+3)}, {s(sW)}, 1
    s_lshl_b32 {s(sT+3)}, {s(sT+3)}, 12
    s_add_u32 {s(sT+1)}, {s(sT+1)}, {s(sT+3)}
    s_add_u32 {s(sT+1)}, {s(sT+1)}, {HH}
    s_lshl_b32 {s(sM0)}, {s(sW)}, 12""")
    poll(sT, 4, 5)
    a.reset_q()
    stamp(16)
    def hdma(c):
        a(f"s_add_u32 m0, {s(sM0)}, {(c%7)*16*K}")
        if c: a(f"s_add_u32 {s(sT+1)}, {s(sT+1)}, {8*K if c != 7 else (112-48)*K}")
        else: a("s_nop 0")
        for n in range(4): a(f"buffer_load_dwordx4 {v(vL16)}, {s(SWS,4)}, {s(sT+1)} offen offset:{n*K} sc1 lds", ("hh", c))
    D = cfg.p5d
    for c in range(D): hdma(c)
    BF = 32
    def consts():
        a(f"""v_mul_u32_u24 v3, {PROW}, v8
        v_lshl_add_u32 v3, v9, 5, v3
        v_add_u32 v3, {L_PART}, v3
        s_and_b32 {s(sT)}, {s(sT5)}, 3
        s_lshl_b32 {s(sT)}, {s(sT)}, 7
        s_add_u32 {s(sT)}, {s(sT)}, {L_R2}
        v_lshl_add_u32 v4, v8, 2, {s(sT)}
        ds_read_b32 v12, v4
        ds_read_b32 v13, v4 offset:128
        v_mul_u32_u24 v5, 896, v8
        v_add_u32 v5, v5, v11
        s_mul_i32 {s(sT)}, {s(sT5)}, {32*896}
        s_add_u32 {s(sT+2)}, {s(sT+2)}, {s(sT)}""")
        for tt in range(2):
            for t in range(4):
                a(f"""v_lshlrev_b32 v6, 16, {v(B2+t)}
                v_and_b32 v7, 0xffff0000, {v(B2+t)}
                v_lshlrev_b32 {v(BF+8*tt+2*t)}, 16, {v(RES+4*tt+t)}
                v_and_b32 {v(BF+8*tt+2*t+1)}, 0xffff0000, {v(RES+4*tt+t)}
                v_add_f32 {v(BF+8*tt+2*t)}, {v(BF+8*tt+2*t)}, v6
                v_add_f32 {v(BF+8*tt+2*t+1)}, {v(BF+8*tt+2*t+1)}, v7""")
    def final(tt):
        P = 48
        for kh in range(2):
            for z in range(2):
                a(f"ds_read_b128 {v(P+8*kh+4*z,4)}, v3 offset:{(2*tt+kh)*32*PROW+16*z}")
        a("s_waitcnt lgkmcnt(0)")
        for r in range(8): a(f"v_add_f32 {v(P+r)}, {v(P+r)}, {v(P+8+r)}")
        for r in range(8): a(f"v_fma_f32 {v(P+r)}, {v(P+r)}, {v(12+tt)}, {v(BF+8*tt+r)}")
        for t in range(4): a(cvt(P + 16 + 4 * tt + t, P + 2 * t, P + 2 * t + 1))
        a(f"buffer_store_dwordx4 {v(P+16+4*tt,4)}, v5, {s(SB_,4)}, {s(sT+2)} offen{SC1(cfg.outs)}")
        if tt == 0: a(f"s_add_u32 {s(sT+2)}, {s(sT+2)}, {32*896}")
    for c in range(14):
        a.wait(vm=[("hh", c)])
        a("s_barrier")
        if c + D < 14: hdma(c + D)
        if c == 1: consts()
        if c == 12: final(0)
    stamp(17)
    a("s_barrier")
    final(1)
    stamp(18)
    if cfg.da >= 0 or cfg.dskew:
        a(f"s_or_b32 {s(sT)}, {s(sB)}, {s(sW)}\ns_cmp_lg_u32 {s(sT)}, 0\ns_cbranch_scc1 Ldly_e")
        if cfg.dskew:
            a(f"""s_mov_b32 s98, 0xe000
            buffer_load_dwordx4 v[20:23], {v(vL16)}, {s(SWS,4)}, s98 offen sc1
            s_waitcnt vmcnt(0)
            v_max_u32 v24, v20, v21
            v_max3_u32 v24, v24, v22, v23
            v_min_u32 v25, v20, v21
            v_min3_u32 v25, v25, v22, v23
            s_mov_b32 s98, 0
            s_mov_b32 s96, -1""")
            for l in range(64):
                a(f"v_readlane_b32 s100, v24, {l}\nv_readlane_b32 s101, v25, {l}\ns_nop 0\ns_max_u32 s98, s98, s100\ns_min_u32 s96, s96, s101")
        a(f"""s_memrealtime s[100:101]
        s_waitcnt lgkmcnt(0)
        s_sub_u32 s98, s98, s96
        s_min_u32 s98, s98, 10000
        s_mul_i32 s98, s98, {cfg.dm}
        Ldly:
        s_memrealtime s[96:97]
        s_waitcnt lgkmcnt(0)
        s_sub_u32 s96, s96, s100
        s_cmp_lt_u32 s96, s98
        s_cbranch_scc1 Ldly
        Ldly_e:""")
    stamp_flush(3)
    a("s_endpgm")
    a("LA_idle:")
    if cfg.wb:
        a(f"""s_cmp_lg_u32 {s(sI)}, 28
        s_cbranch_scc1 LA_idle2
        s_cmp_lg_u32 {s(sW)}, 0
        s_cbranch_scc1 LA_idle2
        buffer_wbl2 sc1
        s_lshl_b32 {s(sT)}, {s(sJ)}, 10
        s_add_u32 {s(sT)}, {s(sT)}, {FD}
        v_and_b32 v4, 7, v0
        v_lshrrev_b32 v5, 3, v0
        v_lshlrev_b32 v5, 5, v5
        v_add_lshl_u32 v4, v4, v5, 2""")
        poll(sT, 4, 5)
        a(f"s_add_u32 {s(sT)}, {s(sT)}, 24")
        poll(sT, 4, 5)
        a("buffer_wbl2 sc1\nLA_idle2:")
    stamp_flush(3)
    a("s_endpgm")

def w1addr(dst, tiles, t0):
    a(f"""v_bfe_u32 {v(t0)}, v0, 2, 2
    v_lshrrev_b32 {v(t0+1)}, 5, v0
    v_lshl_add_u32 {v(t0+1)}, {v(t0+1)}, 2, {v(t0)}
    v_lshlrev_b32 {v(t0+1)}, 8, {v(t0+1)}
    v_bfe_u32 {v(t0+2)}, v0, 4, 1
    v_lshl_add_u32 {v(t0+1)}, {v(t0+2)}, 5, {v(t0+1)}
    v_and_b32 {v(t0+2)}, 3, v0
    v_lshl_add_u32 {v(t0+1)}, {v(t0+2)}, 3, {v(t0+1)}""")
    for n, t in enumerate(tiles):
        a(f"""v_xor_b32 {v(t0+2)}, {t}, {v(t0)}
        v_lshl_add_u32 {v(dst+2*n)}, {v(t0+2)}, 6, {v(t0+1)}
        v_add_u32 {v(dst+2*n+1)}, {64*K}, {v(dst+2*n)}""")

def fallback():
    mx = 8
    def tile_loads(kv):
        o = [f"buffer_load_dwordx4 {v(vK0+4*t,4)}, {v(vL16)}, {s(SWS,4)}, {s(sT+6)} offen offset:{t*K} sc1" for t in range(kv)]
        return "\n".join(o)
    t = f"""Lfb:
    s_lshl_b32 {s(sT+6)}, {s(sH)}, 18
    s_add_u32 {s(sT+6)}, {s(sT+6)}, {KV}
    s_mov_b32 {s(sT+7)}, 64
    v_cndmask_b32 {v(vQ+6)}, {v(vQ+6)}, 0, {s(sUP,2)}
    v_mov_b32 {v(mx)}, 0xff800000
    Lfb1:
    {tile_loads(2)}
    s_waitcnt vmcnt(0)
    {mfma(vS0, vK0, vQ, None)}
    {mfma(vS0, vK1, vQ+4, vS0)}
    s_add_u32 {s(sT+6)}, {s(sT+6)}, {4*K}
    s_sub_u32 {s(sT+7)}, {s(sT+7)}, 1
    s_cmp_lg_u32 {s(sT+7)}, 0
    """
    for r in range(0, 16, 2): t += f"v_max3_f32 {v(mx)}, {v(mx)}, {v(vS0+r)}, {v(vS0+r+1)}\n"
    t += f"""s_cbranch_scc1 Lfb1
    v_mov_b32 v9, {v(mx)}
    v_permlane32_swap_b32 v9, {v(mx)}
    v_max_f32 {v(mx)}, v9, {v(mx)}
    v_sub_f32 {v(mx)}, 0, {v(mx)}
    v_and_b32 v9, 0xffff0000, {v(mx)}
    v_sub_f32 {v(mx)}, {v(mx)}, v9
    v_and_b32 v10, 0xffff0000, {v(mx)}
    v_sub_f32 {v(mx)}, {v(mx)}, v10
    v_mov_b32 v11, 0
    {cvt(9, 9, 10)}
    {cvt(10, mx, 11)}
    v_cndmask_b32 {v(vQ+6)}, {v(vQ+6)}, v9, {s(sUP,2)}
    v_cndmask_b32 {v(vQ+7)}, {v(vQ+7)}, v10, {s(sUP,2)}
    s_sub_u32 {s(sT+6)}, {s(sT+6)}, {256*K}
    s_mov_b32 {s(sT+7)}, 64
    """
    for r in range(16): t += f"v_mov_b32 {v(vO+r)}, 0\n"
    t += f"""Lfb2:
    {tile_loads(4)}
    s_waitcnt vmcnt(0)
    {mfma(vS0, vK0, vQ, None)}
    {mfma(vS0, vK1, vQ+4, vS0)}
    s_add_u32 {s(sT+6)}, {s(sT+6)}, {4*K}
    s_sub_u32 {s(sT+7)}, {s(sT+7)}, 1
    s_cmp_lg_u32 {s(sT+7)}, 0
    """
    for r in range(16): t += f"v_exp_f32 {v(vS0+r)}, {v(vS0+r)}\n"
    t += f"""{smf(vO, vV0, vS0, vIDX)}
    {smf(vO, vV1, vS0+8, vIDX)}
    s_nop 7
    s_cbranch_scc1 Lfb2
    s_nop 7
    s_branch Lfbd"""
    ool.append(t)

def post_B():
    stamp(7)
    a(f"""s_lshl2_add_u32 {s(sT+2)}, {s(sRB)}, {s(sW4)}
    s_lshl_b32 {s(sT+3)}, {s(sT+2)}, 4
    s_add_u32 {s(sT+3)}, {s(sT+3)}, {s(sH)}
    s_lshl_b32 {s(sT+3)}, {s(sT+3)}, 11
    s_add_u32 {s(sT+3)}, {s(sT+3)}, {OF}
    s_lshl_b32 {s(sT+2)}, {s(sT+2)}, 5
    s_add_u32 {s(sT+2)}, {s(sT+2)}, {s(sH)}
    s_lshl_b32 {s(sT+2)}, {s(sT+2)}, 2
    s_add_u32 {s(sT+2)}, {s(sT+2)}, {FB}
    s_mov_b32 {s(sT+4)}, {f32(2.0**40)}
    s_mov_b32 {s(sT+5)}, {f32(2.0**-40)}
    s_setprio 3
    s_barrier""")
    stamp(33)
    for g in (1, 0, 2, 3): a(f"ds_read_b128 {v(vS0+4*g,4)}, v3 offset:{g*K}", ("r", g))
    for g in (1, 0, 2, 3):
        a.wait(lg=[("r", g)])
        for t in (3, 0, 1, 2): a(f"v_add_f32 {v(vO+4*g+t)}, {v(vO+4*g+t)}, {v(vS0+4*g+t)}")
        if g == 1:
            a(f"""v_cmp_ngt_f32 vcc, {s(sT+4)}, {v(vO+7)}
            v_cmp_nlt_f32 {s(sCM,2)}, {s(sT+5)}, {v(vO+7)}""")
    a(f"s_or_b64 vcc, vcc, {s(sCM,2)}")
    a("s_branch Lfb" if cfg.force_fallback else "s_cbranch_scc1 Lfb")
    a(f"Lfbd:\nv_rcp_f32 v5, {v(vO+7)}\nv_mov_b32 v6, {s(sG)}")
    for u in range(2):
        for r in range(8): a(f"v_mul_f32 {v(vO+8*u+r)}, {v(vO+8*u+r)}, v5")
        for t in range(4): a(cvt(vS0 + 4 * u + t, vO + 8 * u + 2 * t, vO + 8 * u + 2 * t + 1))
        a(f"buffer_store_dwordx4 {v(vS0+4*u,4)}, {v(vL16)}, {s(SWS,4)}, {s(sT+3)} offen offset:{u*K} sc1")
    stamp(34)
    fallback()
    a(f"""s_mul_i32 {s(sT+3)}, {s(sT4)}, 14
    s_add_u32 {s(sT+3)}, {s(sT+3)}, {s(sSL)}
    s_lshl_b32 {s(sT+3)}, {s(sT+3)}, 13
    s_add_u32 {s(sT+3)}, {s(sT+3)}, {HH}
    v_lshlrev_b32 v13, 7, v0
    s_cmp_ge_u32 {s(sI)}, 28
    s_waitcnt vmcnt(0)
    buffer_store_dword v6, {v(vF0)}, {s(SWS,4)}, {s(sT+2)} offen sc1
    s_setprio 0""")
    stamp(8)
    a("s_cbranch_scc1 LB_idle")
    w2load(cfg.w2n3, 0)
    w1addr(16, [s(sW4)], 3)
    stamp(15)
    a("s_barrier")
    if cfg.hhtouch: a(f"buffer_load_dword v14, v13, {s(SWS,4)}, {s(sT+3)} offen sc1")
    w2load(cfg.w2n1, 0)
    assert nw[0] <= 32
    def crd(q):
        for z in range(2): a(f"ds_read_b64_tr_b16 {v(32+4*(q%6)+2*z,2)}, {v(16+q//16)} offset:{(q%16)*4*K + z*2*K}", ("c", q))
    for q in range(5): crd(q)
    for q in range(28):
        if q + 5 < 28: crd(q + 5)
        a.wait(lg=[("c", q)])
        for t in range(4):
            r = 32 + 4 * (q % 6) + t
            if q == 0 and t == 0: a(f"v_and_b32 v6, 0xffff0000, {v(r)}\nv_lshlrev_b32 v7, 16, {v(r)}")
            else: a(f"v_and_b32 v8, 0xffff0000, {v(r)}\nv_lshlrev_b32 v9, 16, {v(r)}\nv_add_f32 v6, v6, v8\nv_add_f32 v7, v7, v9")
    a(f"""v_lshlrev_b32 v5, 16, {v(vB1)}
    v_mov_b32 v10, 0
    v_add_f32 v6, v6, v7
    {cvt(7, 6, 6)}
    v_and_b32 v7, 0xffff0000, v7
    v_sub_f32 v7, v6, v7
    {cvt(8, 6, 7)}
    {cvt(9, 6, 5)}
    v_mov_b32 v11, 0
    s_lshl_b32 {s(sT)}, {s(sW4)}, 10
    s_add_u32 {s(sT)}, {s(sT)}, {L_AUG1}
    v_add_u32 v4, {s(sT)}, {v(vL16)}""")
    a("ds_write_b128 v4, v[8:11]")
    stamp(16)
    a("s_waitcnt lgkmcnt(0)\ns_barrier")
    stamp(9)
    w2load(56 - nw[0], 0)
    AC, HBUF, NB = 16, [4, 8, 12], 3
    a(f"""s_lshr_b32 {s(sT)}, {s(sW4)}, 1
    s_lshl_b32 {s(sT+1)}, {s(sT)}, 13
    v_and_b32 v4, 31, v0
    v_mul_u32_u24 v4, {PROW}, v4
    v_lshrrev_b32 v5, 5, v0
    v_lshl_add_u32 v4, v5, 4, v4
    s_mul_i32 {s(sT)}, {s(sT)}, {32*PROW}
    s_and_b32 {s(sT+2)}, {s(sW4)}, 1
    s_lshl_b32 {s(sT+2)}, {s(sT+2)}, 7
    s_add_u32 {s(sT)}, {s(sT)}, {s(sT+2)}
    s_add_u32 {s(sT)}, {s(sT)}, {L_PART}
    v_add_u32 v0, {s(sT)}, v4
    v_add_u32 v2, {s(sT+1)}, {v(vL16)}
    v_add_u32 v3, {64*K}, v2
    s_waitcnt vmcnt(0)""")
    if cfg.stamps: a("v_mov_b32 v1, v15"); vSTAMP[0] = 1
    stamp(10)
    a("s_barrier")
    nr = [0]
    def hread():
        n = nr[0]
        if n >= 112: return
        nr[0] += 1
        q = n % 56
        if q % 8 == 0:
            if n == 64: a.wait(lg=["pw"])
            a("s_barrier")
            stamp(48 + n // 8)
        off = (q // 8) * 16 * K + (q % 8) * K
        a(f"ds_read_b128 {v(HBUF[n%NB],4)}, {v(2 + off // (64*K))} offset:{off % (64*K)}", ("h", n))
    for _ in range(NB - 1): hread()
    for n in range(112):
        q = n % 56
        hread()
        a.wait(lg=[("h", n)] + (["pw"] if n == 56 else []))
        a(mfma(AC, wreg(q), HBUF[n % NB], AC if q else None))
        if q == 55:
            for g in range(4): a(f"ds_write_b128 v0, {v(AC+4*g,4)} offset:{(n//56)*64*PROW+32*g}", "pw")
    a("s_waitcnt lgkmcnt(0)")
    stamp(11)
    a("s_barrier")
    stamp_flush(3)
    a("s_endpgm")
    vSTAMP[0] = 15
    a("LB_idle:\ns_barrier")
    stamp_flush(3)
    a("Lend:\ns_endpgm")

prologue()
p1_A()
attention(0)
post_A()
p1_B()
attention(1)
post_B()
body = a.lines + [l.strip() for blk in ool for l in blk.split("\n") if l.strip()]
body, npad = pad_all(body, verbose="-v" in sys.argv[1])
print("instructions:", len(body), "pads:", npad, file=sys.stderr)

head = open("cdna_kernels/%s.s.ref" % NAME).read().split("; Override launch")[0]
out = head + f"; @launch grid=(256,1,1) block=(512,1,1) lds={LDS_SIZE}\n"
out += f""".amdgcn_target "amdgcn-amd-amdhsa--gfx950"
.text
.globl {KN}
.p2align 8
.type {KN},@function
{KN}:
"""
out += "\n".join(("" if l.endswith(":") else "    ") + l for l in body)
out += f"""
Lcode_end:
    s_endpgm
.section .rodata,"a"
.p2align 6
.amdhsa_kernel {KN}
  .amdhsa_next_free_vgpr 256
  .amdhsa_next_free_sgpr 102
  .amdhsa_accum_offset 256
  .amdhsa_group_segment_fixed_size 0
  .amdhsa_kernarg_size 88
  .amdhsa_user_sgpr_count 2
  .amdhsa_user_sgpr_kernarg_segment_ptr 1
  .amdhsa_system_sgpr_workgroup_id_x 1
.end_amdhsa_kernel
"""
open(sys.argv[1].replace("-v", ""), "w").write(out)
```

```python
import sys, struct, math
from asmlib import Asm, v, s, pad_all

NAME = "sequential_preLN__mha_block__dense_activation_squared_relu__prompt"
KN = NAME + "_kernel"

class Cfg:
    stamps = False
    force_global = False
    force_fallback = False
    permute = 0
    n1 = 96
    c0j, c0i = 0, 0
    wb = 0
    x0n = 4
    lagend = 1
    na = 3
    xtouch = 1
    w1touch = 1
    bgpos = 1
    gate = 1
    gaten = 6
    xpre = 0
    lst = 1
    xq = 1
    ne = 2
    touch = 1
    w2win = 3
    w2n0, w2n3, w2n1 = 14, 8, 10
    hwin = 9
    xw = 6
    kvtouch = 0
    hhtouch = 0
    p4b = 48
    da, db, dm = -1, -1, 1
    dskew = 0
    dbuf = 0
    spoll = 0
    p0ck = 12
    w1end = 16
    kvs, hs, hhs, wps, outs = 1, 0, 1, 0, 0
    p5d = 3
cfg = Cfg()
for arg in sys.argv[2:]:
    k, val = arg.split("=")
    setattr(cfg, k, int(val))

def SC1(x): return " sc1" if x else ""
def f32(x): return "0x%08x" % struct.unpack("<I", struct.pack("<f", x))[0]

EPOCH = 0
FW, FA, FC, FD = 0x1000, 0x2000, 0x4000, 0x6000
GOFF = 0x10000
FP0, FB = 0x8000, 0xA000
DBG = 0x40000
WP = 0x100000
WOT = 0x250000
W1T = 0x2C0000
W2T = 0x448000
ST = 0x5D0000
HF = 0x650000
OF = 0x810000
KV = 0xA10000
HH = 0xE10000
WS_SIZE = 0x1510000
OOB = 0x40000000

K = 1024
L_XR = 0
L_P0 = 48 * K
L_QX = 32 * K
L_MODE = 151 * K
L_W = 64 * K
L_AUG = 148 * K
L_RS = 152 * K
L_RED = 144 * K
L_O = 112 * K
L_AUG1 = 152 * K
L_R2 = 156 * K
L_PART = 112 * K
PROW = 272
LDS_SIZE = 160 * K

sB, sW, sJ, sI, sH, sRB = 2, 3, 4, 5, 6, 7
SX, SWS, SA, SB_ = 8, 12, 16, 20
sG, sL, sMODE, sSPIN = 24, 25, 26, 27
sT = 28
pX, pWQKV, pWO, pW1, pB1, pW2, pB2, pOUT = 36, 38, 40, 44, 46, 48, 50, 52
sCH = 56
sUP = 64
sPADV = 66
sW4 = 68
sKVB = 69
sPF = 70
sM0 = 71
sT3, sFT, sT4, sSL, sT5, sC7 = 72, 73, 74, 75, 76, 77
sP0D, sP0DS, sP0M, sP0ST = 78, 79, 80, 81
sCM = 82
sTS = 84
SC = 88
sONE = 92

a = Asm()
ool = []

def srd(d, p, nbytes):
    a(f"s_mov_b32 {s(d)}, {s(p)}\ns_mov_b32 {s(d+1)}, {s(p+1)}\ns_mov_b32 {s(d+2)}, {nbytes}\ns_mov_b32 {s(d+3)}, 0x20000")

def mfma(d, A, B, C):
    c = "0" if C is None else v(C, 16)
    return f"v_mfma_f32_32x32x16_bf16 {v(d,16)}, {v(A,4)}, {v(B,4)}, {c}"
def smf(d, A, B, idx): return f"v_smfmac_f32_32x32x32_bf16 {v(d,16)}, {v(A,4)}, {v(B,8)}, {v(idx)}"
def cvt(d, x, y): return f"v_cvt_pk_bf16_f32 {v(d)}, {v(x)}, {v(y)}"

vSTAMP = [15]
sSI = 93
def stamp(n):
    if n == cfg.da: a.lines.append("s_memrealtime s[96:97]")
    if n == cfg.db: a.lines.append("s_memrealtime s[98:99]")
    if cfg.dskew == 1 and n == 0:
        cfg.dskew = 2
        a.lines += ["s_memrealtime s[96:97]", "s_waitcnt lgkmcnt(0)", "v_mov_b32 v14, s96", f"s_lshl_b32 s98, {s(sB)}, 2", f"s_addk_i32 s98, 0x7000", "s_addk_i32 s98, 0x7000",
                    f"buffer_store_dword v14, {v(vF0)}, {s(SWS,4)}, s98 offen sc1"]
        a.vmq.append(None)
    if not cfg.stamps: return
    a.lines += [f"s_mov_b32 {s(sSI+1)}, m0", f"s_mov_b32 m0, {s(sSI)}", f"v_writelane_b32 {v(vSTAMP[0])}, {s(sTS)}, m0", f"s_mov_b32 m0, {s(sSI+1)}",
                f"{'s_memrealtime' if cfg.stamps == 2 else 's_memtime'} {s(sTS,2)}", f"s_mov_b32 {s(sSI)}, {n}"]
def stamp_flush(vt):
    if not cfg.stamps: return
    a("s_waitcnt lgkmcnt(0)")
    stamp(63)
    a(f"""v_mbcnt_lo_u32_b32 {v(vt)}, -1, 0
    v_mbcnt_hi_u32_b32 {v(vt)}, -1, {v(vt)}
    v_lshlrev_b32 {v(vt)}, 2, {v(vt)}
    s_lshl_b32 {s(sT)}, {s(sB)}, 3
    s_add_u32 {s(sT)}, {s(sT)}, {s(sW)}
    s_lshl_b32 {s(sT)}, {s(sT)}, 8
    s_add_u32 {s(sT)}, {s(sT)}, {DBG}
    buffer_store_dword {v(vSTAMP[0])}, {v(vt)}, {s(SWS,4)}, {s(sT)} offen""")

vL16 = 1
vF0 = 2
vTMP = 3

def publish(soff, vt, older=0, thru=0):
    l1, l2 = a.label("Lpubg"), a.label("Lpubd")
    a(f"""v_mov_b32 {v(vt)}, {s(sL)}
    s_cmp_lg_u32 {s(sMODE)}, 0
    s_waitcnt vmcnt({older})
    buffer_store_dword {v(vt)}, {v(vF0)}, {s(SWS,4)}, {s(soff)} offen
    s_cbranch_scc1 {l1}
    {l2}:""")
    ool.append(f"""{l1}:
    {"" if thru else "buffer_wbl2 sc1"}
    s_add_u32 {s(soff)}, {s(soff)}, {GOFF}
    s_waitcnt vmcnt(0)
    v_mov_b32 {v(vt)}, {s(sG)}
    buffer_store_dword {v(vt)}, {v(vF0)}, {s(SWS,4)}, {s(soff)} offen sc1
    s_branch {l2}""")

def spin_tail(loop, done):
    return f"""s_sub_u32 {s(sSPIN)}, {s(sSPIN)}, 1
    s_cbranch_scc0 {loop}
    s_mov_b32 {s(sSPIN)}, 0
    s_branch {done}"""

def poll(soff, vaddr, vt):
    lp, lg, ld, lr, lgd = a.label("Lpoll"), a.label("Lpollg"), a.label("Lpolld"), a.label("Lpollr"), a.label("Lpollgd")
    a(f"""s_cmp_lg_u32 {s(sMODE)}, 0
    s_cbranch_scc1 {lg}
    {lp}:
    buffer_load_dword {v(vt)}, {v(vaddr)}, {s(SWS,4)}, {s(soff)} offen sc1
    s_waitcnt vmcnt(0)
    v_cmp_ne_u32 vcc, {s(sL)}, {v(vt)}
    s_cbranch_vccnz {lr}
    {ld}:""")
    ool.append(f"""{lr}:
    {spin_tail(lp, ld)}
    {lg}:
    s_add_u32 {s(sT+7)}, {s(soff)}, {GOFF}
    buffer_load_dword {v(vt)}, {v(vaddr)}, {s(SWS,4)}, {s(soff)} offen sc1
    buffer_load_dword {v(vt+1)}, {v(vaddr)}, {s(SWS,4)}, {s(sT+7)} offen sc1
    s_waitcnt vmcnt(0)
    v_cmp_ne_u32 vcc, {s(sL)}, {v(vt)}
    v_cmp_ne_u32 {s(sCM,2)}, {s(sG)}, {v(vt+1)}
    s_nop 1
    s_and_b64 vcc, vcc, {s(sCM,2)}
    s_cbranch_scc0 {lgd}
    s_sub_u32 {s(sSPIN)}, {s(sSPIN)}, 1
    s_cbranch_scc0 {lg}
    s_mov_b32 {s(sSPIN)}, 0
    {lgd}:
    buffer_inv sc1
    s_waitcnt vmcnt(0)
    s_branch {ld}""")

def poll_g(soff, vaddr, vt):
    lp, ld, lr = a.label("Lpoll"), a.label("Lpolld"), a.label("Lpollr")
    a(f"""{lp}:
    buffer_load_dword {v(vt)}, {v(vaddr)}, {s(SWS,4)}, {s(soff)} offen sc1
    s_waitcnt vmcnt(0)
    v_cmp_ne_u32 vcc, {s(sG)}, {v(vt)}
    s_cbranch_vccnz {lr}
    {ld}:""")
    ool.append(f"{lr}:\n{spin_tail(lp, ld)}")

def poll_s(soff):
    lp, ld, lr = a.label("Lpoll"), a.label("Lpolld"), a.label("Lpollr")
    F = 36 + 0
    a(f"""s_add_u32 {s(sCM)}, {s(SWS)}, {s(soff)}
    s_addc_u32 {s(sCM+1)}, {s(SWS+1)}, 0
    s_mov_b32 {s(sT+6)}, {s(sG)}
    s_mov_b32 {s(sT+7)}, {s(sG)}
    {lp}:
    s_load_dwordx8 {s(36,8)}, {s(sCM,2)}, 0 glc
    s_load_dwordx8 {s(56,8)}, {s(sCM,2)}, 32 glc
    s_waitcnt lgkmcnt(0)""")
    for base in (36, 56):
        for t in range(4): a(f"s_cmp_eq_u64 {s(base+2*t,2)}, {s(sT+6,2)}\ns_cbranch_scc0 {lr}")
    a(f"{ld}:")
    ool.append(f"{lr}:\n{spin_tail(lp, ld)}")

def interleave(main, fill, start, per):
    fill = list(fill)
    for n, g in enumerate(main):
        g()
        if n >= start:
            for _ in range(per):
                if fill: fill.pop(0)()
    for f in fill: f()

def I(text, tag=None): return lambda: a(text, tag)

def prologue():
    if cfg.da == 99: a("s_memrealtime s[96:97]")
    if cfg.da == 98:
        a(f"""s_load_dwordx2 s[88:89], s[0:1], {cfg.dbuf}
        s_mov_b32 s90, 0x60000
        s_mov_b32 s91, 0x20000
        v_readfirstlane_b32 s3, v0
        v_mov_b32 v5, 0
        s_or_b32 s3, s3, s2
        s_cmp_lg_u32 s3, 0
        s_waitcnt lgkmcnt(0)
        s_cbranch_scc1 Ldg_s
        s_memrealtime s[96:97]
        s_waitcnt lgkmcnt(0)""")
        for t in range(8): a(f"s_mov_b32 s3, {0x9080*t+0x400}\nbuffer_load_dword v4, v5, s[88:91], s3 offen\ns_waitcnt vmcnt(0)")
        a("""s_memrealtime s[98:99]
        s_waitcnt lgkmcnt(0)
        s_branch Ldg_e
        Ldg_s:
        s_sleep 127
        s_sleep 60
        Ldg_e:""")
    a(f"""s_cmp_ge_u32 {s(sB)}, 256
    s_cbranch_scc1 Lend
    s_load_dwordx4 {s(36,4)}, s[0:1], 0
    s_load_dwordx2 {s(SWS,2)}, s[0:1], 80
    v_lshrrev_b32 v3, 6, v0
    v_and_b32 v0, 63, v0
    v_readfirstlane_b32 {s(sW)}, v3""")
    if cfg.permute:
        a(f"""s_lshr_b32 {s(sT)}, {s(sB)}, {cfg.permute}
        s_lshl_b32 {s(sB)}, {s(sB)}, {8-cfg.permute}
        s_or_b32 {s(sB)}, {s(sB)}, {s(sT)}
        s_and_b32 {s(sB)}, {s(sB)}, 255""")
    if cfg.stamps: a(f"v_mov_b32 v15, 0\ns_mov_b32 {s(sSI)}, 62\ns_mov_b32 {s(sTS)}, 0")
    a(f"""s_and_b32 {s(sJ)}, {s(sB)}, 7
    s_lshr_b32 {s(sI)}, {s(sB)}, 3
    s_and_b32 {s(sW4)}, {s(sW)}, 3
    v_lshlrev_b32 {v(vL16)}, 4, v0
    v_cmp_eq_u32 vcc, 0, v0
    v_mov_b32 v3, {OOB}
    s_mov_b32 {s(SWS+2)}, {WS_SIZE}
    s_mov_b32 {s(SWS+3)}, 0x20000
    v_cndmask_b32 {v(vF0)}, v3, 0, vcc
    s_cmp_ge_u32 {s(sW)}, 4
    s_cbranch_scc1 LB_start""")

def chunks():
    a(f"""s_and_b32 {s(sT)}, {s(sI)}, 1
    s_lshl1_add_u32 {s(sH)}, {s(sJ)}, {s(sT)}
    s_lshr_b32 {s(sRB)}, {s(sI)}, 1
    s_mul_i32 {s(sT)}, {s(sT)}, {cfg.c0i}
    s_mul_i32 {s(sT+1)}, {s(sJ)}, {cfg.c0j}
    s_add_u32 {s(sT)}, {s(sT)}, {s(sT+1)}
    s_mul_i32 {s(sT+1)}, {s(sT)}, 37
    s_lshr_b32 {s(sT+1)}, {s(sT+1)}, 8
    s_mul_i32 {s(sT+1)}, {s(sT+1)}, 7
    s_sub_u32 {s(sCH)}, {s(sT)}, {s(sT+1)}""")
    for q in range(1, 7):
        a(f"""s_add_u32 {s(sCH+q)}, {s(sCH+q-1)}, 1
        s_cmp_eq_u32 {s(sCH+q)}, 7
        s_cselect_b32 {s(sCH+q)}, 0, {s(sCH+q)}""")

def roles(t):
    a(f"""s_load_dwordx8 {s(40,8)}, s[0:1], 16
    s_load_dwordx4 {s(48,4)}, s[0:1], 48
    s_load_dwordx2 {s(pOUT,2)}, s[0:1], 64
    s_mov_b32 {s(sUP)}, 0
    s_mov_b32 {s(sUP+1)}, -1
    s_mov_b32 {s(sPADV)}, 0x88008800
    s_mov_b32 {s(sPADV+1)}, 0x88008800
    s_mov_b32 {s(sSPIN)}, 0x20000
    s_mov_b32 {s(sONE)}, 0x3f803f80
    s_getreg_b32 {s(sL)}, hwreg(HW_REG_XCC_ID, 0, 4)
    s_lshr_b32 {s(t)}, {s(sI)}, 2
    s_lshl3_add_u32 {s(sT3)}, {s(sJ)}, {s(t)}
    s_and_b32 {s(t)}, {s(sI)}, 3
    s_lshl2_add_u32 {s(sFT)}, {s(t)}, {s(sW4)}
    s_cmp_ge_u32 {s(sI)}, 14
    s_cselect_b32 {s(t)}, 1, 0
    s_mul_i32 {s(t+1)}, {s(t)}, 14
    s_sub_u32 {s(sSL)}, {s(sI)}, {s(t+1)}
    s_lshl1_add_u32 {s(t)}, {s(sJ)}, {s(t)}
    s_lshl2_add_u32 {s(sT4)}, {s(t)}, {s(sW4)}
    s_mul_i32 {s(t)}, {s(sI)}, 37
    s_lshr_b32 {s(t)}, {s(t)}, 8
    s_mul_i32 {s(t+1)}, {s(t)}, 7
    s_sub_u32 {s(sC7)}, {s(sI)}, {s(t+1)}
    s_lshl2_add_u32 {s(t)}, {s(sJ)}, {s(t)}
    s_lshl_b32 {s(sT5)}, {s(t)}, 1
    s_lshl_b32 {s(sKVB)}, {s(sH)}, 18
    s_add_u32 {s(sKVB)}, {s(sKVB)}, {KV}
    s_waitcnt lgkmcnt(0)""")

def nonce(vt):
    a(f"""v_readfirstlane_b32 {s(sG)}, {v(vt)}
    s_add_u32 {s(sL)}, {s(sL)}, 1
    s_lshl_b32 {s(sL)}, {s(sL)}, 27
    s_mul_i32 {s(sG)}, {s(sG)}, 0x9E3779B1
    s_add_u32 {s(sG)}, {s(sG)}, 0x7F4A7C15
    s_xor_b32 {s(sL)}, {s(sL)}, {s(sG)}""")

vO, vS0, vS1, vK0, vK1, vV0, vV1, vQ = 16, 32, 48, 64, 68, 72, 76, 80
vPF = 128

def p1_A():
    XF = 128
    aK, aV, aQ, WB, MH, ML, RR, PK = 16, 32, 48, 64, 96, 100, 104, 120
    NB = 8
    vXA, vXR = 240, 244
    s1, s2, rstd, vEP, vWA, vKS, vONE, vTC = 248, 249, 250, 251, 252, 253, 254, 255
    XQ = cfg.xq
    chunks()
    a(f"""v_lshrrev_b32 v3, 3, v0
    v_and_b32 v4, 7, v0
    v_lshrrev_b32 v5, 1, v3
    v_xor_b32 v4, v4, v5
    v_mul_u32_u24 v3, 896, v3
    v_lshl_add_u32 {v(vXA)}, v4, 4, v3
    v_xor_b32 {v(vXA+1)}, 64, {v(vXA)}
    v_add_u32 {v(vXA+1)}, {7168-1024}, {v(vXA+1)}
    v_add_u32 {v(vXA+2)}, {14336-2048}, {v(vXA)}
    v_add_u32 {v(vXA+3)}, {14336-2048}, {v(vXA+1)}
    s_lshl2_add_u32 {s(sT)}, {s(sRB)}, {s(sW)}
    s_mul_i32 {s(sT)}, {s(sT)}, {32*896}
    s_mul_i32 {s(sM0)}, {s(sW)}, {12*K}
    s_waitcnt lgkmcnt(0)""")
    srd(SX, pX, 2048 * 896)
    stamp(0)
    nx = [0]
    def xop():
        k = nx[0]
        if k >= 28: return
        nx[0] += 1
        q, g = divmod(k, 4)
        if g == 0:
            a(f"""s_lshl_b32 {s(sT+1)}, {s(sCH+q)}, 7
            s_add_u32 m0, {s(sM0)}, {(q%3)*4096}
            s_add_u32 {s(sT+1)}, {s(sT+1)}, {s(sT)}""")
            if q >= 3: a.wait(lg=[("xr", q - 3)])
        a(f"buffer_load_dwordx4 {v(vXA+g)}, {s(SX,4)}, {s(sT+1)} offen offset:{1024*g} lds", ("x", k))
    XW = cfg.xw
    a(f"buffer_load_dword {v(vEP)}, {v(vF0)}, {s(SWS,4)}, 0 offen sc1", "ep")
    if cfg.xtouch:
        a(f"""s_lshl_b32 {s(sT+2)}, {s(sRB)}, 4
        s_add_u32 {s(sT+2)}, {s(sT+2)}, {s(sH)}
        s_mul_i32 {s(sT+2)}, {s(sT+2)}, 7168
        s_mul_i32 {s(sT+3)}, {s(sW)}, 1792
        s_add_u32 {s(sT+2)}, {s(sT+2)}, {s(sT+3)}
        v_min_u32 v3, 13, v0
        v_lshlrev_b32 v3, 7, v3
        buffer_load_dword {v(vTC)}, v3, {s(SX,4)}, {s(sT+2)} offen""")
    for k in range(cfg.xpre): xop()
    roles(sT + 2)
    a(f"""v_and_b32 v3, 31, v0
    v_lshrrev_b32 v4, 5, v0
    v_bfe_u32 v5, v3, 1, 3
    v_xor_b32 v5, v5, v4
    v_lshlrev_b32 v6, 7, v3
    v_lshl_add_u32 v6, v5, 4, v6
    v_add_u32 {v(vXR)}, {s(sM0)}, v6
    v_xor_b32 {v(vXR+1)}, 32, {v(vXR)}
    v_xor_b32 {v(vXR+2)}, 64, {v(vXR)}
    v_xor_b32 {v(vXR+3)}, 0x60, {v(vXR)}
    v_mov_b32 {v(s1)}, 0
    v_mov_b32 {v(s2)}, 0
    v_add_u32 {v(vWA)}, {L_W}, {v(vL16)}
    v_mov_b32 {v(vONE)}, {s(sONE)}
    v_bfe_u32 v5, v3, 2, 1
    v_bfe_u32 v6, v3, 3, 1
    v_and_b32 v7, 0x33, v0
    v_lshl_or_b32 v7, v5, 3, v7
    v_lshl_or_b32 v7, v6, 2, v7
    v_lshlrev_b32 {v(vKS)}, 4, v7
    s_lshl_b32 {s(sT+4)}, {s(sW)}, 7
    s_add_u32 {s(sT+4)}, {s(sT+4)}, {L_RS}
    v_lshl_add_u32 v10, v3, 2, {s(sT+4)}
    v_lshl_add_u32 v11, v4, 4, {s(sT+4)}
    v_lshlrev_b32 v12, 7, v3""")
    a(f"""s_lshl2_add_u32 {s(sT+5)}, {s(sRB)}, {s(sW)}
    s_lshl_b32 {s(sT+2)}, {s(sT+5)}, 12
    s_add_u32 {s(sT+2)}, {s(sT+2)}, {s(sKVB)}
    s_lshl_b32 {s(sT+3)}, {s(sH)}, 6
    s_add_u32 {s(sT+3)}, {s(sT+3)}, {s(sT+5)}
    s_lshl_b32 {s(sT+3)}, {s(sT+3)}, 2
    s_add_u32 {s(sT+3)}, {s(sT+3)}, {FA}
    s_lshl_b32 {s(sT+4)}, {s(sW)}, 12
    v_add_u32 v4, {s(sT+4)}, {v(vKS)}
    v_add_u32 v5, {s(sT+4)}, {v(vL16)}
    s_lshl_b32 {s(sT+4)}, {s(sW)}, 11
    s_add_u32 {s(sT+4)}, {s(sT+4)}, {L_QX}
    v_add_u32 v6, {s(sT+4)}, {v(vL16)}
    v_add_u32 v7, {56*K}, {v(vWA)}
    v_mov_b32 v8, {L_MODE}
    s_lshl_b32 {s(sP0D)}, {s(sB)}, 2
    s_add_u32 {s(sP0D)}, {s(sP0D)}, {FP0}
    s_cmp_eq_u32 {s(sW)}, 0
    s_cselect_b32 {s(sP0D)}, {s(sP0D)}, {OOB}""")
    def xread(q):
        a.wait(vm=[("x", 4 * q + 3)])
        stamp(20 + q)
        for t in range(4):
            a(f"ds_read_b128 {v(XF+16*q+4*t,4)}, {v(vXR+t)} offset:{(q%3)*4096}", ("xr", q))
    def xdot(q, lo=0, hi=16):
        a.wait(lg=[("xr", q)])
        for r in range(lo, hi):
            a(f"v_dot2c_f32_bf16 {v(s1+r%2)}, {v(XF+16*q+r)}, {v(XF+16*q+r)}")
    a.wait(vm=["ep"]); nonce(vEP)
    stamp(19)
    a("s_barrier")
    while nx[0] < cfg.x0n: xop()
    if cfg.gate and cfg.x0n == 0:
        a("s_barrier")
        while nx[0] < XW: xop()
    def xadv(k):
        a.wait(vm=[("x", k)])
        if k % 4 == 3: xread(k // 4)
        if k + 1 == cfg.x0n and cfg.gate: a("s_barrier")
        if k + 1 >= cfg.x0n:
            while nx[0] < min(k + 1 + XW, 28): xop()
        if k == 27 and cfg.kvtouch: a(f"buffer_load_dword {v(vTC)}, v12, {s(SWS,4)}, {s(sT+2)} offen sc1")
    for k in range(4 * XQ + 4):
        xadv(k)
        if k >= 4: xdot(k // 4 - 1, 4 * (k % 4), 4 * (k % 4) + 4)
    xdot(XQ)
    fin0 = [I(x) for x in f"""v_add_f32 v9, {v(s1)}, {v(s2)}
    v_mov_b32 {v(MH+2)}, 0
    v_mov_b32 {v(s2)}, v9
    v_mov_b32 {v(MH+3)}, 0
    s_nop 0
    v_permlane32_swap_b32 v9, {v(s2)}
    v_add_f32 v9, v9, {v(s2)}
    v_mul_f32 v9, {f32(1.0/448)}, v9""".split("\n")]
    fin = [I(x) for x in f"""v_mul_f32 v3, {f32(-1.0/448)}, {v(aK+15)}
    s_nop 0
    s_nop 0
    v_permlane32_swap_b32 v3, {v(s1)}
    v_cndmask_b32 v3, {v(s1)}, {v(s1)}, vcc
    v_fma_f32 v9, -v3, v3, v9
    v_max_f32 v9, 0, v9
    v_add_f32 v9, {f32(1e-5)}, v9
    v_rsq_f32 {v(rstd)}, v9
    {cvt(MH, 3, 3)}
    ds_write_b32 v10, {v(rstd)}
    v_and_b32 v9, 0xffff0000, {v(MH)}
    v_sub_f32 v9, v3, v9
    {cvt(MH+1, 9, 9)}""".split("\n")]
    fin[1] = I(f"v_mul_f32 {v(s1)}, {f32(-1.0/448)}, {v(aK+15)}")
    fin[4] = I(f"v_mov_b32 v3, {v(s1)}")
    fin += [I(f"ds_read_b128 {v(RR+4*g,4)}, v11 offset:{32*g}", "rr") for g in range(4)]
    acc = [aK, aV, aQ]
    reads = [(m, q) for q in range(20) for m in (0, 1)] + [(0, q) for q in range(20, 28)] + [(1, q) for q in range(20, 28)]
    reads += [(0, 28), (1, 28)] + [(2, q) for q in range(29)]
    buf = {r: WB + 4 * (n % NB) for n, r in enumerate(reads)}
    nread = [0]
    def issue_read():
        if nread[0] >= len(reads): return
        m, q = reads[nread[0]]; nread[0] += 1
        if (m, q) == (0, 0):
            stamp(2)
            a("s_barrier")
            stamp(3)
            a("ds_read_b32 v14, v8", "mode")
        if (m, q) == (0, 4 * cfg.na): a("s_barrier")
        if q == 28 and m != 1:
            assert nx[0] == 28 and ("xr", 6) not in a.lgq
            stamp(27 + 2 * m); a("s_barrier"); stamp(28 + 2 * m)
        off = (m * 28 + q) * K if q < 28 else (L_AUG - L_W) + m * K
        if off >= 56 * K: a(f"ds_read_b128 {v(buf[(m,q)],4)}, v7 offset:{off-56*K}", ("w", m, q))
        else: a(f"ds_read_b128 {v(buf[(m,q)],4)}, {v(vWA)} offset:{off}", ("w", m, q))
    for _ in range(NB - 1): issue_read()
    a("s_setprio 1")
    a.wait(lg=["mode"])
    a(f"v_readfirstlane_b32 {s(sMODE)}, v14")
    def item(m, q):
        def f():
            w = buf[(m, q)]
            x = XF + 4 * q if q < 28 else MH
            a.wait(lg=[("w", m, q)])
            a(mfma(acc[m], x, w, acc[m] if q else None) if m == 1 else mfma(acc[m], w, x, acc[m] if q else None))
            issue_read()
        return f
    epK = [I(f"v_mul_f32 {v(aK+r)}, {v(aK+r)}, {v(rstd)}") for r in range(16)]
    epK += [I(f"v_cndmask_b32 {v(aK+12+t)}, {v(aK+12+t)}, {'1.0' if t < 3 else '0'}, {s(sUP,2)}") for t in range(4)]
    epK += [I(cvt(PK + t, aK + 2 * t, aK + 2 * t + 1)) for t in range(8)]
    epK += [I(f"buffer_store_dwordx4 {v(PK+4*u,4)}, {v(vKS)}, {s(SWS,4)}, {s(sT+2)} offen offset:{u*K}{SC1(cfg.kvs)}") for u in range(2)]
    epKl = [I(f"ds_write_b128 v4, {v(PK+4*u,4)} offset:{u*K}", "kw") for u in range(2)]
    epV = [lambda: a.wait(lg=["rr"])] + [I(f"v_mul_f32 {v(aV+r)}, {v(aV+r)}, {v(RR+r)}") for r in range(16)]
    epV += [I(cvt(RR + t, aV + 2 * t, aV + 2 * t + 1)) for t in range(8)]
    epV += [I(f"v_cndmask_b32 {v(RR+t)}, {v(RR+t)}, {v(vONE)}, {s(sPADV,2)}") for t in range(8)]
    epV += [I(f"buffer_store_dwordx4 {v(RR+4*u,4)}, {v(vL16)}, {s(SWS,4)}, {s(sT+2)} offen offset:{(2+u)*K}{SC1(cfg.kvs)}") for u in range(2)]
    epVl = [I(f"ds_write_b128 v5, {v(RR+4*u,4)} offset:{(2+u)*K}", "vw") for u in range(2)]
    its = [item(m, q) for m, q in reads]
    avail = [0, 8, 16, 24, 32, 40, 44]
    done = 0
    for c in range(XQ + 1, 7):
        upto = min(avail[c], -(-44 * (c - XQ) // (6 - XQ)))
        cnt = upto - done - 2
        for g in range(4):
            for f in its[done + cnt * g // 4: done + cnt * (g + 1) // 4]: f()
            xadv(4 * c + g)
        for f in its[upto - 2: upto]: f()
        done = upto
        xdot(c)
    stamp(1)
    interleave(its[done:49], fin0, 0, 3)
    interleave(its[49:56], fin, 0, 3)
    interleave(its[56:78], epK + epV + epKl + epVl, 2, 4)
    interleave(its[78:], [I(f"v_mul_f32 {v(rstd)}, {f32(28**-0.5*math.log2(math.e))}, {v(rstd)}")], 0, 1)
    stamp(4)
    publish(sT + 3, 9, thru=cfg.kvs)
    for r in range(16): a(f"v_mul_f32 {v(aQ+r)}, {v(aQ+r)}, {v(rstd)}")
    for t in range(4): a(f"v_cndmask_b32 {v(aQ+12+t)}, {v(aQ+12+t)}, 0, {s(sUP,2)}")
    a(f"v_mul_f32 v9, {v(aQ)}, {v(aK)}\nv_mul_f32 v10, {v(aQ+1)}, {v(aK+1)}")
    for r in range(2, 16): a(f"v_fmac_f32 {v(9+r%2)}, {v(aQ+r)}, {v(aK+r)}")
    a("v_add_f32 v9, v9, v10")
    for t in range(3): a(cvt(vQ + t, aQ + 2 * t, aQ + 2 * t + 1))
    a("v_mov_b32 v10, v9")
    for t in range(3, 6): a(cvt(vQ + t, aQ + 2 * t, aQ + 2 * t + 1))
    a(f"""v_permlane32_swap_b32 v9, v10
    {cvt(vQ+7, aQ+14, aQ+15)}
    ds_write_b128 v6, {v(vQ,4)}
    v_add_f32 v9, v9, v10
    v_cndmask_b32 {v(aQ+12)}, {v(aQ+12)}, -v9, {s(sUP,2)}
    {cvt(vQ+6, aQ+12, aQ+13)}
    ds_write_b128 v6, {v(vQ+4,4)} offset:{K}""")
    a(f"""s_lshl_b32 {s(sPF)}, {s(sFT)}, 15
    s_add_u32 {s(sPF)}, {s(sPF)}, {WOT}
    s_cmp_lt_u32 {s(sFT)}, 14
    s_cselect_b32 {s(sPF)}, {s(sPF)}, {OOB}""")
    att_setup(0)
    stamp(5)
    a("s_waitcnt lgkmcnt(0)\ns_barrier")

SLOT = [0, 4, 5, 6, 7, 8, 9, 5, 6, 7, 8, 9, 5, 6, 7, 8]
PRE = 2

def p1_B():
    vRA, vT0, vT1, vST, vEP, vWA, vAU, vPS = 16, 17, 18, 19, 20, 21, 22, 23
    def padaddr(d, n, t):
        a(f"""v_bfe_u32 {v(t)}, {v(n)}, 2, 2
        v_add_u32 {v(d)}, 28, {v(t)}
        v_and_b32 {v(t+1)}, 1, {v(t)}
        v_lshlrev_b32 {v(t+1)}, 2, {v(t+1)}
        v_lshrrev_b32 {v(t)}, 1, {v(t)}
        v_lshl_add_u32 {v(t+1)}, {v(t)}, 4, {v(t+1)}
        v_add_u32 {v(t+1)}, 11, {v(t+1)}
        s_cmp_eq_u32 {s(sW4)}, 1
        s_cselect_b64 vcc, -1, 0
        v_cndmask_b32 {v(d)}, {v(d)}, {v(t+1)}, vcc
        v_bfe_u32 {v(t)}, {v(n)}, 4, 1
        v_lshl_add_u32 {v(d)}, {v(t)}, 5, {v(d)}
        v_lshrrev_b32 {v(t)}, 2, {v(n)}
        s_cmp_eq_u32 {s(sW4)}, 0
        s_cselect_b32 {s(sCM)}, 3, 99
        v_cmp_eq_u32 vcc, {s(sCM)}, {v(t)}
        v_mov_b32 {v(t+1)}, {28*64+63}
        v_and_b32 {v(t)}, 3, {v(n)}
        v_cndmask_b32 {v(d)}, {v(d)}, {v(t+1)}, vcc
        v_lshl_add_u32 {v(d)}, {v(d)}, 2, {v(t)}
        v_lshlrev_b32 {v(d)}, 2, {v(d)}""")
    FR = 32
    a("LB_start:")
    a.reset_q()
    a(f"""s_setprio 3
    v_lshrrev_b32 v3, 4, v0
    v_and_b32 v4, 15, v0
    v_mul_u32_u24 v5, 2688, v3
    v_lshl_add_u32 {v(vRA)}, v4, 4, v5
    s_add_u32 {s(sT)}, {s(sW4)}, 1
    s_cmp_eq_u32 {s(sT)}, 3
    s_cselect_b32 {s(sT)}, 0, {s(sT)}
    s_mul_i32 {s(sT)}, {s(sT)}, 896
    s_mul_i32 {s(sT+1)}, {s(sJ)}, 112
    s_and_b32 {s(sT+2)}, {s(sT+1)}, 127
    s_sub_u32 {s(sT+1)}, {s(sT+1)}, {s(sT+2)}
    s_add_u32 {s(sT)}, {s(sT)}, {s(sT+1)}
    s_mul_i32 {s(sT+1)}, {s(sI)}, {16*2688}
    s_add_u32 {s(sT)}, {s(sT)}, {s(sT+1)}
    s_mul_i32 {s(sT+3)}, {s(sW4)}, {28*K}
    s_add_u32 {s(sT+3)}, {s(sT+3)}, {L_W}
    s_mov_b32 m0, {s(sT+3)}
    s_mov_b32 {s(SA+2)}, {448*2688}
    s_mov_b32 {s(SA+3)}, 0x20000
    s_cmp_lt_u32 {s(sI)}, 28
    s_cselect_b32 {s(sT+4)}, {s(sW4)}, 3
    s_cmp_eq_u32 {s(sT+4)}, 3
    s_waitcnt lgkmcnt(0)
    s_mov_b32 {s(SA)}, {s(pWQKV)}
    s_mov_b32 {s(SA+1)}, {s(pWQKV+1)}""")
    stamp(0)
    a("s_cbranch_scc1 LB_norep")
    for n in range(4):
        a(f"buffer_load_dwordx4 {v(vRA)}, {s(SA,4)}, {s(sT)} offen offset:{n*K} lds")
        if n < 3: a(f"s_add_u32 {s(sT)}, {s(sT)}, {4*2688-K}")
    a(f"""buffer_load_dword {v(vEP)}, {v(vF0)}, {s(SWS,4)}, 0 offen sc1
    s_mul_i32 {s(sT+6)}, {s(sJ)}, 6
    s_add_u32 {s(sT+6)}, {s(sT+6)}, {s(sW4)}
    s_mul_i32 {s(sT+6)}, {s(sT+6)}, 28
    s_add_u32 {s(sT+6)}, {s(sT+6)}, {s(sI)}
    s_lshl_b32 {s(sT+6)}, {s(sT+6)}, 10
    s_add_u32 {s(sT+6)}, {s(sT+6)}, {WP}
    s_add_u32 {s(sT+7)}, {s(sT+6)}, {84*K}""")
    if not cfg.wps:
        a(f"""v_and_b32 v5, 7, v0
        v_bfe_u32 v6, v0, 3, 1
        v_mul_u32_u24 v6, {84*K}, v6
        v_lshl_add_u32 v5, v5, 7, v6
        buffer_load_dword v9, v5, {s(SWS,4)}, {s(sT+6)} offen sc1""")
    chunks()
    roles(sT)
    a(f"""v_lshrrev_b32 v3, 5, v0
    v_bfe_u32 v4, v0, 2, 2
    v_lshl_add_u32 v4, v3, 3, v4
    v_lshlrev_b32 v4, 8, v4
    v_bfe_u32 v5, v0, 4, 1
    v_lshl_add_u32 v4, v5, 5, v4
    v_and_b32 v5, 3, v0
    v_lshl_add_u32 v4, v5, 3, v4
    s_add_u32 {s(sT+2)}, {s(sT+2)}, {s(sT+3)}
    v_add_u32 {v(vT0)}, {s(sT+2)}, v4
    v_and_b32 v5, 31, v0
    v_cmp_lt_u32 vcc, 10, v5
    v_addc_co_u32 v6, vcc, 0, v5, vcc
    v_cmp_lt_u32 vcc, 13, v5
    v_addc_co_u32 v6, vcc, 0, v6, vcc
    v_cmp_lt_u32 vcc, 24, v5
    v_addc_co_u32 v6, vcc, 0, v6, vcc
    s_cmp_eq_u32 {s(sW4)}, 1
    s_cselect_b64 vcc, -1, 0
    v_cndmask_b32 v6, v5, v6, vcc
    v_lshl_add_u32 v6, v3, 5, v6
    v_lshlrev_b32 v6, 4, v6
    s_cmp_eq_u32 {s(sW4)}, 0
    s_cselect_b32 {s(sT+4)}, 0x80000000, 0
    s_mov_b32 {s(sT+5)}, {s(sT+4)}
    s_xor_b32 {s(sT)}, {s(sT+4)}, 0xf0000000
    s_mov_b32 {s(sT+1)}, {s(sT)}
    v_mov_b32 v7, {OOB}
    v_cndmask_b32 {v(vST)}, v6, v7, {s(sT,2)}""")
    padaddr(8, 5, 10)
    a(f"""v_mul_u32_u24 v3, {84*K}, v3
    v_add_u32 v8, v8, v3
    v_cmp_lt_u32 vcc, 27, v5
    v_mov_b32 v10, 0
    v_mov_b32 v11, 0
    v_cndmask_b32 {v(vPS)}, v8, v7, vcc
    v_mov_b32 v12, {s(sONE)}""")
    stamp(20)
    a("s_waitcnt vmcnt(0)")
    stamp(22)
    for e in range(2):
        for z in range(2):
            a(f"ds_read_b64_tr_b16 {v(FR+4*e+2*z,2)}, {v(vT0)} offset:{56*e+1024*z}")
    for e in range(2):
        a(f"s_waitcnt lgkmcnt({2-2*e})")
        for t in range(4): a(f"v_cndmask_b32 {v(FR+4*e+t)}, {v(FR+4*e+t)}, v12, {s(sT+4,2)}")
        a(f"buffer_store_dwordx4 {v(FR+4*e,4)}, {v(vST)}, {s(SWS,4)}, {s(sT+6+e)} offen{SC1(cfg.wps)}")
    for t in range(4):
        for e in range(2): a(f"v_dot2c_f32_bf16 {v(10+e)}, {s(sONE)}, {v(FR+4*e+t)}")
    a(f"""v_permlane32_swap_b32 v10, v11
    v_add_f32 v10, v10, v11
    buffer_store_dword v10, {v(vPS)}, {s(SWS,4)}, {s(sT+6)} offen{SC1(cfg.wps)}
    s_branch LB_rep
    LB_norep:""")
    a(f"""buffer_load_dword {v(vEP)}, {v(vF0)}, {s(SWS,4)}, 0 offen sc1
    s_getpc_b64 {s(SC,2)}
    Lpc:
    s_sub_u32 {s(SC)}, {s(SC)}, Lpc-{KN}
    s_subb_u32 {s(SC+1)}, {s(SC+1)}, 0
    s_mov_b32 {s(SC+2)}, Lcode_end-{KN}
    s_mov_b32 {s(SC+3)}, 0x20000
    s_lshl_b32 {s(sT)}, {s(sI)}, 11
    v_and_b32 v5, 15, v0
    v_lshlrev_b32 v5, 7, v5
    v_and_b32 v6, 3, v0
    v_bfe_u32 v7, v0, 2, 1
    v_lshlrev_b32 v6, 7, v6
    v_lshl_add_u32 v6, v7, 12, v6
    s_lshl_b32 {s(sT+1)}, {s(sJ)}, 9
    s_add_u32 {s(sT+1)}, {s(sT+1)}, {FW}
    buffer_load_dword v9, v6, {s(SWS,4)}, {s(sT+1)} offen sc1
    buffer_load_dword v10, v5, {s(SC,4)}, {s(sT)} offen""")
    chunks()
    roles(sT)
    a("s_waitcnt vmcnt(2)\nLB_rep:\ns_barrier")
    nonce(vEP)
    stamp(1)
    a(f"""s_lshl_b32 {s(sT)}, {s(sJ)}, 9
    s_add_u32 {s(sT)}, {s(sT)}, {FW}
    s_lshl2_add_u32 {s(sT+1)}, {s(sI)}, {s(sW4)}
    s_lshl2_add_u32 {s(sT+1)}, {s(sT+1)}, {s(sT)}
    v_mov_b32 v3, {s(sL)}
    v_lshlrev_b32 v4, 3, v0
    s_mov_b32 {s(sMODE)}, 0
    s_mov_b32 {s(sT+2)}, {0 if cfg.force_global else cfg.n1}
    s_waitcnt vmcnt(0)
    buffer_store_dword v3, {v(vF0)}, {s(SWS,4)}, {s(sT+1)} offen""")
    if cfg.force_global: a("s_branch LB_wglob")
    a(f"""LB_wpoll:
    buffer_load_dwordx2 v[6:7], v4, {s(SWS,4)}, {s(sT)} offen sc1
    s_waitcnt vmcnt(0)
    v_cmp_ne_u32 vcc, {s(sL)}, v6
    v_cmp_ne_u32 {s(sCM,2)}, {s(sL)}, v7
    s_nop 1
    s_or_b64 vcc, vcc, {s(sCM,2)}
    s_cbranch_scc1 LB_wretry
    LB_wdone:""")
    ool.append(f"""LB_wretry:
    s_sub_u32 {s(sT+2)}, {s(sT+2)}, 1
    s_cbranch_scc0 LB_wpoll
    LB_wglob:
    s_mov_b32 {s(sMODE)}, 1
    buffer_wbl2 sc1
    s_add_u32 {s(sT+1)}, {s(sT+1)}, {GOFF}
    s_add_u32 {s(sT+2)}, {s(sT)}, {GOFF}
    v_mov_b32 v3, {s(sG)}
    s_waitcnt vmcnt(0)
    buffer_store_dword v3, {v(vF0)}, {s(SWS,4)}, {s(sT+1)} offen sc1
    LB_wgl:
    buffer_load_dwordx2 v[6:7], v4, {s(SWS,4)}, {s(sT)} offen sc1
    buffer_load_dwordx2 v[8:9], v4, {s(SWS,4)}, {s(sT+2)} offen sc1
    s_waitcnt vmcnt(0)
    v_cmp_ne_u32 vcc, {s(sL)}, v6
    v_cmp_ne_u32 {s(sCM,2)}, {s(sG)}, v8
    s_nop 1
    s_and_b64 {s(sT+4,2)}, vcc, {s(sCM,2)}
    v_cmp_ne_u32 vcc, {s(sL)}, v7
    v_cmp_ne_u32 {s(sCM,2)}, {s(sG)}, v9
    s_nop 1
    s_and_b64 vcc, vcc, {s(sCM,2)}
    s_or_b64 vcc, vcc, {s(sT+4,2)}
    s_cbranch_scc0 LB_wgd
    s_sub_u32 {s(sSPIN)}, {s(sSPIN)}, 1
    s_cbranch_scc0 LB_wgl
    s_mov_b32 {s(sSPIN)}, 0
    LB_wgd:
    buffer_inv sc1
    s_waitcnt vmcnt(0)
    s_branch LB_wdone""")
    a.reset_q()
    stamp(2)
    a(f"""s_mul_i32 {s(sT)}, {s(sH)}, 84
    s_add_u32 {s(sT)}, {s(sT)}, {s(sW4)}
    s_lshl_b32 {s(sT)}, {s(sT)}, 10
    s_add_u32 {s(sT)}, {s(sT)}, {WP}
    s_lshl_b32 {s(sM0)}, {s(sW4)}, 10""")
    for q in range(7): a(f"s_lshl_b32 {s(sCH+q)}, {s(sCH+q)}, 12\ns_add_u32 {s(sCH+q)}, {s(sCH+q)}, {s(sT)}")
    groups = [[0, 1], [2]]
    def wdma(gr):
        for q in range(7):
            for m in gr:
                a(f"s_add_u32 m0, {s(sM0)}, {L_W+(m*28+4*q)*K}")
                if m: a(f"s_add_u32 {s(sCH+q)}, {s(sCH+q)}, {28*K}")
                else: a("s_nop 0")
                a(f"buffer_load_dwordx4 {v(vL16)}, {s(SWS,4)}, {s(sCH+q)} offen sc1 lds", ("w", m, q))
                if cfg.gate and m < 2 and 2 * q + m + 1 == cfg.gaten: a("s_barrier")
    wdma(groups[0])
    stamp(23)
    a(f"""v_mov_b32 v3, {s(sMODE)}
    v_mov_b32 v4, {L_MODE}
    ds_write_b32 v4, v3
""")
    def p0par():
        a(f"""s_lshl2_add_u32 {s(sT)}, {s(sB)}, {s(sW4)}
        s_mul_i32 {s(sT+1)}, {s(sT)}, 9363
        s_lshr_b32 {s(sT+1)}, {s(sT+1)}, 16
        s_mul_i32 {s(sT+2)}, {s(sT+1)}, 7
        s_sub_u32 {s(sT+2)}, {s(sT)}, {s(sT+2)}
        s_sub_u32 {s(sT+3)}, {s(sT+1)}, 32
        s_cmp_lt_u32 {s(sT+1)}, 32
        s_cselect_b32 {s(SB_)}, {s(pWO)}, {s(pW2)}
        s_cselect_b32 {s(SB_+1)}, {s(pWO+1)}, {s(pW2+1)}
        s_cselect_b32 {s(SB_+2)}, 1, 4
        s_cselect_b32 {s(sT+1)}, {s(sT+1)}, {s(sT+3)}
        s_cselect_b32 {s(sT+3)}, 14, 16
        s_cselect_b32 {s(sP0DS)}, 2, 7
        s_cselect_b32 {s(sP0M)}, 0xffff, -1
        s_cselect_b32 {s(sT+4)}, 3, 4
        s_cselect_b32 {s(sP0D)}, 0, {W2T-WOT}
        s_mul_i32 {s(SB_+2)}, {s(SB_+2)}, {448*896}
        s_mov_b32 {s(SB_+3)}, 0x20000
        s_lshl_b32 {s(sP0DS)}, {s(sP0DS)}, 14
        s_lshl_b32 {s(sT+4)}, {s(sT+4)}, 7
        s_mul_i32 {s(sT+3)}, {s(sT+3)}, {s(sT+1)}
        s_mul_i32 {s(sT+3)}, {s(sT+3)}, 896
        s_lshl_b32 {s(sT+5)}, {s(sT+2)}, 7
        s_add_u32 {s(sP0ST)}, {s(sT+3)}, {s(sT+5)}
        s_lshl_b32 {s(sT+1)}, {s(sT+1)}, 10
        s_add_u32 {s(sP0D)}, {s(sP0D)}, {s(sT+1)}
        s_mul_i32 {s(sT+2)}, {s(sT+2)}, {s(sP0DS)}
        s_lshl1_add_u32 {s(sP0D)}, {s(sT+2)}, {s(sP0D)}
        s_add_u32 {s(sP0D)}, {s(sP0D)}, {WOT}
        s_cmp_lt_u32 {s(sT)}, 1008
        s_cselect_b32 {s(sP0D)}, {s(sP0D)}, {OOB}
        s_add_u32 {s(sP0E)}, {s(sP0D)}, {s(sP0DS)}
        v_lshrrev_b32 v3, 3, v0
        v_and_b32 v4, 7, v0
        v_mul_u32_u24 v5, 896, v3
        v_lshl_add_u32 {v(vRA)}, v4, 4, v5
        s_lshl_b32 {s(sT+3)}, {s(sW4)}, 12
        s_add_u32 {s(sT+3)}, {s(sT+3)}, {L_P0}
        v_lshrrev_b32 v3, 5, v0
        v_bfe_u32 v4, v0, 2, 2
        v_lshlrev_b32 v4, 7, v4
        v_bfe_u32 v5, v0, 4, 1
        v_lshl_add_u32 v4, v5, 5, v4
        v_and_b32 v5, 3, v0
        v_lshl_add_u32 v4, v5, 3, v4
        v_add_u32 v4, {s(sT+3)}, v4
        v_lshl_add_u32 {v(vT0)}, v3, 9, v4
        v_mad_u32_u24 {v(vT1)}, v3, {s(sT+4)}, v4
        s_mov_b32 m0, {s(sT+3)}
        s_add_u32 {s(sT+1)}, {s(sP0ST)}, {8*896-K}""")
    def colsum():
        for t in range(14): a(f"ds_read_b32 {v(FR+t)}, {v(vWA)} offset:{2*K*t}", ("c", t))
        for t in range(1, 14):
            a.wait(lg=[("c", t)])
            a(f"v_add_f32 {v(FR)}, {v(FR)}, {v(FR+t)}")
        a(f"""{cvt(4, FR, FR)}
        v_mov_b32 v10, 0
        v_mov_b32 v11, 0
        v_and_b32 v5, 0xffff0000, v4
        v_and_b32 v9, 0xffff, v4
        v_sub_f32 v5, {v(FR)}, v5
        {cvt(8, FR, 5)}
        ds_write_b128 {v(vAU)}, v[8:11]""")
    a.wait(vm=[("w", m, cfg.na - 1) for m in groups[0]])
    a("s_waitcnt lgkmcnt(0)")
    stamp(3)
    a("s_barrier")
    wdma(groups[1])
    a(f"""s_setprio 0
    v_and_b32 v5, 31, v0
    v_cmp_lt_u32 vcc, 11, v5
    v_subb_co_u32 v6, vcc, v5, 0, vcc
    v_cmp_lt_u32 vcc, 15, v5
    v_subb_co_u32 v6, vcc, v6, 0, vcc
    v_cmp_lt_u32 vcc, 27, v5
    v_subb_co_u32 v6, vcc, v6, 0, vcc
    s_cmp_eq_u32 {s(sW4)}, 1
    s_cselect_b64 vcc, -1, 0
    v_cndmask_b32 v5, v5, v6, vcc
    v_min_u32 v5, 27, v5""")
    padaddr(8, 5, 10)
    a(f"""s_min_u32 {s(sT)}, {s(sW4)}, 2
    s_mul_i32 {s(sT)}, {s(sT)}, {28*K}
    s_add_u32 {s(sT)}, {s(sT)}, {L_W}
    v_lshrrev_b32 v3, 5, v0
    v_lshl_add_u32 v8, v3, 10, v8
    v_add_u32 {v(vWA)}, {s(sT)}, v8
    s_add_u32 {s(sT)}, {s(sM0)}, {L_AUG}
    s_cmp_eq_u32 {s(sW4)}, 3
    s_cselect_b32 {s(sT)}, {L_AUG+6*K}, {s(sT)}
    v_add_u32 {v(vAU)}, {s(sT)}, {v(vL16)}""")
    a.wait(vm=[("w", m, 6) for m in groups[0]])
    a("s_barrier")
    a(f"s_cmp_ge_u32 {s(sW4)}, 2\ns_cbranch_scc1 LB_nocs")
    colsum()
    a("LB_nocs:")
    p0par()
    stamp(12)
    a.wait(vm=[("w", 2, 6)])
    a("s_waitcnt lgkmcnt(0)")
    def bg():
        a(f"buffer_load_dwordx4 {v(vRA)}, {s(SB_,4)}, {s(sP0ST)} offen lds", "p0")
        a(f"buffer_load_dwordx4 {v(vRA)}, {s(SB_,4)}, {s(sT+1)} offen offset:{K} lds", "p0")
        if cfg.w1touch:
            srd(SA, pW1, 448 * 3584)
            a(f"""s_lshl2_add_u32 {s(sT)}, {s(sB)}, {s(sW4)}
            s_mul_i32 {s(sT)}, {s(sT)}, {13*128}
            v_min_u32 v3, 12, v0
            v_lshlrev_b32 v3, 7, v3
            buffer_load_dword v110, v3, {s(SA,4)}, {s(sT)} offen
            s_lshl_b32 {s(sT)}, {s(sB)}, 7
            s_add_u32 {s(sT)}, {s(sT)}, {FP0}
            s_cmp_lt_u32 {s(sB)}, 128
            s_cselect_b32 {s(sT)}, {s(sT)}, {OOB}
            buffer_load_dword v110, {v(vF0)}, {s(SWS,4)}, {s(sT)} offen sc1""")
    if cfg.bgpos == 0: bg()
    stamp(13)
    a("s_barrier")
    if cfg.bgpos == 1: bg()
    a(f"s_cmp_lt_u32 {s(sW4)}, 2\ns_cbranch_scc1 LB_nocs2")
    colsum()
    a("LB_nocs2:\ns_waitcnt lgkmcnt(0)")
    stamp(14)
    a("s_barrier")
    stamp(4)
    a.wait(vm=["p0"])
    for t in range(2):
        a(f"ds_read_b64_tr_b16 {v(vP0+4*t,2)}, {v(vT0)} offset:{64*t}")
        a(f"ds_read_b64_tr_b16 {v(vP0+4*t+2,2)}, {v(vT1)} offset:{64*t+1024}")
    att_setup(1)
    a("s_waitcnt lgkmcnt(0)")
    for t in range(2): a(f"v_and_b32 {v(vP0+4*t+3)}, {s(sP0M)}, {v(vP0+4*t+3)}")
    srd(SB_, pW1, 448 * 3584)
    a(f"""s_mul_i32 {s(sPF)}, {s(sW4)}, {16*3584}
    s_lshl_b32 {s(sT+1)}, {s(sSL)}, 8
    s_add_u32 {s(sPF)}, {s(sPF)}, {s(sT+1)}
    s_cmp_lt_u32 {s(sI)}, 28
    s_cselect_b32 {s(sPF)}, {s(sPF)}, {OOB}
    s_cmp_eq_u32 {s(sW)}, 7
    s_cselect_b32 {s(sFLO)}, {FP0}, {OOB}
    s_cselect_b32 {s(sP0M)}, {s(sG)}, 0
    s_lshl_b32 {s(sP0DS)}, {s(sW4)}, 12
    s_lshl_b32 {s(sT+4)}, {s(sW4)}, 11
    s_add_u32 {s(sT+4)}, {s(sT+4)}, {L_QX}
    v_add_u32 v9, {s(sT+4)}, {v(vL16)}
    v_lshrrev_b32 v10, 4, v0
    v_and_b32 v11, 15, v0
    v_lshlrev_b32 v12, 2, v10
    v_xor_b32 v11, v11, v12
    v_mul_u32_u24 v10, 3584, v10
    v_lshl_add_u32 {v(vW1)}, v11, 4, v10
    s_lshl_b32 {s(sT)}, {s(sH)}, 8
    s_add_u32 {s(sT)}, {s(sT)}, {FA}
    v_lshlrev_b32 v3, 2, v0""")
    poll(sT, 3, 10)
    a.reset_q()
    stamp(5)
    for be in range(1, PRE + 1):
        a(f"""s_add_u32 {s(sKO)}, {s(sKO)}, {16*K}
        s_and_b32 {s(sKO)}, {s(sKO)}, {240*K}
        s_add_u32 m0, {s(sP0DS)}, {SLOT[be]*16*K}
        s_add_u32 {s(sT)}, {s(sKO)}, {s(sKVB)}""")
        for n in range(4):
            a(f"buffer_load_dwordx4 {v(vL16)}, {s(SWS,4)}, {s(sT)} offen offset:{n*K} sc1 lds", ("kv", be))
    a("s_barrier")
    a(f"""ds_read_b128 {v(vQ,4)}, v9
    ds_read_b128 {v(vQ+4,4)}, v9 offset:{K}""", "q")

vXR, vB1, sW2 = 88, 88, 95
vW1, vKV, vP0 = 89, 96, 100
sKO, sP0E, sFLO = 54, 55, 86
def wreg(q): return vPF + 4 * q if q < 32 else 32 + 4 * (q - 32)
nw = [0]
def w2load(cnt, win):
    for _ in range(cnt):
        p = nw[0]; nw[0] += 1
        if win and p >= win: a.wait(vm=[("w2", p - win)])
        a(f"buffer_load_dwordx4 {v(wreg(p),4)}, {v(vL16)}, {s(SWS,4)}, {s(sW2)} offen offset:{(p%4)*K} sc1", ("w2", p))
        if p % 4 == 3: a(f"s_add_u32 {s(sW2)}, {s(sW2)}, {4*K}")
vA0, vIDX, vFL = 4, 7, 8
def att_setup(g):
    a(f"""v_add_u32 {v(vA0)}, {g*8*K}, {v(vL16)}
    v_add_u32 {v(vA0+1)}, {g*8*K+64*K}, {v(vL16)}
    v_add_u32 {v(vA0+2)}, {g*8*K+128*K}, {v(vL16)}
    v_mov_b32 {v(vIDX)}, 0xdddddddd
    s_lshl_b32 {s(sM0)}, {s(sW)}, 11
    s_add_u32 {s(sT)}, {s(sKVB)}, {s(sM0)}
    v_add_u32 {v(vKV)}, {s(sT)}, {v(vL16)}
    s_add_u32 {s(sKO)}, {s(sRB)}, {0 if g else PRE}
    s_lshl_b32 {s(sKO)}, {s(sKO)}, 14""")
    if g: a(f"s_lshl_b32 {s(sT)}, {s(sW4)}, 12\ns_add_u32 {s(sKVB)}, {s(sKVB)}, {s(sT)}")
    else: a(f"v_mov_b32 v13, {s(sG)}")
    if g == 0:
        a(f"""v_and_b32 v8, 31, v0
        v_mul_u32_u24 v8, 896, v8
        v_lshrrev_b32 v9, 5, v0
        v_lshl_add_u32 v8, v9, 4, v8
        s_mul_i32 {s(sP0DS)}, {s(sT3)}, {32*896}
        s_lshl_b32 {s(sT+2)}, {s(sFT)}, 6
        s_add_u32 {s(sP0DS)}, {s(sP0DS)}, {s(sT+2)}""")
    else:
        srd(SA, pB1, 3584)
        a(f"""s_lshl2_add_u32 {s(sT)}, {s(sSL)}, {s(sW4)}
        s_lshl_b32 {s(sP0ST)}, {s(sT)}, 6
        s_and_b32 {s(sT)}, {s(sW4)}, 1
        s_lshl1_add_u32 {s(sT)}, {s(sC7)}, {s(sT)}
        s_lshr_b32 {s(sT+3)}, {s(sW4)}, 1
        s_lshl1_add_u32 {s(sT)}, {s(sT)}, {s(sT+3)}
        s_mul_i32 {s(sW2)}, {s(sT)}, {56*K}
        s_add_u32 {s(sW2)}, {s(sW2)}, {W2T}
        s_cmp_lt_u32 {s(sI)}, 28
        s_cselect_b32 {s(sW2)}, {s(sW2)}, {OOB}
        v_and_b32 {v(vB1)}, 31, v0
        v_lshlrev_b32 {v(vB1)}, 1, {v(vB1)}""")
    if g: a("v_and_b32 v13, 15, v0\nv_lshlrev_b32 v13, 7, v13\nv_and_b32 v14, 7, v0\nv_lshlrev_b32 v14, 7, v14")
    for r in range(16): a(f"v_mov_b32 {v(vO+r)}, 0")

BARS = {1: 2, 4: 4, 8: 6, 12: 8, 16: 10, 20: 12, 24: 14, 28: 15}
def attention(role):
    stamp(6)
    def rd(dst, n, part, tag):
        addr = SLOT[n // 2] * 16 * K + (n % 2) * 4 * K + part * K
        a(f"ds_read_b128 {v(dst,4)}, {v(vA0 + addr // (64*K))} offset:{addr % (64*K)}", tag)
    vm = {n: [] for n in range(-1, 32)}
    sched = {3: -1, 4: 0, 5: 1, 6: 2}
    for be in range(7, 16): sched[be] = 4 * ((be - 3) // 2) + (be - 3) % 2
    bl = sorted(BARS)
    for n, n2 in zip(bl, bl[1:] + [32]): assert BARS[n] >= min((n2 + 1) // 2, 15)
    for be, s0 in sched.items():
        prev = [p for p in range(be) if SLOT[p] == SLOT[be]]
        if prev: assert any(b <= s0 and 2 * prev[-1] <= b - 2 for b in BARS), (be, s0)
        assert s0 < min(b for b, u in BARS.items() if u >= be)
        def first(be=be):
            a(f"""s_add_u32 m0, {s(sM0)}, {SLOT[be]*16*K}
            s_add_u32 {s(sKO)}, {s(sKO)}, {16*K}
            s_and_b32 {s(sKO)}, {s(sKO)}, {240*K}""")
            a(f"buffer_load_dwordx4 {v(vKV)}, {s(SWS,4)}, {s(sKO)} offen sc1 lds", ("kv", be))
        def second(be=be):
            a(f"buffer_load_dwordx4 {v(vKV)}, {s(SWS,4)}, {s(sKO)} offen offset:{K} sc1 lds", ("kv", be))
        vm[s0] += [first, second]
    def spread(ops, lo, hi):
        lvl = 0
        while sum(max(0, lvl - len(vm[n])) for n in range(lo, hi)) < len(ops): lvl += 1
        room = [n for n in range(lo, hi) for _ in range(max(0, lvl - len(vm[n])))]
        extra = len(room) - len(ops)
        top = [n for n in range(lo, hi) if lvl > len(vm[n])]
        for t in range(extra): room.remove(top[(t * len(top)) // extra])
        for n, o in zip(room, ops): vm[n].append(o)
    CK = cfg.p0ck
    if role == 0:
        ops = []
        for p in range(32):
            def ld(p=p):
                a(f"buffer_load_dwordx4 {v(vPF+4*p,4)}, {v(vL16)}, {s(SWS,4)}, {s(sPF)} offen offset:{(p%4)*K} sc1", "pf")
                if p % 4 == 3: a(f"s_add_u32 {s(sPF)}, {s(sPF)}, {4*K}")
            ops.append(ld)
        vm[5] += [I(f"buffer_load_dwordx4 {v(vXR+4*g,4)}, v8, {s(SX,4)}, {s(sP0DS)} offen offset:{32*g}") for g in range(2)]
        vm[4].append(I(f"buffer_store_dword v13, {v(vF0)}, {s(SWS,4)}, {s(sP0D)} offen sc1"))
        spread(ops, CK, 30)
    else:
        ops = []
        for p in range(28):
            def ld(p=p):
                a(f"s_add_u32 m0, {s(sP0DS)}, {(p//4)*16*K}")
                a(f"s_add_u32 {s(sT)}, {s(sPF)}, {(p//4)*64*3584 + (p%4)*(4*3584-K)}")
                a(f"buffer_load_dwordx4 {v(vW1)}, {s(SB_,4)}, {s(sT)} offen offset:{(p%4)*K} lds", ("w1", p // 4))
            ops.append(ld)
        vm[-1].append(I(f"buffer_store_dwordx4 {v(vP0,4)}, {v(vL16)}, {s(SWS,4)}, {s(sP0D)} offen sc1", "p0s"))
        vm[0].append(I(f"buffer_store_dwordx4 {v(vP0+4,4)}, {v(vL16)}, {s(SWS,4)}, {s(sP0E)} offen sc1", "p0s"))
        vm[CK - 2].append(I(f"buffer_load_dwordx4 {v(vFL,4)}, {v(vL16)}, {s(SWS,4)}, {s(sFLO)} offen sc1", "fl"))
        spread(ops[20:], 28, 31)
        spread(ops[4:16] + ops[0:4] + ops[16:20], 3, cfg.w1end)
        ops = [lambda: w2load(1, 0) for p in range(cfg.w2n0)]
        vm[3].append(I(f"buffer_load_ushort {v(vB1)}, {v(vB1)}, {s(SA,4)}, {s(sP0ST)} offen"))
        if cfg.touch:
            def t1():
                a(f"""s_mul_i32 {s(sT+1)}, {s(sT3)}, 28
                s_lshl1_add_u32 {s(sT+1)}, {s(sFT)}, {s(sT+1)}
                s_lshl_b32 {s(sT+1)}, {s(sT+1)}, 10
                s_add_u32 {s(sT+1)}, {s(sT+1)}, {HF}""")
                a(f"buffer_load_dword v12, v13, {s(SWS,4)}, {s(sT+1)} offen sc1")
            def t2():
                a(f"""s_lshl_b32 {s(sT+1)}, {s(sI)}, 10
                s_lshl_b32 {s(sT+2)}, {s(sJ)}, 15
                s_add_u32 {s(sT+1)}, {s(sT+1)}, {s(sT+2)}
                s_add_u32 {s(sT+1)}, {s(sT+1)}, {ST}""")
                a(f"buffer_load_dword v12, v14, {s(SWS,4)}, {s(sT+1)} offen sc1")
            def t3():
                a(f"""s_lshl_b32 {s(sT+1)}, {s(sJ)}, 10
                s_and_b32 {s(sT+2)}, {s(sW)}, 1
                s_lshl_b32 {s(sT+2)}, {s(sT+2)}, 13
                s_add_u32 {s(sT+1)}, {s(sT+1)}, {s(sT+2)}
                s_add_u32 {s(sT+1)}, {s(sT+1)}, {FC}""")
                a(f"buffer_load_dword v12, v14, {s(SWS,4)}, {s(sT+1)} offen sc1")
            ops += [t3] if cfg.hs else [t1, t2, t3]
        spread(ops, max(CK, cfg.w1end), 28)
    def flagcheck():
        a.wait(vm=["fl"])
        a(f"""Lp0c:
        v_xor_b32 {v(vFL)}, {v(vFL)}, {v(vFL+1)}
        v_xor_b32 {v(vFL+1)}, {v(vFL+1)}, {v(vFL+2)}
        v_xor_b32 {v(vFL+2)}, {v(vFL+2)}, {v(vFL+3)}
        v_xor_b32 {v(vFL+3)}, {s(sP0M)}, {v(vFL+3)}
        v_or3_b32 {v(vFL)}, {v(vFL)}, {v(vFL+1)}, {v(vFL+2)}
        v_or_b32 {v(vFL)}, {v(vFL)}, {v(vFL+3)}
        v_cmp_ne_u32 vcc, 0, {v(vFL)}
        s_cbranch_vccnz Lp0r
        Lp0d:""")
        ool.append(f"""Lp0r:
        buffer_load_dwordx4 {v(vFL,4)}, {v(vL16)}, {s(SWS,4)}, {s(sFLO)} offen sc1
        s_waitcnt vmcnt(0)
        {spin_tail('Lp0c', 'Lp0d')}""")
    def bar(n):
        if cfg.lst: stamp(40 + bl.index(n))
        if role == 1 and n == CK: flagcheck()
        a.wait(vm=[("kv", b) for b in range(1, BARS[n] + 1)] + (["p0s"] if n == 4 else []))
        a("s_barrier")
        if n == 1: rd(vK0, 2, 0, ("k0", 2)); rd(vK1, 2, 1, ("k1", 2))
    S = [vS0, vS1]
    rd(vK0, 0, 0, ("k0", 0)); rd(vK1, 0, 1, ("k1", 0))
    for n in range(-1, 32):
        cur, nxt = S[n % 2], S[(n + 1) % 2]
        if n >= 0:
            if n in BARS and role == 1: bar(n)
            a("s_setprio 0")
            for r in range(16):
                if r == 8: a("s_setprio 1")
                a(f"v_exp_f32 {v(cur+r)}, {v(cur+r)}")
        if n in BARS and role == 0: bar(n)
        a("s_setprio 2")
        def q0():
            if n < 31: a.wait(lg=["q", ("k0", n + 1)]); a(mfma(nxt, vK0, vQ, None))
            if n < 30 and n != 0: rd(vK0, n + 2, 0, ("k0", n + 2))
        def q1():
            if n < 31: a.wait(lg=[("k1", n + 1)]); a(mfma(nxt, vK1, vQ + 4, nxt))
            if n < 30 and n != 0: rd(vK1, n + 2, 1, ("k1", n + 2))
        def p0():
            if n >= 0: a.wait(lg=[("v0", n)]); a(smf(vO, vV0, cur, vIDX))
            if n < 31: rd(vV0, n + 1, 2, ("v0", n + 1))
        def p1():
            if n >= 0: a.wait(lg=[("v1", n)]); a(smf(vO, vV1, cur + 8, vIDX))
            if n < 31: rd(vV1, n + 1, 3, ("v1", n + 1))
        seq = [p0, q0, q1, p1] if (n == 1 and role == 0) else [q0, q1, p0, p1]
        ops = list(vm[n])
        for f in seq:
            f()
            if ops: ops.pop(0)()
        assert not ops
    a(f"""s_lshl_b32 {s(sT)}, {s(sW4)}, 12
    s_add_u32 {s(sT)}, {s(sT)}, {L_RED}
    v_add_u32 v3, {s(sT)}, {v(vL16)}""")

def post_A():
    stamp(7)
    XR = 88
    for g in range(4): a(f"ds_write_b128 v3, {v(vO+4*g,4)} offset:{g*K}")
    a(f"""v_mov_b32 v6, {s(sG)}
    s_waitcnt lgkmcnt(0)
    s_barrier""")
    stamp(33)
    a("s_waitcnt vmcnt(0)")
    for t in (0, 1, 4, 5): a(f"v_permlane32_swap_b32 {v(XR+t)}, {v(XR+t+2)}")
    for t in range(8):
        a(f"v_lshlrev_b32 {v(vO+2*t)}, 16, {v(XR+t)}\nv_and_b32 {v(vO+2*t+1)}, 0xffff0000, {v(XR+t)}")
    a(f"""s_lshl_b32 {s(sT)}, {s(sT3)}, 7
    s_add_u32 {s(sT)}, {s(sT)}, {FB}
    v_and_b32 v4, 15, v0
    v_lshlrev_b32 v4, 2, v4
    s_lshl_b32 {s(sT+1)}, {s(sT3)}, 15
    s_add_u32 {s(sT+1)}, {s(sT+1)}, {OF}
    s_lshl_b32 {s(sT+2)}, {s(sW)}, 12
    s_add_u32 {s(sT+1)}, {s(sT+1)}, {s(sT+2)}
    s_add_u32 {s(sT+3)}, {s(sT+1)}, {16*K}
    s_add_u32 m0, {s(sT+2)}, {L_O}
    v_add_u32 v3, {L_O}, {v(vL16)}""")
    if cfg.spoll: poll_s(sT)
    else: poll_g(sT, 4, 5)
    a.reset_q()
    stamp(9)
    for n in range(4): a(f"buffer_load_dwordx4 {v(vL16)}, {s(SWS,4)}, {s(sT+1)} offen offset:{n*K} sc1 lds")
    a(f"s_add_u32 m0, {s(sT+2)}, {L_O+16*K}\ns_nop 0")
    for n in range(4): a(f"buffer_load_dwordx4 {v(vL16)}, {s(SWS,4)}, {s(sT+3)} offen offset:{n*K} sc1 lds")
    a(f"""s_or_b32 {s(sT)}, {s(sB)}, {s(sW)}
    s_cmp_eq_u32 {s(sT)}, 0
    s_cselect_b32 {s(sT)}, 0, {OOB}
    s_mul_i32 {s(sT+1)}, {s(sT3)}, 28
    s_lshl1_add_u32 {s(sT+1)}, {s(sFT)}, {s(sT+1)}
    s_lshl_b32 {s(sT+1)}, {s(sT+1)}, 10
    s_add_u32 {s(sT+1)}, {s(sT+1)}, {HF}
    s_lshl_b32 {s(sT+2)}, {s(sJ)}, 5
    s_add_u32 {s(sT+2)}, {s(sT+2)}, {s(sI)}
    s_lshl_b32 {s(sT+2)}, {s(sT+2)}, 8
    s_add_u32 {s(sT+2)}, {s(sT+2)}, {s(sW)}
    s_lshl_b32 {s(sT+2)}, {s(sT+2)}, 2
    s_add_u32 {s(sT+2)}, {s(sT+2)}, {ST}
    s_lshl_b32 {s(sT+3)}, {s(sT3)}, 5
    s_add_u32 {s(sT+3)}, {s(sT+3)}, {s(sFT)}
    s_lshl_b32 {s(sT+3)}, {s(sT+3)}, 2
    s_add_u32 {s(sT+3)}, {s(sT+3)}, {FC}
    s_waitcnt vmcnt(0)
    s_barrier""")
    stamp(10)
    a(f"""buffer_store_dword v6, {v(vF0)}, {s(SWS,4)}, {s(sT)} offen sc1
    s_cmp_ge_u32 {s(sFT)}, 14
    s_cbranch_scc1 LA_p3d""")
    NB = 12; OB = 32
    def ord_(n): a(f"ds_read_b128 {v(OB+4*(n%NB),4)}, v3 offset:{n*K}", ("o", n))
    for n in range(NB - 1): ord_(n)
    for n in range(32):
        a.wait(lg=[("o", n)])
        a(mfma(vO, vPF + 4 * n, OB + 4 * (n % NB), vO))
        if n + NB - 1 < 32: ord_(n + NB - 1)
    stamp(35)
    for u in range(2):
        for t in range(4): a(cvt(OB + 4 * u + t, vO + 8 * u + 2 * t, vO + 8 * u + 2 * t + 1))
        a(f"buffer_store_dwordx4 {v(OB+4*u,4)}, {v(vL16)}, {s(SWS,4)}, {s(sT+1)} offen offset:{u*K}{SC1(cfg.hs)}")
    a(f"v_add_f32 v8, {v(vO)}, {v(vO+1)}\nv_mul_f32 v9, {v(vO)}, {v(vO)}\nv_fmac_f32 v9, {v(vO+1)}, {v(vO+1)}")
    for r in range(2, 16): a(f"v_add_f32 v8, v8, {v(vO+r)}\nv_fmac_f32 v9, {v(vO+r)}, {v(vO+r)}")
    a(f"""v_permlane32_swap_b32 v8, v9
    v_add_f32 v8, v8, v9
    buffer_store_dword v8, {v(vL16)}, {s(SWS,4)}, {s(sT+2)} offen{SC1(cfg.hs)}""")
    publish(sT + 3, 5, thru=cfg.hs)
    a("LA_p3d:")
    stamp(11)
    a(f"s_cmp_ge_u32 {s(sI)}, 28\ns_cbranch_scc1 LA_idle")
    HB, AC, SS, AUG = 128, 16, 96, 240
    a(f"""s_lshl_b32 {s(sT)}, {s(sT4)}, 7
    s_add_u32 {s(sT)}, {s(sT)}, {FC}
    v_min_u32 v4, 13, v0
    v_lshlrev_b32 v4, 2, v4
    s_mul_i32 {s(sT+1)}, {s(sT4)}, {28*K}
    s_add_u32 {s(sT+1)}, {s(sT+1)}, {HF}
    s_lshl_b32 {s(sT+2)}, {s(sT4)}, 12
    s_add_u32 {s(sT+2)}, {s(sT+2)}, {ST}
    s_mul_i32 {s(sT+3)}, {s(sT4)}, 14
    s_add_u32 {s(sT+3)}, {s(sT+3)}, {s(sSL)}
    s_lshl_b32 {s(sT+3)}, {s(sT+3)}, 13
    s_add_u32 {s(sT+3)}, {s(sT+3)}, {HH}
    s_lshl_b32 {s(sT+4)}, {s(sT4)}, 5
    s_add_u32 {s(sT+4)}, {s(sT+4)}, {s(sSL)}
    s_lshl_b32 {s(sT+4)}, {s(sT+4)}, 2
    s_add_u32 {s(sT+4)}, {s(sT+4)}, {FD}
    v_add_u32 v7, {128*K}, {v(vL16)}""")
    WA = 244
    w1addr(WA, range(4), 8)
    wbufs = [80, 84, 88, 92, 112, 116, 120, 124]
    NB = len(wbufs)
    seq = [(t, q) for q in range(28) for t in range(3)] + [(t, 28) for t in range(3)] + [(3, q) for q in range(29)]
    nr = [0]
    def wread():
        if nr[0] >= len(seq): return
        t, q = seq[nr[0]]; b = wbufs[nr[0] % NB]; nr[0] += 1
        if q == 28: a(f"ds_read_b128 {v(b,4)}, v7 offset:{L_AUG1 + t*K - 128*K}", ("w", t, q))
        else:
            for z in range(2): a(f"ds_read_b64_tr_b16 {v(b+2*z,2)}, {v(WA + 2*t + q//16)} offset:{(q%16)*4*K + z*2*K}", ("w", t, q))
    for _ in range(NB - 1): wread()
    poll(sT, 4, 5)
    a.reset_q(lg=a.lgq)
    stamp(12)
    loads = []
    for q in range(28):
        def ld(q=q):
            a(f"buffer_load_dwordx4 {v(HB+4*q,4)}, {v(vL16)}, {s(SWS,4)}, {s(sT+1)} offen offset:{(q%4)*K} sc1", ("h", q))
            if q % 4 == 3: a(f"s_add_u32 {s(sT+1)}, {s(sT+1)}, {4*K}")
        loads.append(ld)
    for t in range(4):
        loads.insert(22 + 2 * t, I(f"buffer_load_dwordx{4 if t < 3 else 2} {v(SS+4*t,4 if t < 3 else 2)}, {v(vL16)}, {s(SWS,4)}, {s(sT+2)} offen offset:{t*K} sc1", "st"))
    for _ in range(cfg.hwin): loads.pop(0)()
    def it(n):
        t, q = seq[n]
        def f():
            if n in (0, 1, 30, 66, 84): stamp(50 + (0, 1, 30, 66, 84).index(n))
            a.wait(vm=[("h", q)] if q < 28 else None, lg=[("w",) + seq[min(n + 1 - n % 2, len(seq) - 1)]])
            a(mfma(AC + 16 * t, wbufs[n % NB], HB + 4 * q if q < 28 else AUG, AC + 16 * t if q else None))
            if loads and n % 2 == 1: loads.pop(0)()
            if n == cfg.p4b: a("s_barrier")
            wread()
        return f
    stats = [lambda: a.wait(vm=["st"])]
    for t in range(2, 14): stats += [I(f"v_add_f32 {v(SS+t%2)}, {v(SS+t%2)}, {v(SS+t)}")]
    stats += [I(x) for x in f"""v_add_f32 v8, {v(SS)}, {v(SS+1)}
    v_mov_b32 {v(AUG+2)}, 0
    v_mov_b32 v9, v8
    v_mov_b32 {v(AUG+3)}, 0
    v_and_b32 v12, 31, v0
    v_permlane32_swap_b32 v8, v9
    v_mul_f32 v8, {f32(-1.0/448)}, v8
    v_mul_f32 v9, {f32(1.0/448)}, v9
    v_fma_f32 v9, -v8, v8, v9
    v_max_f32 v9, 0, v9
    v_add_f32 v9, {f32(1e-5)}, v9
    v_sqrt_f32 v10, v9
    v_rcp_f32 v9, v9
    {cvt(AUG, 8, 8)}
    v_and_b32 v11, 0xffff0000, {v(AUG)}
    v_sub_f32 v8, v8, v11
    {cvt(11, 10, 10)}
    v_and_b32 v11, 0xffff0000, v11
    v_sub_f32 v11, v10, v11
    v_cndmask_b32 v10, v10, v11, {s(sUP,2)}
    {cvt(AUG+1, 8, 10)}
    s_lshl_b32 {s(sT)}, {s(sW)}, 7
    s_add_u32 {s(sT)}, {s(sT)}, {L_R2}
    v_lshl_add_u32 v10, v12, 2, {s(sT)}
    ds_write_b32 v10, v9""".split("\n")]
    interleave([it(n) for n in range(84)], stats, 70, 3)
    assert not loads
    def ep(t):
        o = []
        for u in range(2):
            o += [I(f"v_mul_f32 {v(AC+16*t+r)}, {v(AC+16*t+r)}, |{v(AC+16*t+r)}|") for r in range(8 * u, 8 * u + 8)]
            d = SS + 8 * (t % 2) + 4 * u
            o += [I(cvt(d + k, AC + 16 * t + 8 * u + 2 * k, AC + 16 * t + 8 * u + 2 * k + 1)) for k in range(4)]
            o += [I(f"v_pk_max_i16 {v(d+k)}, {v(d+k)}, 0") for k in range(4)]
            o += [I(f"buffer_store_dwordx4 {v(d,4)}, {v(vL16)}, {s(SWS,4)}, {s(sT+3)} offen offset:{(2*(t%2)+u)*K}{SC1(cfg.hhs)}")]
        if t == 1: o += [I(f"s_add_u32 {s(sT+3)}, {s(sT+3)}, {4*K}")]
        return o
    interleave([it(n) for n in range(84, len(seq))], ep(0) + ep(1) + ep(2), 2, 4)
    stamp(13)
    a(f"""v_lshrrev_b32 v8, 3, v0
    s_lshl_b32 {s(sT)}, {s(sW)}, 3
    v_add_u32 v8, {s(sT)}, v8
    v_and_b32 v9, 7, v0
    v_lshrrev_b32 v10, 1, v9
    v_lshlrev_b32 v10, 10, v10
    v_lshl_add_u32 v10, v8, 4, v10
    v_and_b32 v11, 1, v9
    v_lshl_add_u32 v10, v11, 3, v10""")
    for f in ep(3): f()
    publish(sT + 4, 5, thru=cfg.hhs)
    a("s_waitcnt lgkmcnt(0)\ns_barrier")
    stamp(14)
    RES, B2 = 16, 24
    srd(SA, pB2, 896)
    srd(SB_, pOUT, 2048 * 896)
    a(f"""s_mul_i32 {s(sT)}, {s(sT5)}, 7
    s_add_u32 {s(sT)}, {s(sT)}, {s(sC7)}
    s_lshl_b32 {s(sT)}, {s(sT)}, 12
    s_add_u32 {s(sT)}, {s(sT)}, {HF}
    s_add_u32 {s(sT+1)}, {s(sT)}, {28*K}
    s_lshl_b32 {s(sT+2)}, {s(sC7)}, 7
    v_lshlrev_b32 v11, 4, v9
    buffer_load_dwordx2 {v(RES,2)}, v10, {s(SWS,4)}, {s(sT)} offen sc1
    buffer_load_dwordx2 {v(RES+2,2)}, v10, {s(SWS,4)}, {s(sT)} offen offset:512 sc1
    buffer_load_dwordx2 {v(RES+4,2)}, v10, {s(SWS,4)}, {s(sT+1)} offen sc1
    buffer_load_dwordx2 {v(RES+6,2)}, v10, {s(SWS,4)}, {s(sT+1)} offen offset:512 sc1
    buffer_load_dwordx4 {v(B2,4)}, v11, {s(SA,4)}, {s(sT+2)} offen
    s_lshl_b32 {s(sT)}, {s(sT5)}, 7
    s_add_u32 {s(sT)}, {s(sT)}, {FD}
    v_and_b32 v4, 31, v0
    v_min_u32 v4, 13, v4
    v_and_b32 v5, 32, v0
    v_add_lshl_u32 v4, v4, v5, 2
    s_mul_i32 {s(sT+1)}, {s(sT5)}, {112*K}
    s_lshr_b32 {s(sT+3)}, {s(sW)}, 1
    s_mul_i32 {s(sT+3)}, {s(sT+3)}, {56*K}
    s_add_u32 {s(sT+1)}, {s(sT+1)}, {s(sT+3)}
    s_and_b32 {s(sT+3)}, {s(sW)}, 1
    s_lshl_b32 {s(sT+3)}, {s(sT+3)}, 12
    s_add_u32 {s(sT+1)}, {s(sT+1)}, {s(sT+3)}
    s_add_u32 {s(sT+1)}, {s(sT+1)}, {HH}
    s_lshl_b32 {s(sM0)}, {s(sW)}, 12""")
    poll(sT, 4, 5)
    a.reset_q()
    stamp(16)
    def hdma(c):
        a(f"s_add_u32 m0, {s(sM0)}, {(c%7)*16*K}")
        if c: a(f"s_add_u32 {s(sT+1)}, {s(sT+1)}, {8*K if c != 7 else (112-48)*K}")
        else: a("s_nop 0")
        for n in range(4): a(f"buffer_load_dwordx4 {v(vL16)}, {s(SWS,4)}, {s(sT+1)} offen offset:{n*K} sc1 lds", ("hh", c))
    D = cfg.p5d
    for c in range(D): hdma(c)
    BF = 32
    def consts():
        a(f"""v_mul_u32_u24 v3, {PROW}, v8
        v_lshl_add_u32 v3, v9, 5, v3
        v_add_u32 v3, {L_PART}, v3
        s_and_b32 {s(sT)}, {s(sT5)}, 3
        s_lshl_b32 {s(sT)}, {s(sT)}, 7
        s_add_u32 {s(sT)}, {s(sT)}, {L_R2}
        v_lshl_add_u32 v4, v8, 2, {s(sT)}
        ds_read_b32 v12, v4
        ds_read_b32 v13, v4 offset:128
        v_mul_u32_u24 v5, 896, v8
        v_add_u32 v5, v5, v11
        s_mul_i32 {s(sT)}, {s(sT5)}, {32*896}
        s_add_u32 {s(sT+2)}, {s(sT+2)}, {s(sT)}""")
        for tt in range(2):
            for t in range(4):
                a(f"""v_lshlrev_b32 v6, 16, {v(B2+t)}
                v_and_b32 v7, 0xffff0000, {v(B2+t)}
                v_lshlrev_b32 {v(BF+8*tt+2*t)}, 16, {v(RES+4*tt+t)}
                v_and_b32 {v(BF+8*tt+2*t+1)}, 0xffff0000, {v(RES+4*tt+t)}
                v_add_f32 {v(BF+8*tt+2*t)}, {v(BF+8*tt+2*t)}, v6
                v_add_f32 {v(BF+8*tt+2*t+1)}, {v(BF+8*tt+2*t+1)}, v7""")
    def final(tt):
        P = 48
        for kh in range(2):
            for z in range(2):
                a(f"ds_read_b128 {v(P+8*kh+4*z,4)}, v3 offset:{(2*tt+kh)*32*PROW+16*z}")
        a("s_waitcnt lgkmcnt(0)")
        for r in range(8): a(f"v_add_f32 {v(P+r)}, {v(P+r)}, {v(P+8+r)}")
        for r in range(8): a(f"v_fma_f32 {v(P+r)}, {v(P+r)}, {v(12+tt)}, {v(BF+8*tt+r)}")
        for t in range(4): a(cvt(P + 16 + 4 * tt + t, P + 2 * t, P + 2 * t + 1))
        a(f"buffer_store_dwordx4 {v(P+16+4*tt,4)}, v5, {s(SB_,4)}, {s(sT+2)} offen{SC1(cfg.outs)}")
        if tt == 0: a(f"s_add_u32 {s(sT+2)}, {s(sT+2)}, {32*896}")
    for c in range(14):
        a.wait(vm=[("hh", c)])
        a("s_barrier")
        if c + D < 14: hdma(c + D)
        if c == 1: consts()
        if c == 12: final(0)
    stamp(17)
    a("s_barrier")
    final(1)
    stamp(18)
    if cfg.da >= 0 or cfg.dskew:
        a(f"s_or_b32 {s(sT)}, {s(sB)}, {s(sW)}\ns_cmp_lg_u32 {s(sT)}, 0\ns_cbranch_scc1 Ldly_e")
        if cfg.dskew:
            a(f"""s_mov_b32 s98, 0xe000
            buffer_load_dwordx4 v[20:23], {v(vL16)}, {s(SWS,4)}, s98 offen sc1
            s_waitcnt vmcnt(0)
            v_max_u32 v24, v20, v21
            v_max3_u32 v24, v24, v22, v23
            v_min_u32 v25, v20, v21
            v_min3_u32 v25, v25, v22, v23
            s_mov_b32 s98, 0
            s_mov_b32 s96, -1""")
            for l in range(64):
                a(f"v_readlane_b32 s100, v24, {l}\nv_readlane_b32 s101, v25, {l}\ns_nop 0\ns_max_u32 s98, s98, s100\ns_min_u32 s96, s96, s101")
        a(f"""s_memrealtime s[100:101]
        s_waitcnt lgkmcnt(0)
        s_sub_u32 s98, s98, s96
        s_min_u32 s98, s98, 10000
        s_mul_i32 s98, s98, {cfg.dm}
        Ldly:
        s_memrealtime s[96:97]
        s_waitcnt lgkmcnt(0)
        s_sub_u32 s96, s96, s100
        s_cmp_lt_u32 s96, s98
        s_cbranch_scc1 Ldly
        Ldly_e:""")
    stamp_flush(3)
    a("s_endpgm")
    a("LA_idle:")
    if cfg.wb:
        a(f"""s_cmp_lg_u32 {s(sI)}, 28
        s_cbranch_scc1 LA_idle2
        s_cmp_lg_u32 {s(sW)}, 0
        s_cbranch_scc1 LA_idle2
        buffer_wbl2 sc1
        s_lshl_b32 {s(sT)}, {s(sJ)}, 10
        s_add_u32 {s(sT)}, {s(sT)}, {FD}
        v_and_b32 v4, 7, v0
        v_lshrrev_b32 v5, 3, v0
        v_lshlrev_b32 v5, 5, v5
        v_add_lshl_u32 v4, v4, v5, 2""")
        poll(sT, 4, 5)
        a(f"s_add_u32 {s(sT)}, {s(sT)}, 24")
        poll(sT, 4, 5)
        a("buffer_wbl2 sc1\nLA_idle2:")
    stamp_flush(3)
    a("s_endpgm")

def w1addr(dst, tiles, t0):
    a(f"""v_bfe_u32 {v(t0)}, v0, 2, 2
    v_lshrrev_b32 {v(t0+1)}, 5, v0
    v_lshl_add_u32 {v(t0+1)}, {v(t0+1)}, 2, {v(t0)}
    v_lshlrev_b32 {v(t0+1)}, 8, {v(t0+1)}
    v_bfe_u32 {v(t0+2)}, v0, 4, 1
    v_lshl_add_u32 {v(t0+1)}, {v(t0+2)}, 5, {v(t0+1)}
    v_and_b32 {v(t0+2)}, 3, v0
    v_lshl_add_u32 {v(t0+1)}, {v(t0+2)}, 3, {v(t0+1)}""")
    for n, t in enumerate(tiles):
        a(f"""v_xor_b32 {v(t0+2)}, {t}, {v(t0)}
        v_lshl_add_u32 {v(dst+2*n)}, {v(t0+2)}, 6, {v(t0+1)}
        v_add_u32 {v(dst+2*n+1)}, {64*K}, {v(dst+2*n)}""")

def fallback():
    mx = 8
    def tile_loads(kv):
        o = [f"buffer_load_dwordx4 {v(vK0+4*t,4)}, {v(vL16)}, {s(SWS,4)}, {s(sT+6)} offen offset:{t*K} sc1" for t in range(kv)]
        return "\n".join(o)
    t = f"""Lfb:
    s_lshl_b32 {s(sT+6)}, {s(sH)}, 18
    s_add_u32 {s(sT+6)}, {s(sT+6)}, {KV}
    s_mov_b32 {s(sT+7)}, 64
    v_cndmask_b32 {v(vQ+6)}, {v(vQ+6)}, 0, {s(sUP,2)}
    v_mov_b32 {v(mx)}, 0xff800000
    Lfb1:
    {tile_loads(2)}
    s_waitcnt vmcnt(0)
    {mfma(vS0, vK0, vQ, None)}
    {mfma(vS0, vK1, vQ+4, vS0)}
    s_add_u32 {s(sT+6)}, {s(sT+6)}, {4*K}
    s_sub_u32 {s(sT+7)}, {s(sT+7)}, 1
    s_cmp_lg_u32 {s(sT+7)}, 0
    """
    for r in range(0, 16, 2): t += f"v_max3_f32 {v(mx)}, {v(mx)}, {v(vS0+r)}, {v(vS0+r+1)}\n"
    t += f"""s_cbranch_scc1 Lfb1
    v_mov_b32 v9, {v(mx)}
    v_permlane32_swap_b32 v9, {v(mx)}
    v_max_f32 {v(mx)}, v9, {v(mx)}
    v_sub_f32 {v(mx)}, 0, {v(mx)}
    v_and_b32 v9, 0xffff0000, {v(mx)}
    v_sub_f32 {v(mx)}, {v(mx)}, v9
    v_and_b32 v10, 0xffff0000, {v(mx)}
    v_sub_f32 {v(mx)}, {v(mx)}, v10
    v_mov_b32 v11, 0
    {cvt(9, 9, 10)}
    {cvt(10, mx, 11)}
    v_cndmask_b32 {v(vQ+6)}, {v(vQ+6)}, v9, {s(sUP,2)}
    v_cndmask_b32 {v(vQ+7)}, {v(vQ+7)}, v10, {s(sUP,2)}
    s_sub_u32 {s(sT+6)}, {s(sT+6)}, {256*K}
    s_mov_b32 {s(sT+7)}, 64
    """
    for r in range(16): t += f"v_mov_b32 {v(vO+r)}, 0\n"
    t += f"""Lfb2:
    {tile_loads(4)}
    s_waitcnt vmcnt(0)
    {mfma(vS0, vK0, vQ, None)}
    {mfma(vS0, vK1, vQ+4, vS0)}
    s_add_u32 {s(sT+6)}, {s(sT+6)}, {4*K}
    s_sub_u32 {s(sT+7)}, {s(sT+7)}, 1
    s_cmp_lg_u32 {s(sT+7)}, 0
    """
    for r in range(16): t += f"v_exp_f32 {v(vS0+r)}, {v(vS0+r)}\n"
    t += f"""{smf(vO, vV0, vS0, vIDX)}
    {smf(vO, vV1, vS0+8, vIDX)}
    s_nop 7
    s_cbranch_scc1 Lfb2
    s_nop 7
    s_branch Lfbd"""
    ool.append(t)

def post_B():
    stamp(7)
    a(f"""s_lshl2_add_u32 {s(sT+2)}, {s(sRB)}, {s(sW4)}
    s_lshl_b32 {s(sT+3)}, {s(sT+2)}, 4
    s_add_u32 {s(sT+3)}, {s(sT+3)}, {s(sH)}
    s_lshl_b32 {s(sT+3)}, {s(sT+3)}, 11
    s_add_u32 {s(sT+3)}, {s(sT+3)}, {OF}
    s_lshl_b32 {s(sT+2)}, {s(sT+2)}, 5
    s_add_u32 {s(sT+2)}, {s(sT+2)}, {s(sH)}
    s_lshl_b32 {s(sT+2)}, {s(sT+2)}, 2
    s_add_u32 {s(sT+2)}, {s(sT+2)}, {FB}
    s_mov_b32 {s(sT+4)}, {f32(2.0**40)}
    s_mov_b32 {s(sT+5)}, {f32(2.0**-40)}
    s_setprio 3
    s_barrier""")
    stamp(33)
    for g in (1, 0, 2, 3): a(f"ds_read_b128 {v(vS0+4*g,4)}, v3 offset:{g*K}", ("r", g))
    for g in (1, 0, 2, 3):
        a.wait(lg=[("r", g)])
        for t in (3, 0, 1, 2): a(f"v_add_f32 {v(vO+4*g+t)}, {v(vO+4*g+t)}, {v(vS0+4*g+t)}")
        if g == 1:
            a(f"""v_cmp_ngt_f32 vcc, {s(sT+4)}, {v(vO+7)}
            v_cmp_nlt_f32 {s(sCM,2)}, {s(sT+5)}, {v(vO+7)}""")
    a(f"s_or_b64 vcc, vcc, {s(sCM,2)}")
    a("s_branch Lfb" if cfg.force_fallback else "s_cbranch_scc1 Lfb")
    a(f"Lfbd:\nv_rcp_f32 v5, {v(vO+7)}\nv_mov_b32 v6, {s(sG)}")
    for u in range(2):
        for r in range(8): a(f"v_mul_f32 {v(vO+8*u+r)}, {v(vO+8*u+r)}, v5")
        for t in range(4): a(cvt(vS0 + 4 * u + t, vO + 8 * u + 2 * t, vO + 8 * u + 2 * t + 1))
        a(f"buffer_store_dwordx4 {v(vS0+4*u,4)}, {v(vL16)}, {s(SWS,4)}, {s(sT+3)} offen offset:{u*K} sc1")
    stamp(34)
    fallback()
    a(f"""s_mul_i32 {s(sT+3)}, {s(sT4)}, 14
    s_add_u32 {s(sT+3)}, {s(sT+3)}, {s(sSL)}
    s_lshl_b32 {s(sT+3)}, {s(sT+3)}, 13
    s_add_u32 {s(sT+3)}, {s(sT+3)}, {HH}
    v_lshlrev_b32 v13, 7, v0
    s_cmp_ge_u32 {s(sI)}, 28
    s_waitcnt vmcnt(0)
    buffer_store_dword v6, {v(vF0)}, {s(SWS,4)}, {s(sT+2)} offen sc1
    s_setprio 0""")
    stamp(8)
    a("s_cbranch_scc1 LB_idle")
    w2load(cfg.w2n3, 0)
    w1addr(16, [s(sW4)], 3)
    stamp(15)
    a("s_barrier")
    if cfg.hhtouch: a(f"buffer_load_dword v14, v13, {s(SWS,4)}, {s(sT+3)} offen sc1")
    w2load(cfg.w2n1, 0)
    assert nw[0] <= 32
    def crd(q):
        for z in range(2): a(f"ds_read_b64_tr_b16 {v(32+4*(q%6)+2*z,2)}, {v(16+q//16)} offset:{(q%16)*4*K + z*2*K}", ("c", q))
    for q in range(5): crd(q)
    for q in range(28):
        if q + 5 < 28: crd(q + 5)
        a.wait(lg=[("c", q)])
        for t in range(4):
            r = 32 + 4 * (q % 6) + t
            if q == 0 and t == 0: a(f"v_and_b32 v6, 0xffff0000, {v(r)}\nv_lshlrev_b32 v7, 16, {v(r)}")
            else: a(f"v_and_b32 v8, 0xffff0000, {v(r)}\nv_lshlrev_b32 v9, 16, {v(r)}\nv_add_f32 v6, v6, v8\nv_add_f32 v7, v7, v9")
    a(f"""v_lshlrev_b32 v5, 16, {v(vB1)}
    v_mov_b32 v10, 0
    v_add_f32 v6, v6, v7
    {cvt(7, 6, 6)}
    v_and_b32 v7, 0xffff0000, v7
    v_sub_f32 v7, v6, v7
    {cvt(8, 6, 7)}
    {cvt(9, 6, 5)}
    v_mov_b32 v11, 0
    s_lshl_b32 {s(sT)}, {s(sW4)}, 10
    s_add_u32 {s(sT)}, {s(sT)}, {L_AUG1}
    v_add_u32 v4, {s(sT)}, {v(vL16)}""")
    a("ds_write_b128 v4, v[8:11]")
    stamp(16)
    a("s_waitcnt lgkmcnt(0)\ns_barrier")
    stamp(9)
    w2load(56 - nw[0], 0)
    AC, HBUF, NB = 16, [4, 8, 12], 3
    a(f"""s_lshr_b32 {s(sT)}, {s(sW4)}, 1
    s_lshl_b32 {s(sT+1)}, {s(sT)}, 13
    v_and_b32 v4, 31, v0
    v_mul_u32_u24 v4, {PROW}, v4
    v_lshrrev_b32 v5, 5, v0
    v_lshl_add_u32 v4, v5, 4, v4
    s_mul_i32 {s(sT)}, {s(sT)}, {32*PROW}
    s_and_b32 {s(sT+2)}, {s(sW4)}, 1
    s_lshl_b32 {s(sT+2)}, {s(sT+2)}, 7
    s_add_u32 {s(sT)}, {s(sT)}, {s(sT+2)}
    s_add_u32 {s(sT)}, {s(sT)}, {L_PART}
    v_add_u32 v0, {s(sT)}, v4
    v_add_u32 v2, {s(sT+1)}, {v(vL16)}
    v_add_u32 v3, {64*K}, v2
    s_waitcnt vmcnt(0)""")
    if cfg.stamps: a("v_mov_b32 v1, v15"); vSTAMP[0] = 1
    stamp(10)
    a("s_barrier")
    nr = [0]
    def hread():
        n = nr[0]
        if n >= 112: return
        nr[0] += 1
        q = n % 56
        if q % 8 == 0:
            if n == 64: a.wait(lg=["pw"])
            a("s_barrier")
            stamp(48 + n // 8)
        off = (q // 8) * 16 * K + (q % 8) * K
        a(f"ds_read_b128 {v(HBUF[n%NB],4)}, {v(2 + off // (64*K))} offset:{off % (64*K)}", ("h", n))
    for _ in range(NB - 1): hread()
    for n in range(112):
        q = n % 56
        hread()
        a.wait(lg=[("h", n)] + (["pw"] if n == 56 else []))
        a(mfma(AC, wreg(q), HBUF[n % NB], AC if q else None))
        if q == 55:
            for g in range(4): a(f"ds_write_b128 v0, {v(AC+4*g,4)} offset:{(n//56)*64*PROW+32*g}", "pw")
    a("s_waitcnt lgkmcnt(0)")
    stamp(11)
    a("s_barrier")
    stamp_flush(3)
    a("s_endpgm")
    vSTAMP[0] = 15
    a("LB_idle:\ns_barrier")
    stamp_flush(3)
    a("Lend:\ns_endpgm")

prologue()
p1_A()
attention(0)
post_A()
p1_B()
attention(1)
post_B()
body = a.lines + [l.strip() for blk in ool for l in blk.split("\n") if l.strip()]
body, npad = pad_all(body, verbose="-v" in sys.argv[1])
print("instructions:", len(body), "pads:", npad, file=sys.stderr)

head = open("cdna_kernels/%s.s.ref" % NAME).read().split("; Override launch")[0]
out = head + f"; @launch grid=(256,1,1) block=(512,1,1) lds={LDS_SIZE}\n"
out += f""".amdgcn_target "amdgcn-amd-amdhsa--gfx950"
.text
.globl {KN}
.p2align 8
.type {KN},@function
{KN}:
"""
out += "\n".join(("" if l.endswith(":") else "    ") + l for l in body)
out += f"""
Lcode_end:
    s_endpgm
.section .rodata,"a"
.p2align 6
.amdhsa_kernel {KN}
  .amdhsa_next_free_vgpr 256
  .amdhsa_next_free_sgpr 102
  .amdhsa_accum_offset 256
  .amdhsa_group_segment_fixed_size 0
  .amdhsa_kernarg_size 88
  .amdhsa_user_sgpr_count 2
  .amdhsa_user_sgpr_kernarg_segment_ptr 1
  .amdhsa_system_sgpr_workgroup_id_x 1
.end_amdhsa_kernel
"""
open(sys.argv[1].replace("-v", ""), "w").write(out)
```
